```python
import torch

def _softmax(x, axis=-1):
    return torch.softmax(x, dim=axis)
def _gelu(x):
    return torch.nn.functional.gelu(x, approximate="tanh")
def _silu(x):
    return torch.nn.functional.silu(x)
def _sigmoid(x):
    return torch.sigmoid(x)
def _layernorm(x, axis=-1, eps=1e-5):
    m = x.mean(dim=axis, keepdim=True)
    v = x.var(dim=axis, keepdim=True, unbiased=False)
    return (x - m) / torch.sqrt(v + eps)
def _scatter_add(tgt, idx, src, axis=0):
    return tgt.clone().index_add_(axis, idx, src)
def _segment_sum(src, seg, n):
    out = torch.zeros((n,) + src.shape[1:], dtype=src.dtype)
    return out.index_add_(0, seg, src)
def _pad(x, pw):
    flat = tuple(v for pair in reversed(pw) for v in pair)
    return torch.nn.functional.pad(x, flat)

kernel_name = 'interleave_layers__linear_attn_block__dense_activation_silu__prompt'

def setup_inputs():

    _w = (lambda a: (lambda t: t.to(torch.bfloat16) if t.is_floating_point() else t)(torch.as_tensor(a)))
    def _A_setup():
        B, S, D = 1, 2048, 1024
        return {
            "x": _w((lambda *s: torch.randn(*s, dtype=torch.bfloat16) * 0.05)(B, S, D)),
            "wqkv": _w((lambda *s: torch.randn(*s, dtype=torch.bfloat16) * 0.05)(D, 3 * D)),
            "wo": _w((lambda *s: torch.randn(*s, dtype=torch.bfloat16) * 0.05)(D, D)),
        }
    _A_in = _A_setup()

    def _B_setup():
        B, S, D, F = 1, 2048, 1024, 3584
        return {
            "x": _w((lambda *s: torch.randn(*s, dtype=torch.bfloat16) * 0.05)(B, S, D)),
            "w1": _w((lambda *s: torch.randn(*s, dtype=torch.bfloat16) * 3.2)(D, F) * (D ** -0.5)),
            "w2": _w((lambda *s: torch.randn(*s, dtype=torch.bfloat16) * 0.8)(F, D) * (F ** -0.5)),
        }
    _B_in = _B_setup()

    return {
        "A_x": _A_in["x"],
        "A_wqkv": _A_in["wqkv"],
        "A_wo": _A_in["wo"],
        "B_x": _B_in["x"],
        "B_w1": _B_in["w1"],
        "B_w2": _B_in["w2"],
    }

def reference(A_x, A_wqkv, A_wo, B_x, B_w1, B_w2):
    def _A_ref(x, wqkv, wo):
        B, S, D = x.shape
        H = 32; Dh = D // H
        qkv = (lambda x, *d: x.permute(*d))((x @ wqkv).reshape(B, S, 3, H, Dh), 2, 0, 3, 1, 4)
        q, k, v = qkv[0], qkv[1], qkv[2]
        phi = lambda t: torch.where(t > 0, t + 1, torch.exp(t)) + 1e-6
        pq, pk = phi(q), phi(k)
        kv = torch.einsum("bhsd,bhse->bhde", pk, v)
        z = torch.einsum("bhsd->bhd", pk)
        num = torch.einsum("bhqd,bhde->bhqe", pq, kv)
        den = torch.einsum("bhqd,bhd->bhq", pq, z)[..., None] + 1e-6
        o = num / den
        return (lambda x, *d: x.permute(*d))(o, 0, 2, 1, 3).reshape(B, S, D) @ wo

    def _B_ref(x, w1, w2):
        h = torch.einsum("bsd,df->bsf", x, w1)
        h = _silu(h)
        out = torch.einsum("bsf,fd->bsd", h, w2)
        return out

    x = A_x
    x = x + _A_ref(_layernorm(x, axis=-1), A_wqkv, A_wo)
    x = x + _B_ref(_layernorm(x, axis=-1), B_w1, B_w2)
    x = x + _A_ref(_layernorm(x, axis=-1), A_wqkv, A_wo)
    x = x + _B_ref(_layernorm(x, axis=-1), B_w1, B_w2)
    return x
```

```python
from dsl import *

ARG = dict(x=0, wqkv=8, wo=16, bx=24, w1=32, w2=40, out=48, dbg=56, ws=64)

S_WAVE = 3; S_MT = 4; S_NT = 5; S_WM = 6; S_WN = 7
SRD_X = 8; SRD_W = 12; SRD_O = 16; SRD_R = 20; SRD_S = 24; SRD_P = 28
S_XOFF = 32; S_WOFF = 33; S_SLOT = 34; S_CNT = 35; S_INC = 36; S_T0 = 37; S_T1 = 38; S_T2 = 39
S_MX = 40; S_MS = 41
S_NEG = 46; S_POS = 47
S_P0 = 48
S_HALFOFF = 66; S_T3 = 67; S_T4 = 68; S_T5 = 69
S_STAMP = 70
S_C0 = 82
SRD_Q = 92

def ptr(name): return S_P0 + ARG[name] // 4

def load_kernargs(a):
    a.e("s_load_dwordx16 %s, s[0:1], 0" % s(S_P0, 16))
    a.e("s_load_dwordx2 %s, s[0:1], 64" % s(S_P0 + 16, 2))

def mk_srd(a, srd, buf):
    name, off, size = buf
    p = ptr(name)
    if off:
        a.e("s_add_u32 %s, %s, 0x%x" % (s(srd), s(p), off & 0xffffffff))
        a.e("s_addc_u32 %s, %s, 0" % (s(srd + 1), s(p + 1)))
    else:
        a.e("s_mov_b32 %s, %s" % (s(srd), s(p)))
        a.e("s_mov_b32 %s, %s" % (s(srd + 1), s(p + 1)))
    a.e("s_mov_b32 %s, 0x%x" % (s(srd + 2), size))
    a.e("s_mov_b32 %s, 0x20000" % s(srd + 3))

class Cfg:
    def __init__(self, **kw):
        self.BM = 128; self.BK = 64
        self.dma = True; self.mfma = True; self.reads = True
        self.stamps = False; self.prio = 2; self.ramp = 2; self.SUBS = 1; self.rper = 2
        self.pre = None; self.resid = None; self.bend = False; self.xtra = 0
        self.ld_pre = None; self.ld_post = None
        self.__dict__.update(kw)
        self.nfull = sum(1 for k in self.segs if k == 'full')
        self.nhalf = sum(1 for k in self.segs if k == 'half')
        self.XB = self.BM * 128
        self.WB = self.nfull * 8192 + self.nhalf * 4096
        self.STG = self.XB + self.WB
        self.nst = self.K // self.BK
        self.ndma = (self.XB + self.WB) // 1024 // 4
        self.TM = self.BM // 16 // self.WM
        if self.WN == 2:
            self.ct = []
            for si, k in enumerate(self.segs):
                if k == 'full': self.ct += [(si, 0), (si, 1)]
                else: self.ct += [(si, 2)]
            self.nwa = 3 if self.nhalf else 2
        else:
            assert self.WN == 1 and self.nhalf == 0
            self.ct = [(si, t) for si in range(self.nfull) for t in range(4)]
            self.nwa = 4
        self.TN = len(self.ct)
        self.XTRA = self.NS * self.STG
        self.lds = self.XTRA + self.xtra
        assert self.lds <= 163840
        if self.resid: self.bend = True

def wcol_base(a, c, sd, shalf):
    if c.nhalf:
        a.e("s_lshr_b32 %s, %s, 1" % (s(sd), s(S_NT)))
        a.e("s_mul_i32 %s, %s, 896" % (s(sd), s(sd)))
        a.e("s_and_b32 %s, %s, 1" % (s(shalf), s(S_NT)))
        a.e("s_lshl_b32 %s, %s, 9" % (s(shalf), s(shalf)))
        a.e("s_add_u32 %s, %s, %s" % (s(sd), s(sd), s(shalf)))
        a.e("s_and_b32 %s, %s, 1" % (s(shalf), s(S_NT)))
        a.e("s_mul_i32 %s, %s, -448" % (s(shalf), s(shalf)))
        a.e("s_add_u32 %s, %s, 384" % (s(shalf), s(shalf)))
    else:
        a.e("s_mul_i32 %s, %s, %d" % (s(sd), s(S_NT), c.w_ntile_bytes))

def stamp(a, c, i):
    if c.stamps: a.e("s_memtime %s" % s(S_STAMP + 2 * i, 2))

def write_stamps(a, c, nst=6):
    if not c.stamps: return
    mk_srd(a, SRD_Q, c.stampbuf)
    a.e("s_waitcnt lgkmcnt(0)")
    a.e("s_lshl_b32 %s, s2, 6" % s(S_T0))
    for i in range(nst * 2):
        a.e("v_mov_b32 v1, %s" % s(S_STAMP + i))
        a.e("v_mov_b32 v2, %s" % s(S_T0))
        a.e("buffer_store_dword v1, v2, %s, 0 offen offset:%d" % (s(SRD_Q, 4), 4 * i))
        a.e("s_nop 1")

def x_voffsets(a, c, vl, vt, vt2, vx, pitch):
    a.e("s_lshl_b32 %s, %s, 7" % (s(S_T0), s(S_MT)))
    a.e("s_lshl_b32 %s, %s, 5" % (s(S_T1), s(S_WAVE)))
    a.e("s_add_u32 %s, %s, %s" % (s(S_T0), s(S_T0), s(S_T1)))
    a.e("s_mul_i32 %s, %s, %d" % (s(S_T0), s(S_T0), pitch))
    a.e("v_lshrrev_b32 %s, 3, %s" % (v(vt), v(vl)))
    a.e("v_mul_u32_u24 %s, %d, %s" % (v(vt), pitch, v(vt)))
    a.e("v_add_u32 %s, %s, %s" % (v(vt), s(S_T0), v(vt)))
    for j in range(4):
        a.e("v_lshrrev_b32 %s, 4, %s" % (v(vt2), v(vl)))
        if j & 1: a.e("v_add_u32 %s, 4, %s" % (v(vt2), v(vt2)))
        a.e("v_xor_b32 %s, %s, %s" % (v(vt2), v(vl), v(vt2)))
        a.e("v_and_b32 %s, 7, %s" % (v(vt2), v(vt2)))
        a.e("v_lshl_add_u32 %s, %s, 4, %s" % (v(vx + j), v(vt2), v(vt)))
        off = j * (8 * pitch - 1024)
        if off: a.e("v_add_u32 %s, 0x%x, %s" % (v(vx + j), off, v(vx + j)))

def loader(a, c):
    R = Regs(1, 128)
    vl = R.get(); vt = R.get(); vt2 = R.get()
    vx = R.get(4); vw = R.get(2 * c.nfull + c.nhalf)
    a.c("---- loader waves ----")
    a.e("v_and_b32 %s, 63, v0" % v(vl))
    x_voffsets(a, c, vl, vt, vt2, vx, c.x_pitch)
    a.e("s_lshl_b32 %s, %s, 4" % (s(S_T0), s(S_WAVE)))
    a.e("s_mul_i32 %s, %s, %d" % (s(S_T0), s(S_T0), c.w_pitch))
    wcol_base(a, c, S_T1, S_HALFOFF)
    a.e("s_add_u32 %s, %s, %s" % (s(S_T0), s(S_T0), s(S_T1)))
    a.e("v_lshrrev_b32 %s, 3, %s" % (v(vt), v(vl)))
    a.e("v_mul_u32_u24 %s, %d, %s" % (v(vt), c.w_pitch, v(vt)))
    a.e("v_add_u32 %s, %s, %s" % (v(vt), s(S_T0), v(vt)))
    for jj in range(2):
        a.e("v_lshrrev_b32 %s, 3, %s" % (v(vt2), v(vl)))
        a.e("v_and_b32 %s, 2, %s" % (v(vt2), v(vt2)))
        if jj: a.e("v_add_u32 %s, 4, %s" % (v(vt2), v(vt2)))
        a.e("v_xor_b32 %s, %s, %s" % (v(vt2), v(vl), v(vt2)))
        a.e("v_and_b32 %s, 7, %s" % (v(vt2), v(vt2)))
        for si in range(c.nfull):
            r = vw + 2 * si + jj
            a.e("v_lshl_add_u32 %s, %s, 4, %s" % (v(r), v(vt2), v(vt)))
            off = c.w_seg_bytes[si] + jj * (8 * c.w_pitch - 1024)
            if off: a.e("v_add_u32 %s, 0x%x, %s" % (v(r), off, v(r)))
    if c.nhalf:
        r = vw + 2 * c.nfull
        a.e("v_lshrrev_b32 %s, 2, %s" % (v(vt), v(vl)))
        a.e("v_mul_u32_u24 %s, %d, %s" % (v(vt), c.w_pitch, v(vt)))
        a.e("v_add_u32 %s, %s, %s" % (v(vt), s(S_T0), v(vt)))
        a.e("v_lshrrev_b32 %s, 4, %s" % (v(vt2), v(vl)))
        a.e("v_and_b32 %s, 2, %s" % (v(vt2), v(vt2)))
        a.e("v_xor_b32 %s, %s, %s" % (v(vt2), v(vl), v(vt2)))
        a.e("v_and_b32 %s, 3, %s" % (v(vt2), v(vt2)))
        a.e("v_lshl_add_u32 %s, %s, 4, %s" % (v(r), v(vt2), v(vt)))
        a.e("v_add_u32 %s, %s, %s" % (v(r), s(S_HALFOFF), v(r)))
    a.e("s_lshl_b32 %s, %s, 12" % (s(S_MX), s(S_WAVE)))
    for si in range(c.nfull):
        a.e("s_lshl_b32 %s, %s, 11" % (s(S_MS + si), s(S_WAVE)))
        a.e("s_add_u32 %s, %s, %d" % (s(S_MS + si), s(S_MS + si), c.XB + 8192 * si))
    if c.nhalf:
        a.e("s_lshl_b32 %s, %s, 10" % (s(S_MS + c.nfull), s(S_WAVE)))
        a.e("s_add_u32 %s, %s, %d" % (s(S_MS + c.nfull), s(S_MS + c.nfull), c.XB + 8192 * c.nfull))
    a.e("s_mov_b32 %s, 0" % s(S_XOFF))
    a.e("s_mov_b32 %s, 0" % s(S_WOFF))
    a.e("s_mov_b32 %s, 0" % s(S_SLOT))

    def issue():
        if c.dma:
            a.e("s_add_u32 m0, %s, %s" % (s(S_SLOT), s(S_MX)))
            a.e("s_nop 0")
            for j in range(4):
                a.e("buffer_load_dwordx4 %s, %s, %s offen offset:%d%s lds" % (v(vx + j), s(SRD_X, 4), s(S_XOFF), 1024 * j, getattr(c, 'xflags', '')))
            for si in range(c.nfull):
                a.e("s_add_u32 m0, %s, %s" % (s(S_SLOT), s(S_MS + si)))
                a.e("s_nop 0")
                for jj in range(2):
                    a.e("buffer_load_dwordx4 %s, %s, %s offen offset:%d%s lds" % (v(vw + 2 * si + jj), s(SRD_W, 4), s(S_WOFF), 1024 * jj, getattr(c, 'wflags', '')))
            if c.nhalf:
                a.e("s_add_u32 m0, %s, %s" % (s(S_SLOT), s(S_MS + c.nfull)))
                a.e("s_nop 0")
                a.e("buffer_load_dwordx4 %s, %s, %s offen%s lds" % (v(vw + 2 * c.nfull), s(SRD_W, 4), s(S_WOFF), getattr(c, 'wflags', '')))
        a.e("s_add_u32 %s, %s, 128" % (s(S_XOFF), s(S_XOFF)))
        a.e("s_add_u32 %s, %s, %d" % (s(S_WOFF), s(S_WOFF), 64 * c.w_pitch))
        a.e("s_add_u32 %s, %s, %d" % (s(S_SLOT), s(S_SLOT), c.STG))
        a.e("s_cmp_eq_u32 %s, %d" % (s(S_SLOT), c.NS * c.STG))
        a.e("s_cselect_b32 %s, 0, %s" % (s(S_SLOT), s(S_SLOT)))

    T = 0
    if c.resid:
        vr = R.get(4)
        T = 4
    def tail():
        mk_srd(a, SRD_R, c.resid)
        x_voffsets(a, c, vl, vt, vt2, vr, 2048)
        a.e("s_lshl_b32 %s, %s, 7" % (s(S_T0), s(S_NT)))
        a.e("s_lshl_b32 %s, %s, 12" % (s(S_T1), s(S_WAVE)))
        a.e("s_add_u32 m0, %s, %d" % (s(S_T1), c.XTRA))
        a.e("s_nop 0")
        for j in range(4):
            a.e("buffer_load_dwordx4 %s, %s, %s offen offset:%d lds" % (v(vr + j), s(SRD_R, 4), s(S_T0), 1024 * j))

    n = c.ndma if c.dma else 0
    NS = c.NS; nst = c.nst
    ops = []; issued = 0; plan = []
    for j in range(nst):
        allowed = min(nst - 1, NS - 1 if j == 0 else (j - 1) - 1 + NS)
        k = max(0, min(c.ramp, allowed + 1 - issued))
        t = False
        for q in range(k):
            ops += [issued] * n; issued += 1
        if T and issued == nst and 'tail' not in ops and (k > 0 or j == 0):
            ops += ['tail'] * T; t = True
        last = max([i for i, o in enumerate(ops) if o == j], default=-1)
        plan.append((k, len(ops) - 1 - last, t))
    if c.ld_pre: c.ld_pre(a, c, R, vl, vt, vt2)
    j = 0
    while j < nst:
        k, w, t = plan[j]
        run = 1
        while j + run < nst and plan[j + run] == plan[j] and not t: run += 1
        if run >= 3:
            a.e("s_mov_b32 %s, %d" % (s(S_CNT), run))
            lab = a.newlab("ld"); a.lab(lab)
            for _ in range(k): issue()
            a.e("s_waitcnt vmcnt(%d)" % w)
            a.e("s_barrier")
            a.e("s_sub_u32 %s, %s, 1" % (s(S_CNT), s(S_CNT)))
            a.e("s_cmp_lg_u32 %s, 0" % s(S_CNT))
            a.e("s_cbranch_scc1 %s" % lab)
            j += run
        else:
            for _ in range(k): issue()
            if t: tail()
            a.e("s_waitcnt vmcnt(%d)" % w)
            a.e("s_barrier")
            j += 1
    if c.ld_post: c.ld_post(a, c, R, vl, vt, vt2)
    if c.bend:
        a.e("s_waitcnt vmcnt(0)")
        a.e("s_barrier")

class CompRegs: pass

def compute_setup(a, c):
    R = Regs(1, 256)
    r = CompRegs(); r.R = R
    r.vl = R.get(); r.vt = R.get(); r.vt2 = R.get()
    r.xa = R.get(2); r.wa = R.get(c.nwa)
    r.acc = R.get(c.TM * c.TN * 4, 4)
    r.xf = [R.get(c.TM * 4 * c.SUBS, 4) for _ in range(2)]
    r.wf = [R.get(c.TN * 4 * c.SUBS, 4) for _ in range(2)]
    r.free0 = r.xf[0]; r.free1 = R.p
    vl, vt, vt2 = r.vl, r.vt, r.vt2
    a.c("---- compute waves ----")
    a.e("v_and_b32 %s, 63, v0" % v(vl))
    if c.WN == 2:
        a.e("s_lshr_b32 %s, %s, 1" % (s(S_WM), s(S_WAVE)))
        a.e("s_and_b32 %s, %s, 1" % (s(S_WN), s(S_WAVE)))
    else:
        a.e("s_mov_b32 %s, %s" % (s(S_WM), s(S_WAVE)))
        a.e("s_mov_b32 %s, 0" % s(S_WN))
    if c.pre: c.pre(a, c, r)
    a.e("s_mul_i32 %s, %s, %d" % (s(S_T2), s(S_WM), c.TM * 16 * 128))
    a.e("v_and_b32 %s, 15, %s" % (v(vt), v(vl)))
    a.e("v_lshrrev_b32 %s, 1, %s" % (v(vt2), v(vt)))
    a.e("v_lshlrev_b32 %s, 7, %s" % (v(vt), v(vt)))
    a.e("v_add_u32 %s, %s, %s" % (v(vt), s(S_T2), v(vt)))
    a.e("v_lshrrev_b32 %s, 4, %s" % (v(r.xa), v(vl)))
    a.e("v_xor_b32 %s, %s, %s" % (v(vt2), v(vt2), v(r.xa)))
    a.e("v_lshl_add_u32 %s, %s, 4, %s" % (v(r.xa), v(vt2), v(vt)))
    a.e("v_xor_b32 %s, 64, %s" % (v(r.xa + 1), v(r.xa)))
    kreg = r.free0; greg = r.free0 + 1
    a.e("v_lshrrev_b32 %s, 4, %s" % (v(vt), v(vl)))
    a.e("v_lshlrev_b32 %s, 3, %s" % (v(vt), v(vt)))
    a.e("v_bfe_u32 %s, %s, 2, 2" % (v(vt2), v(vl)))
    a.e("v_add_u32 %s, %s, %s" % (v(kreg), v(vt), v(vt2)))
    a.e("v_bfe_u32 %s, %s, 3, 1" % (v(greg), v(vl)))
    a.e("v_lshlrev_b32 %s, 1, %s" % (v(greg), v(greg)))
    a.e("v_bfe_u32 %s, %s, 4, 1" % (v(vt2), v(vl)))
    a.e("v_lshl_add_u32 %s, %s, 2, %s" % (v(greg), v(vt2), v(greg)))
    nfa = 2 if c.WN == 2 else 4
    for i in range(nfa):
        a.e("v_bfe_u32 %s, %s, 1, 1" % (v(vt2), v(vl)))
        if c.WN == 2:
            a.e("s_lshl_b32 %s, %s, 2" % (s(S_T2), s(S_WN)))
            a.e("s_add_u32 %s, %s, %d" % (s(S_T2), s(S_T2), 2 * i))
            a.e("v_add_u32 %s, %s, %s" % (v(vt2), s(S_T2), v(vt2)))
        elif i:
            a.e("v_add_u32 %s, %d, %s" % (v(vt2), 2 * i, v(vt2)))
        a.e("v_xor_b32 %s, %s, %s" % (v(vt2), v(vt2), v(greg)))
        a.e("v_lshlrev_b32 %s, 4, %s" % (v(vt2), v(vt2)))
        a.e("v_lshl_add_u32 %s, %s, 7, %s" % (v(vt2), v(kreg), v(vt2)))
        a.e("v_and_b32 %s, 1, %s" % (v(vt), v(vl)))
        a.e("v_lshl_add_u32 %s, %s, 3, %s" % (v(vt2), v(vt), v(vt2)))
        a.e("v_add_u32 %s, %d, %s" % (v(r.wa + i), c.XB, v(vt2)))
    if c.nhalf:
        a.e("v_bfe_u32 %s, %s, 1, 1" % (v(vt2), v(vl)))
        a.e("s_lshl_b32 %s, %s, 1" % (s(S_T2), s(S_WN)))
        a.e("v_add_u32 %s, %s, %s" % (v(vt2), s(S_T2), v(vt2)))
        a.e("v_bfe_u32 %s, %s, 4, 1" % (v(vt), v(vl)))
        a.e("v_lshlrev_b32 %s, 1, %s" % (v(vt), v(vt)))
        a.e("v_xor_b32 %s, %s, %s" % (v(vt2), v(vt2), v(vt)))
        a.e("v_lshlrev_b32 %s, 4, %s" % (v(vt2), v(vt2)))
        a.e("v_lshl_add_u32 %s, %s, 6, %s" % (v(vt2), v(kreg), v(vt2)))
        a.e("v_and_b32 %s, 1, %s" % (v(vt), v(vl)))
        a.e("v_lshl_add_u32 %s, %s, 3, %s" % (v(vt2), v(vt), v(vt2)))
        a.e("v_add_u32 %s, %d, %s" % (v(r.wa + 2), c.XB + c.nfull * 8192, v(vt2)))
    if getattr(c, 'pre2', None): c.pre2(a, c, r)
    for i in range(c.TM * c.TN * 4):
        a.e("v_mov_b32 %s, 0" % v(r.acc + i))
    if getattr(c, 'pre3', None): c.pre3(a, c, r)
    return r

def reads(c, r, st, sub, rsub=0):
    if not c.reads: return []
    xs = []; ws = []
    for tt in range(c.TM):
        xs.append("ds_read_b128 %s, %s offset:%d" % (v(r.xf[st] + 4 * (rsub * c.TM + tt), 4), v(r.xa + sub), tt * 2048))
    for j, (si, ai) in enumerate(c.ct):
        half = c.segs[si] == 'half'
        for r2 in range(2):
            off = (sub * 2048 + r2 * 256) if half else (si * 8192 + sub * 4096 + r2 * 512)
            ws.append("ds_read_b64_tr_b16 %s, %s offset:%d" % (v(r.wf[st] + 4 * (rsub * c.TN + j) + 2 * r2, 2), v(r.wa + ai), off))
    return [xs[0], ws[0], ws[1]] + xs[1:] + ws[2:]

def mfmas(c, r, st, rsub=0):
    if not c.mfma: return []
    out = []
    for j in range(c.TN):
        for tt in range(c.TM):
            acc = v(r.acc + (j * c.TM + tt) * 4, 4)
            x = v(r.xf[st] + 4 * (rsub * c.TM + tt), 4); w = v(r.wf[st] + 4 * (rsub * c.TN + j), 4)
            if c.orient[j] == 'T': out.append("v_mfma_f32_16x16x32_bf16 %s, %s, %s, %s" % (acc, w, x, acc))
            else: out.append("v_mfma_f32_16x16x32_bf16 %s, %s, %s, %s" % (acc, x, w, acc))
    return out

def compute_loop(a, c, r):
    def addr_update():
        u = ["s_add_u32 %s, %s, %d" % (s(S_SLOT), s(S_SLOT), c.STG),
             "s_cmp_eq_u32 %s, %d" % (s(S_SLOT), c.NS * c.STG),
             "s_cselect_b32 %s, %s, %s" % (s(S_INC), s(S_NEG), s(S_POS)),
             "s_cselect_b32 %s, 0, %s" % (s(S_SLOT), s(S_SLOT))]
        for i in range(2): u.append("v_add_u32 %s, %s, %s" % (v(r.xa + i), s(S_INC), v(r.xa + i)))
        for i in range(c.nwa): u.append("v_add_u32 %s, %s, %s" % (v(r.wa + i), s(S_INC), v(r.wa + i)))
        return u
    a.e("s_mov_b32 %s, 0" % s(S_SLOT))
    a.e("s_mov_b32 %s, %d" % (s(S_NEG), -(c.NS - 1) * c.STG))
    a.e("s_mov_b32 %s, %d" % (s(S_POS), c.STG))
    if c.prio: a.e("s_setprio %d" % c.prio)
    a.e("s_waitcnt lgkmcnt(0)")
    a.e("s_barrier")
    stamp(a, c, 1)
    lab = a.newlab("cl")
    if c.SUBS == 1:
        for i in reads(c, r, 0, 0): a.e(i)
        a.e("s_mov_b32 %s, %d" % (s(S_CNT), c.nst - 1))
        a.e("s_waitcnt lgkmcnt(0)")
        a.raw(".p2align 6")
        a.lab(lab)
        for i in interleave(mfmas(c, r, 0), reads(c, r, 1, 1) + addr_update()): a.e(i)
        a.e("s_waitcnt lgkmcnt(0)")
        a.e("s_barrier")
        for i in interleave(mfmas(c, r, 1), reads(c, r, 0, 0)): a.e(i)
        a.e("s_sub_u32 %s, %s, 1" % (s(S_CNT), s(S_CNT)))
        a.e("s_cmp_lg_u32 %s, 0" % s(S_CNT))
        a.e("s_waitcnt lgkmcnt(0)")
        a.e("s_cbranch_scc1 %s" % lab)
        for i in interleave(mfmas(c, r, 0), reads(c, r, 1, 1)): a.e(i)
        a.e("s_waitcnt lgkmcnt(0)")
        for i in mfmas(c, r, 1): a.e(i)
    else:
        def rd(st): return reads(c, r, st, 0, 0) + reads(c, r, st, 1, 1)
        def mm(st): return mfmas(c, r, st, 0) + mfmas(c, r, st, 1)
        def step(st):
            m = mm(st); fill = rd(1 - st) + addr_update()
            for i in (interleave(m, fill, per=c.rper) if m else fill): a.e(i)
        for i in rd(0) + addr_update(): a.e(i)
        a.e("s_waitcnt lgkmcnt(0)")
        a.e("s_barrier")
        assert c.nst % 2 == 0
        a.e("s_mov_b32 %s, %d" % (s(S_CNT), c.nst // 2 - 1))
        a.raw(".p2align 6")
        a.lab(lab)
        step(0)
        a.e("s_waitcnt lgkmcnt(0)")
        a.e("s_barrier")
        step(1)
        a.e("s_sub_u32 %s, %s, 1" % (s(S_CNT), s(S_CNT)))
        a.e("s_cmp_lg_u32 %s, 0" % s(S_CNT))
        a.e("s_waitcnt lgkmcnt(0)")
        a.e("s_barrier")
        a.e("s_cbranch_scc1 %s" % lab)
        step(0)
        a.e("s_waitcnt lgkmcnt(0)")
        for i in mm(1): a.e(i)
    if c.bend: a.e("s_barrier")
    a.e("s_setprio 0")
    stamp(a, c, 2)

def map_8x4(a):
    a.e("s_and_b32 %s, s2, 1" % s(S_T0))
    a.e("s_lshl_b32 %s, %s, 3" % (s(S_T0), s(S_T0)))
    a.e("s_bfe_u32 %s, s2, 0x30003" % s(S_T1))
    a.e("s_add_u32 %s, %s, %s" % (s(S_MT), s(S_T0), s(S_T1)))
    a.e("s_bfe_u32 %s, s2, 0x20001" % s(S_T0))
    a.e("s_lshl_b32 %s, %s, 2" % (s(S_T0), s(S_T0)))
    a.e("s_lshr_b32 %s, s2, 6" % s(S_T1))
    a.e("s_add_u32 %s, %s, %s" % (s(S_NT), s(S_T0), s(S_T1)))

def map_4x8(a):
    a.e("s_and_b32 %s, s2, 3" % s(S_T0))
    a.e("s_lshl_b32 %s, %s, 2" % (s(S_T0), s(S_T0)))
    a.e("s_bfe_u32 %s, s2, 0x20003" % s(S_T1))
    a.e("s_add_u32 %s, %s, %s" % (s(S_MT), s(S_T0), s(S_T1)))
    a.e("s_bfe_u32 %s, s2, 0x10002" % s(S_T0))
    a.e("s_lshl_b32 %s, %s, 3" % (s(S_T0), s(S_T0)))
    a.e("s_lshr_b32 %s, s2, 5" % s(S_T1))
    a.e("s_add_u32 %s, %s, %s" % (s(S_NT), s(S_T0), s(S_T1)))

def gemm_kernel(a, c, epilogue):
    kernel_header(a, c.name)
    l_end = a.newlab("end"); l_load = a.newlab("loader")
    a.e("s_cmp_ge_u32 s2, 256")
    a.e("s_cbranch_scc1 %s" % l_end)
    load_kernargs(a)
    stamp(a, c, 0)
    a.e("v_lshrrev_b32 v1, 6, v0")
    c.map(a)
    a.e("v_readfirstlane_b32 %s, v1" % s(S_WAVE))
    a.e("s_waitcnt lgkmcnt(0)")
    stamp(a, c, 4)
    mk_srd(a, SRD_X, c.xbuf)
    mk_srd(a, SRD_W, c.wbuf)
    a.e("s_cmp_ge_u32 %s, 4" % s(S_WAVE))
    a.e("s_cbranch_scc1 %s" % l_load)
    r = compute_setup(a, c)
    compute_loop(a, c, r)
    epilogue(a, c, r)
    stamp(a, c, 3)
    write_stamps(a, c)
    a.e("s_endpgm")
    a.lab(l_load)
    a.e("s_sub_u32 %s, %s, 4" % (s(S_WAVE), s(S_WAVE)))
    loader(a, c)
    a.lab(l_end)
    a.e("s_endpgm")
    c.vgprs = max(r.R.hi, 128)
```

```python
class Asm:
    def __init__(self):
        self.L = []
        self.uid = 0
    def e(self, s):
        self.L.append("    " + s)
    def c(self, s):
        self.L.append("    ; " + s)
    def lab(self, s):
        self.L.append(s + ":")
    def raw(self, s):
        self.L.append(s)
    def newlab(self, base):
        self.uid += 1
        return "L_%s_%d" % (base, self.uid)
    def text(self, fix=True):
        L = self.L
        if fix:
            import hazard
            L, n = hazard.fix(L)
            pr = hazard.check_loops(L)
            if pr:
                for p in pr: print("HAZARD across branch:", p)
                raise SystemExit("branch hazards")
        return "\n".join(L) + "\n"

def v(n, c=1):
    return "v%d" % n if c == 1 else "v[%d:%d]" % (n, n + c - 1)
def s(n, c=1):
    return "s%d" % n if c == 1 else "s[%d:%d]" % (n, n + c - 1)

class Regs:
    def __init__(self, start, limit):
        self.p = start; self.limit = limit; self.hi = start
    def get(self, n=1, al=1):
        self.p = (self.p + al - 1) // al * al
        r = self.p; self.p += n
        assert self.p <= self.limit, ("out of regs", self.p, self.limit)
        self.hi = max(self.hi, self.p)
        return r
    def mark(self): return self.p
    def reset(self, m): self.p = m

def interleave(main, fill, start=0, per=1):
    out = []; f = list(fill)
    for i, m in enumerate(main):
        out.append(m)
        if i >= start:
            for _ in range(per):
                if f: out.append(f.pop(0))
    out += f
    return out

def kernel_header(a, name):
    a.raw(".globl %s" % name)
    a.raw(".p2align 8")
    a.raw(".type %s,@function" % name)
    a.lab(name)

def kernel_desc(name, vgpr, sgpr, accum=None):
    if accum is None: accum = (vgpr + 3) // 4 * 4
    return (".p2align 6\n.amdhsa_kernel %s\n  .amdhsa_next_free_vgpr %d\n  .amdhsa_next_free_sgpr %d\n  .amdhsa_accum_offset %d\n"
            "  .amdhsa_group_segment_fixed_size 0\n  .amdhsa_kernarg_size 72\n  .amdhsa_user_sgpr_count 2\n"
            "  .amdhsa_user_sgpr_kernarg_segment_ptr 1\n  .amdhsa_system_sgpr_workgroup_id_x 1\n"
            ".end_amdhsa_kernel\n") % (name, vgpr, sgpr, accum)
```

```python
import re

TRANS = ("v_exp_f32", "v_log_f32", "v_rcp_f32", "v_rsq_f32", "v_sqrt_f32", "v_sin_f32", "v_cos_f32", "v_rcp_iflag_f32")
REG = re.compile(r"^(-?)(abs\()?([vsa])(\d+)\)?$|^(-?)([vsa])\[(\d+):(\d+)\]$")

def regs_of(tok):
    tok = tok.strip()
    tok = tok.lstrip('-')
    if tok.startswith("abs(") or tok.startswith("|"):
        tok = tok.replace("abs(", "").replace(")", "").replace("|", "")
    m = re.match(r"^([vsa])(\d+)$", tok)
    if m: return [(m.group(1), int(m.group(2)))]
    m = re.match(r"^([vsa])\[(\d+):(\d+)\]$", tok)
    if m: return [(m.group(1), i) for i in range(int(m.group(2)), int(m.group(3)) + 1)]
    if tok == "vcc": return [("s", 106), ("s", 107)]
    if tok == "vcc_lo": return [("s", 106)]
    if tok == "vcc_hi": return [("s", 107)]
    if tok == "exec": return [("x", 0)]
    if tok == "m0": return [("m", 0)]
    return []

class I:
    def __init__(self, text):
        self.text = text
        t = text.split(";")[0].strip()
        self.t = t
        p = t.split(None, 1)
        self.op = p[0] if p else ""
        rest = p[1] if len(p) > 1 else ""
        ops = [x.strip() for x in rest.split(",")] if rest else []
        clean = []
        for o in ops:
            clean.append(o.split()[0] if o else o)
        self.ops = clean
        op = self.op
        self.valu = op.startswith("v_") and not op.startswith("v_mfma")
        self.mfma = op.startswith("v_mfma")
        self.vmem = op.startswith(("buffer_", "global_", "flat_"))
        self.ds = op.startswith("ds_")
        self.salu = op.startswith("s_")
        self.dpp = ("dpp" in op) or any(k in t for k in ("row_shr", "row_shl", "row_ror", "quad_perm", "row_bcast", "row_mirror", "row_half_mirror", "wave_"))
        self.perm = op.startswith("v_permlane")
        self.trans = any(op.startswith(x) for x in TRANS)
        self.k = 1
        if op == "s_nop": self.k = int(self.ops[0], 0) + 1
        d = []; u = []
        R = [regs_of(o) for o in clean]
        if op.startswith("v_cmp"):
            d = R[0]; u = sum(R[1:], [])
            if op.startswith("v_cmpx"): d = d + [("x", 0)]
        elif op.startswith(("v_readfirstlane", "v_readlane")):
            d = R[0]; u = sum(R[1:], [])
        elif self.perm and "swap" in op:
            d = R[0] + R[1]; u = R[0] + R[1]
        elif op.startswith(("v_add_co", "v_sub_co", "v_addc_co", "v_subb_co", "v_subrev_co")):
            d = R[0] + R[1]; u = sum(R[2:], [])
        elif op.startswith(("v_fmac", "v_dot2c", "v_pk_fmac")):
            d = R[0]; u = sum(R, [])
        elif self.valu or self.mfma:
            d = R[0] if R else []; u = sum(R[1:], [])
            if op.startswith("v_cndmask") and len(clean) == 3: u += regs_of("vcc")
            if self.dpp: u += R[0]
        elif self.vmem:
            lds = t.endswith(" lds") or " lds " in t
            if "store" in op or ("atomic" in op and " sc0" not in t):
                u = sum(R, [])
            elif lds or op in ("buffer_inv", "buffer_wbl2"):
                u = sum(R, []) + [("m", 0)]
            else:
                d = R[0]; u = sum(R[1:], [])
        elif self.ds:
            if op.startswith(("ds_write", "ds_add", "ds_max", "ds_min")) and "rtn" not in op: u = sum(R, [])
            else: d = R[0]; u = sum(R[1:], [])
        elif self.salu:
            if op.startswith(("s_cmp", "s_cbranch", "s_waitcnt", "s_barrier", "s_nop", "s_branch", "s_setprio", "s_sleep", "s_endpgm")):
                u = sum(R, [])
            else:
                d = R[0] if R else []; u = sum(R[1:], [])
                if "saveexec" in op: d = d + [("x", 0)]
        self.d = set(d); self.u = set(u)
        self.wide_store = self.vmem and "store" in op and ("x3" in op or "x4" in op)
        self.store_data = set(R[0]) if (self.wide_store and op.startswith("buffer")) else (set(R[1]) if self.wide_store and len(R) > 1 else set())
        self.passes = 0
        if self.mfma:
            self.passes = 8 if "32x32" in op else 4

def need(p, c):
    n = 0
    pv = {r for r in p.d if r[0] in "va"}
    ps = {r for r in p.d if r[0] == "s"}
    cu = c.u; cd = c.d
    if p.valu:
        if pv & cu:
            if c.mfma: n = max(n, 2)
            if c.dpp or c.perm: n = max(n, 2)
            if c.op.startswith(("v_readfirstlane", "v_readlane")): n = max(n, 1)
            if p.trans and (c.valu or c.mfma) : n = max(n, 1)
            if p.trans and (c.vmem or c.ds): n = max(n, 1)
        if ps & cu:
            if c.valu or c.mfma: n = max(n, 2)
            if c.op.startswith(("v_readlane", "v_writelane")): n = max(n, 4)
            if c.vmem: n = max(n, 5)
            if c.salu: n = max(n, 1)
        if ("x", 0) in p.d and (c.mfma or c.perm): n = max(n, 4)
        if ("x", 0) in p.d and c.dpp: n = max(n, 5)
    if p.mfma:
        big = 12 if p.passes == 8 else 8
        if c.mfma:
            cC = set(regs_of(c.ops[3])) if len(c.ops) > 3 else set()
            cAB = set(regs_of(c.ops[1])) | set(regs_of(c.ops[2]))
            if pv & cAB: n = max(n, big)
            if pv & cC and cC != pv: n = max(n, 10 if p.passes == 8 else 6)
            if pv & c.d and not (pv & cC): n = max(n, big)
        else:
            if pv & (cu | cd): n = max(n, big)
        pC = set(regs_of(p.ops[3])) if len(p.ops) > 3 else set()
        if c.valu and (pC & cd): n = max(n, 7 if p.passes == 8 else 3)
    if p.salu and ("m", 0) in p.d and ("m", 0) in cu: n = max(n, 1)
    if p.wide_store and (p.store_data & cd) and (c.valu or c.mfma or c.ds or c.vmem): n = max(n, 2)
    return n

LOOK = 14
def fix(lines):
    out = []; hist = []
    added = 0
    for ln in lines:
        st = ln.strip()
        if (not st) or st.startswith((";", ".")) or st.endswith(":"):
            out.append(ln); continue
        c = I(st)
        req = 0; dist = 0
        for p in reversed(hist[-LOOK:]):
            n = need(p, c)
            if n > dist: req = max(req, n - dist)
            dist += p.k
            if dist >= 12: break
        while req > 0:
            k = min(req, 8)
            nop = I("s_nop %d" % (k - 1))
            out.append("    s_nop %d" % (k - 1)); hist.append(nop); req -= k; added += 1
        out.append(ln); hist.append(c)
    return out, added

def check_loops(lines):
    labels = {}
    ins = []
    for ln in lines:
        st = ln.strip()
        if st.endswith(":") and not st.startswith(";"): labels[st[:-1]] = len(ins); continue
        if (not st) or st.startswith((";", ".")): continue
        ins.append(I(st))
    probs = []
    for i, c in enumerate(ins):
        if c.op.startswith(("s_cbranch", "s_branch")) and c.ops and c.ops[0] in labels:
            tgt = labels[c.ops[0]]
            seq = ins[max(0, i - LOOK):i + 1] + ins[tgt:tgt + LOOK]
            base = len(ins[max(0, i - LOOK):i + 1])
            for j in range(base, len(seq)):
                dist = 0
                for p in reversed(seq[:j]):
                    idx = seq.index(p)
                    n = need(p, seq[j])
                    if n > dist and idx < base: probs.append((p.t, seq[j].t, n, dist))
                    dist += p.k
                    if dist >= 12: break
    return probs
```

```python
import sys; sys.path.insert(0, 'gen')
from core import *

MB = 1 << 20
WS_X1 = 0; WS_X2 = 4 * MB; WS_X3 = 8 * MB; WS_PQ = 12 * MB; WS_O = 16 * MB; WS_H = 20 * MB
WS_KVP = 36 * MB; WS_ST = 40 * MB; WS_CS = 42 * MB; WS_STAMP = 48 * MB
ACT = 2048 * 2048
HB = 2048 * 7168
KVP_B = 16 * 32 * 1056 * 4
ST_B = 2048 * 128
CS_B = 2 * 6656 * 4
def stbuf(i): return ('ws', WS_ST + i * ST_B, ST_B)
LOG2E = 0x3fb8aa3b; NLOG2E = 0xbfb8aa3b; EPS6 = 0x358637bd; EPS5 = 0x3727c5ac

def pk(op, d, srcs, bc=(), neg=()):
    ops = []; lo = []; hi = []
    for i, x in enumerate(srcs):
        if isinstance(x, tuple):
            kind, n = x
            base = n & ~1
            ops.append("%s[%d:%d]" % (kind, base, base + 1)); lo.append(n & 1); hi.append(n & 1)
        else:
            ops.append(x); lo.append(0); hi.append(1)
    t = "%s %s, %s" % (op, v(d, 2), ", ".join(ops))
    if any(lo): t += " op_sel:[%s]" % ",".join(map(str, lo))
    if not all(hi): t += " op_sel_hi:[%s]" % ",".join(map(str, hi))
    if neg:
        m = [1 if i in neg else 0 for i in range(len(srcs))]
        t += " neg_lo:[%s] neg_hi:[%s]" % (",".join(map(str, m)), ",".join(map(str, m)))
    return t

def p0_kernel(a, name):
    kernel_header(a, name)
    l_end = a.newlab("end"); l_nocs = a.newlab("nocs")
    a.e("s_cmp_ge_u32 s2, 256"); a.e("s_cbranch_scc1 %s" % l_end)
    load_kernargs(a)
    a.e("v_lshrrev_b32 v1, 6, v0")
    a.e("v_and_b32 v2, 63, v0")
    a.e("v_readfirstlane_b32 %s, v1" % s(S_WAVE))
    a.e("s_waitcnt lgkmcnt(0)")
    mk_srd(a, SRD_X, ('x', 0, ACT))
    mk_srd(a, SRD_S, stbuf(0))
    mk_srd(a, SRD_O, ('ws', WS_CS, CS_B))
    a.e("s_lshl_b32 %s, s2, 3" % s(S_T0))
    a.e("s_lshl_b32 %s, %s, 1" % (s(S_T1), s(S_WAVE)))
    a.e("s_add_u32 %s, %s, %s" % (s(S_T4), s(S_T0), s(S_T1)))
    a.e("s_lshl_b32 %s, %s, 11" % (s(S_T0), s(S_T4)))
    a.e("v_lshlrev_b32 v3, 5, v2")
    for rr in range(2):
        for i in range(2):
            a.e("buffer_load_dwordx4 %s, v3, %s, %s offen offset:%d" % (v(8 + 8 * rr + 4 * i, 4), s(SRD_X, 4), s(S_T0), 2048 * rr + 16 * i))
    a.e("s_cmp_ge_u32 s2, 208"); a.e("s_cbranch_scc1 %s" % l_nocs)
    a.e("s_lshr_b32 %s, s2, 1" % s(S_T0))
    a.e("s_and_b32 %s, s2, 1" % s(S_T5))
    a.e("s_cmp_lt_u32 %s, 48" % s(S_T0))
    a.e("s_cselect_b32 %s, %s, %s" % (s(SRD_W), s(ptr('wqkv')), s(ptr('w1'))))
    a.e("s_cselect_b32 %s, %s, %s" % (s(SRD_W + 1), s(ptr('wqkv') + 1), s(ptr('w1') + 1)))
    a.e("s_mov_b32 %s, %d" % (s(S_T1), 1024 * 6144)); a.e("s_mov_b32 %s, %d" % (s(S_T2), 1024 * 7168))
    a.e("s_cselect_b32 %s, %s, %s" % (s(SRD_W + 2), s(S_T1), s(S_T2)))
    a.e("s_mov_b32 %s, 0x20000" % s(SRD_W + 3))
    a.e("s_mov_b32 %s, 6144" % s(S_T1)); a.e("s_mov_b32 %s, 7168" % s(S_T2))
    a.e("s_cselect_b32 %s, %s, %s" % (s(S_T3), s(S_T1), s(S_T2)))
    a.e("s_sub_u32 %s, %s, 48" % (s(S_T1), s(S_T0)))
    a.e("s_cmp_lt_u32 %s, 48" % s(S_T0))
    a.e("s_cselect_b32 %s, %s, %s" % (s(S_T1), s(S_T0), s(S_T1)))
    a.e("s_lshl_b32 %s, %s, 7" % (s(S_T1), s(S_T1)))
    a.e("s_lshl_b32 %s, %s, 9" % (s(S_T2), s(S_T5)))
    a.e("s_mul_i32 %s, %s, %s" % (s(S_T2), s(S_T2), s(S_T3)))
    a.e("s_add_u32 %s, %s, %s" % (s(S_T1), s(S_T1), s(S_T2)))
    a.e("v_lshrrev_b32 v4, 3, v0")
    a.e("v_mul_lo_u32 v4, v4, %s" % s(S_T3))
    a.e("v_and_b32 v5, 7, v0")
    a.e("v_lshl_add_u32 v4, v5, 4, v4")
    a.e("s_lshl_b32 %s, %s, 5" % (s(S_T2), s(S_T3)))
    for p in range(16):
        a.e("buffer_load_dwordx4 %s, v4, %s, %s offen" % (v(32 + 4 * p, 4), s(SRD_W, 4), s(S_T1)))
        a.e("s_add_u32 %s, %s, %s" % (s(S_T1), s(S_T1), s(S_T2)))
    for i in range(8): a.e("v_mov_b32 %s, 0" % v(24 + i))
    a.e("v_mov_b32 v6, 0xffff0000")
    for p in range(16):
        a.e("s_waitcnt vmcnt(%d)" % (15 - p))
        for i in range(4):
            a.e("v_lshlrev_b32 v96, 16, %s" % v(32 + 4 * p + i))
            a.e("v_and_b32 v97, v6, %s" % v(32 + 4 * p + i))
            a.e(pk("v_pk_add_f32", 24 + 2 * i, [v(24 + 2 * i, 2), v(96, 2)]))
    for i in range(8):
        a.e("v_add_f32_dpp %s, %s, %s row_ror:8 row_mask:0xf bank_mask:0xf" % (v(24 + i), v(24 + i), v(24 + i)))
    for sw in ("v_permlane16_swap_b32", "v_permlane32_swap_b32"):
        for i in range(8): a.e("v_mov_b32 %s, %s" % (v(98 + i), v(24 + i)))
        for i in range(8): a.e("%s %s, %s" % (sw, v(98 + i), v(24 + i)))
        for i in range(8): a.e("v_add_f32 %s, %s, %s" % (v(24 + i), v(24 + i), v(98 + i)))
    a.e("v_and_b32 v5, 7, v2")
    a.e("v_lshlrev_b32 v5, 5, v5")
    a.e("s_lshl_b32 %s, %s, 8" % (s(S_T1), s(S_WAVE)))
    a.e("v_add_u32 v5, %s, v5" % s(S_T1))
    a.e("ds_write_b128 v5, %s" % v(24, 4))
    a.e("ds_write_b128 v5, %s offset:16" % v(28, 4))
    a.e("s_waitcnt lgkmcnt(0)")
    a.e("s_barrier")
    a.e("v_lshlrev_b32 v5, 2, v2")
    for w in range(4): a.e("ds_read_b32 %s, v5 offset:%d" % (v(98 + w), 256 * w))
    a.e("s_waitcnt lgkmcnt(0)")
    a.e("v_add_f32 v98, v98, v99"); a.e("v_add_f32 v100, v100, v101"); a.e("v_add_f32 v98, v98, v100")
    a.e("s_mul_i32 %s, %s, %d" % (s(S_T1), s(S_T5), 6656 * 4))
    a.e("s_lshl_b32 %s, %s, 8" % (s(S_T2), s(S_T0)))
    a.e("s_add_u32 %s, %s, %s" % (s(S_T1), s(S_T1), s(S_T2)))
    l_skip = a.newlab("skip")
    a.e("s_cmp_lg_u32 %s, 0" % s(S_WAVE)); a.e("s_cbranch_scc1 %s" % l_skip)
    a.e("buffer_store_dword v98, v5, %s, %s offen" % (s(SRD_O, 4), s(S_T1)))
    a.lab(l_skip)
    a.lab(l_nocs)
    a.e("s_waitcnt vmcnt(0)")
    a.e("v_mov_b32 v7, 0x3f803f80")
    for rr in range(2):
        a.e("v_mov_b32 %s, 0" % v(104 + 2 * rr)); a.e("v_mov_b32 %s, 0" % v(105 + 2 * rr))
    for i in range(8):
        for rr in range(2):
            a.e("v_dot2c_f32_bf16 %s, %s, v7" % (v(104 + 2 * rr), v(8 + 8 * rr + i)))
            a.e("v_dot2c_f32_bf16 %s, %s, %s" % (v(105 + 2 * rr), v(8 + 8 * rr + i), v(8 + 8 * rr + i)))
    for qp in ("[1,0,3,2]", "[2,3,0,1]"):
        for i in range(4):
            a.e("v_add_f32_dpp %s, %s, %s quad_perm:%s row_mask:0xf bank_mask:0xf" % (v(104 + i), v(104 + i), v(104 + i), qp))
    a.e("v_lshrrev_b32 v5, 2, v2")
    a.e("v_lshlrev_b32 v5, 3, v5")
    a.e("s_lshl_b32 %s, %s, 7" % (s(S_T0), s(S_T4)))
    for rr in range(2):
        a.e("buffer_store_dwordx2 %s, v5, %s, %s offen offset:%d" % (v(104 + 2 * rr, 2), s(SRD_S, 4), s(S_T0), 128 * rr))
    a.lab(l_end)
    a.e("s_endpgm")
    return kernel_desc(name, 112, 96)

A_OFF = 0; B_OFF = 512; CS_OFF = 1024; KVX_OFF = 2048

def ln_pre(a, c, r):
    mk_srd(a, SRD_S, c.stbuf)
    mk_srd(a, SRD_R, ('ws', WS_CS, CS_B))
    f = r.free0 + 4
    r.ln_st = f; r.ln_cs = f + 16; r.ln_a = f + 18
    t = r.ln_a
    a.e("v_and_b32 %s, 0xff, v0" % v(t))
    a.e("v_lshrrev_b32 %s, 1, %s" % (v(t + 1), v(t)))
    a.e("v_lshlrev_b32 %s, 7, %s" % (v(t + 1), v(t + 1)))
    a.e("v_and_b32 %s, 1, %s" % (v(t + 2), v(t)))
    a.e("v_lshl_add_u32 %s, %s, 6, %s" % (v(t + 1), v(t + 2), v(t + 1)))
    a.e("s_lshl_b32 %s, %s, 14" % (s(S_T0), s(S_MT)))
    for i in range(4):
        a.e("buffer_load_dwordx4 %s, %s, %s, %s offen offset:%d" % (v(r.ln_st + 4 * i, 4), v(t + 1), s(SRD_S, 4), s(S_T0), 16 * i))
    if c.nhalf == 0:
        a.e("v_lshrrev_b32 %s, 6, %s" % (v(t + 1), v(t)))
        a.e("v_lshlrev_b32 %s, 10, %s" % (v(t + 1), v(t + 1)))
        a.e("v_and_b32 %s, 63, %s" % (v(t + 2), v(t)))
        a.e("v_add_u32 %s, %s, %s" % (v(t + 1), v(t + 1), v(t + 2)))
        a.e("s_lshl_b32 %s, %s, 6" % (s(S_T0), s(S_NT)))
        a.e("v_add_u32 %s, %s, %s" % (v(t + 1), s(S_T0), v(t + 1)))
        a.e("v_lshlrev_b32 %s, 2, %s" % (v(t + 1), v(t + 1)))
    else:
        wcol_base(a, c, S_T0, S_HALFOFF)
        a.e("s_add_u32 %s, %s, %s" % (s(S_T1), s(S_T0), s(S_HALFOFF)))
        a.e("s_sub_u32 %s, %s, 384" % (s(S_T1), s(S_T1)))
        a.e("v_mov_b32 %s, %s" % (v(t + 1), s(S_T0)))
        a.e("v_mov_b32 %s, %s" % (v(t + 2), s(S_T1)))
        a.e("v_cmp_le_u32 vcc, 192, %s" % v(t))
        a.e("v_cndmask_b32 %s, %s, %s, vcc" % (v(t + 1), v(t + 1), v(t + 2)))
        a.e("v_lshl_add_u32 %s, %s, 1, %s" % (v(t + 1), v(t), v(t + 1)))
        a.e("v_lshlrev_b32 %s, 1, %s" % (v(t + 1), v(t + 1)))
        a.e("v_add_u32 %s, %d, %s" % (v(t + 1), 3072 * 4, v(t + 1)))
    a.e("buffer_load_dword %s, %s, %s, 0 offen" % (v(r.ln_cs), v(t + 1), s(SRD_R, 4)))
    a.e("s_mov_b32 %s, %d" % (s(S_T0), 6656 * 4))
    a.e("buffer_load_dword %s, %s, %s, %s offen" % (v(r.ln_cs + 1), v(t + 1), s(SRD_R, 4), s(S_T0)))

def ln_pre3(a, c, r):
    t = r.ln_a; st = r.ln_st
    a.e("s_waitcnt vmcnt(0)")
    for i in range(1, 8):
        a.e(pk("v_pk_add_f32", st, [v(st, 2), v(st + 2 * i, 2)]))
    for i in range(2):
        a.e("v_add_f32_dpp %s, %s, %s quad_perm:[1,0,3,2] row_mask:0xf bank_mask:0xf" % (v(st + i), v(st + i), v(st + i)))
    a.e("v_mul_f32 %s, 0x3a800000, %s" % (v(st), v(st)))
    a.e("v_mul_f32 %s, 0x3a800000, %s" % (v(st + 1), v(st + 1)))
    a.e("v_fma_f32 %s, -%s, %s, %s" % (v(st + 1), v(st), v(st), v(st + 1)))
    a.e("v_max_f32 %s, 0, %s" % (v(st + 1), v(st + 1)))
    a.e("v_add_f32 %s, 0x%x, %s" % (v(st + 1), EPS5, v(st + 1)))
    a.e("v_rsq_f32 %s, %s" % (v(st + 1), v(st + 1)))
    a.e("v_mul_f32 %s, -%s, %s" % (v(st), v(st), v(st + 1)) if False else "v_mul_f32 %s, %s, %s" % (v(st), v(st), v(st + 1)))
    a.e("v_sub_f32 %s, 0, %s" % (v(st), v(st)))
    a.e("v_lshrrev_b32 %s, 1, %s" % (v(t + 1), v(t)))
    a.e("v_lshlrev_b32 %s, 2, %s" % (v(t + 1), v(t + 1)))
    a.e("v_add_u32 %s, %d, %s" % (v(t + 1), c.XTRA, v(t + 1)))
    a.e("ds_write_b32 %s, %s offset:%d" % (v(t + 1), v(st + 1), A_OFF))
    a.e("ds_write_b32 %s, %s offset:%d" % (v(t + 1), v(st), B_OFF))
    a.e("v_add_f32 %s, %s, %s" % (v(r.ln_cs), v(r.ln_cs), v(r.ln_cs + 1)))
    a.e("v_lshlrev_b32 %s, 2, %s" % (v(t + 1), v(t)))
    a.e("v_add_u32 %s, %d, %s" % (v(t + 1), c.XTRA, v(t + 1)))
    a.e("ds_write_b32 %s, %s offset:%d" % (v(t + 1), v(r.ln_cs), CS_OFF))

def lane_col_off(a, vd, vl, vt):
    a.e("v_bfe_u32 %s, %s, 4, 1" % (v(vd), v(vl)))
    a.e("v_lshlrev_b32 %s, 5, %s" % (v(vd), v(vd)))
    a.e("v_bfe_u32 %s, %s, 5, 1" % (v(vt), v(vl)))
    a.e("v_lshl_add_u32 %s, %s, 4, %s" % (v(vd), v(vt), v(vd)))

def phi_pairs(a, acc, n, av, bcv, tmp, c_log2e, c_eps):
    for p in range(n // 2):
        x = acc + 2 * p
        a.e(pk("v_pk_fma_f32", x, [av(p), v(x, 2), bcv(p)]))
    for p in range(n // 2):
        x = acc + 2 * p
        a.e(pk("v_pk_mul_f32", tmp + 2 * p, [v(x, 2), ('s', c_log2e)]))
    for i in range(n): a.e("v_exp_f32 %s, %s clamp" % (v(tmp + i), v(tmp + i)))
    for i in range(n): a.e("v_max_f32 %s, %s, %s" % (v(acc + i), s(c_eps), v(acc + i)))
    for p in range(n // 2):
        x = acc + 2 * p
        a.e(pk("v_pk_add_f32", x, [v(x, 2), v(tmp + 2 * p, 2)]))

def qkv_epilogue(a, c, r):
    R = Regs(r.free0, 256)
    vl, vt, vt2 = r.vl, r.vt, r.vt2
    C_L = S_C0; C_E = S_C0 + 2
    a.e("s_mov_b32 %s, 0x%x" % (s(C_L), LOG2E)); a.e("s_mov_b32 %s, 0x%x" % (s(C_E), EPS6))
    def acc(j, tt): return r.acc + (j * c.TM + tt) * 4
    aN = R.get(16, 4); bN = R.get(16, 4); csN = R.get(4, 2)
    va = R.get(); vb = R.get()
    a.e("v_lshrrev_b32 %s, 4, %s" % (v(va), v(vl)))
    a.e("v_lshlrev_b32 %s, 4, %s" % (v(va), v(va)))
    a.e("s_lshl_b32 %s, %s, 8" % (s(S_T0), s(S_WM)))
    a.e("s_add_u32 %s, %s, %d" % (s(S_T0), s(S_T0), c.XTRA))
    a.e("v_add_u32 %s, %s, %s" % (v(va), s(S_T0), v(va)))
    for tt in range(4):
        a.e("ds_read_b128 %s, %s offset:%d" % (v(aN + 4 * tt, 4), v(va), A_OFF + 64 * tt))
        a.e("ds_read_b128 %s, %s offset:%d" % (v(bN + 4 * tt, 4), v(va), B_OFF + 64 * tt))
    a.e("v_and_b32 %s, 15, %s" % (v(vb), v(vl)))
    a.e("v_lshlrev_b32 %s, 2, %s" % (v(vb), v(vb)))
    a.e("s_lshl_b32 %s, %s, 7" % (s(S_T0), s(S_WN)))
    a.e("s_add_u32 %s, %s, %d" % (s(S_T0), s(S_T0), c.XTRA))
    a.e("v_add_u32 %s, %s, %s" % (v(vb), s(S_T0), v(vb)))
    for j in range(2, 6):
        a.e("ds_read_b32 %s, %s offset:%d" % (v(csN + j - 2), v(vb), CS_OFF + (j >> 1) * 256 + (j & 1) * 64))
    tmp = R.get(4, 4); bc = R.get(4, 4)
    kf = R.get(16, 4); vf = R.get(16, 4)
    a.e("s_waitcnt lgkmcnt(0)")
    for jj in range(2):
        j = 4 + jj
        for tt in range(4):
            x = acc(j, tt)
            for p in range(2):
                a.e(pk("v_pk_mul_f32", bc + 2 * p, [v(bN + 4 * tt + 2 * p, 2), ('v', csN + 2 + jj)]))
            for p in range(2):
                a.e(pk("v_pk_fma_f32", x + 2 * p, [v(aN + 4 * tt + 2 * p, 2), v(x + 2 * p, 2), v(bc + 2 * p, 2)]))
            d = vf + 8 * jj + 4 * (tt >> 1) + 2 * (tt & 1)
            for p in range(2):
                a.e("v_cvt_pk_bf16_f32 %s, %s, %s" % (v(d + p), v(x + 2 * p), v(x + 2 * p + 1)))
    for jj in range(2):
        j = 2 + jj
        for tt in range(4):
            x = acc(j, tt)
            for p in range(2):
                a.e(pk("v_pk_fma_f32", bc + 2 * p, [v(bN + 4 * tt + 2 * p, 2), ('v', csN + jj), ('s', C_E)]))
            phi_pairs(a, x, 4, lambda p: v(aN + 4 * tt + 2 * p, 2), lambda p: v(bc + 2 * p, 2), tmp, C_L, C_E)
            d = kf + 8 * jj + 4 * (tt >> 1) + 2 * (tt & 1)
            for p in range(2):
                a.e("v_cvt_pk_bf16_f32 %s, %s, %s" % (v(d + p), v(x + 2 * p), v(x + 2 * p + 1)))
    ones = R.get(4, 4)
    for i in range(4): a.e("v_mov_b32 %s, 0x3f803f80" % v(ones + i))
    KV = acc(2, 0)
    def kvt(dt, et): return KV + (dt * 3 + et) * 4
    for p in range(2):
        for dt in range(2):
            for et in range(3):
                b = v(vf + 8 * et + 4 * p, 4) if et < 2 else v(ones, 4)
                cin = "0" if p == 0 else v(kvt(dt, et), 4)
                a.e("v_mfma_f32_16x16x32_bf16 %s, %s, %s, %s" % (v(kvt(dt, et), 4), v(kf + 8 * dt + 4 * p, 4), b, cin))
    l_w1 = a.newlab("wm1"); l_q = a.newlab("q")
    vx = R.get()
    a.e("v_lshlrev_b32 %s, 4, %s" % (v(vx), v(vl)))
    a.e("s_mul_i32 %s, %s, 6144" % (s(S_T0), s(S_WN)))
    a.e("s_add_u32 %s, %s, %d" % (s(S_T0), s(S_T0), c.XTRA + KVX_OFF))
    a.e("v_add_u32 %s, %s, %s" % (v(vx), s(S_T0), v(vx)))
    a.e("s_cmp_eq_u32 %s, 0" % s(S_WM))
    a.e("s_cbranch_scc1 %s" % l_w1)
    for i in range(6): a.e("ds_write_b128 %s, %s offset:%d" % (v(vx), v(KV + 4 * i, 4), 1024 * i))
    a.e("s_waitcnt lgkmcnt(0)")
    a.lab(l_w1)
    a.e("s_barrier")
    a.e("s_cmp_eq_u32 %s, 0" % s(S_WM))
    a.e("s_cbranch_scc0 %s" % l_q)
    ex = R.get(24, 4)
    for i in range(6): a.e("ds_read_b128 %s, %s offset:%d" % (v(ex + 4 * i, 4), v(vx), 1024 * i))
    mk_srd(a, SRD_O, ('ws', WS_KVP, KVP_B))
    a.e("s_lshl_b32 %s, %s, 5" % (s(S_T0), s(S_MT)))
    a.e("s_lshl_b32 %s, %s, 1" % (s(S_T1), s(S_NT)))
    a.e("s_add_u32 %s, %s, %s" % (s(S_T0), s(S_T0), s(S_T1)))
    a.e("s_add_u32 %s, %s, %s" % (s(S_T0), s(S_T0), s(S_WN)))
    a.e("s_mul_i32 %s, %s, %d" % (s(S_T0), s(S_T0), 1056 * 4))
    a.e("v_and_b32 %s, 15, %s" % (v(vt), v(vl)))
    a.e("v_lshlrev_b32 %s, 7, %s" % (v(vt), v(vt)))
    a.e("v_lshrrev_b32 %s, 4, %s" % (v(vt2), v(vl)))
    a.e("v_lshl_add_u32 %s, %s, 4, %s" % (v(vt), v(vt2), v(vt)))
    a.e("s_waitcnt lgkmcnt(0)")
    for i in range(12):
        a.e(pk("v_pk_add_f32", KV + 2 * i, [v(KV + 2 * i, 2), v(ex + 2 * i, 2)]))
    for dt in range(2):
        for et in range(2):
            a.e("buffer_store_dwordx4 %s, %s, %s, %s offen offset:%d" % (v(kvt(dt, et), 4), v(vt), s(SRD_O, 4), s(S_T0), et * 2048 + dt * 64))
    a.e("v_lshlrev_b32 %s, 4, %s" % (v(vt2), v(vt2)))
    a.e("v_add_u32 %s, 4096, %s" % (v(vt2), v(vt2)))
    a.e("s_mov_b32 exec_lo, 0x00010001"); a.e("s_mov_b32 exec_hi, 0x00010001")
    for dt in range(2):
        a.e("buffer_store_dwordx4 %s, %s, %s, %s offen offset:%d" % (v(kvt(dt, 2), 4), v(vt2), s(SRD_O, 4), s(S_T0), dt * 64))
    a.e("s_mov_b64 exec, -1")
    a.lab(l_q)
    R2 = Regs(r.free0, 256)
    aT = R2.get(4); bT = R2.get(4); csT = R2.get(8, 4); bc = R2.get(4, 4); tmp = R2.get(4, 4); pq = R2.get(16, 4); va = R2.get(); vo = R2.get(); vb = R2.get()
    a.e("v_and_b32 %s, 15, %s" % (v(va), v(vl)))
    a.e("v_lshlrev_b32 %s, 2, %s" % (v(va), v(va)))
    a.e("s_lshl_b32 %s, %s, 8" % (s(S_T0), s(S_WM)))
    a.e("s_add_u32 %s, %s, %d" % (s(S_T0), s(S_T0), c.XTRA))
    a.e("v_add_u32 %s, %s, %s" % (v(va), s(S_T0), v(va)))
    for tt in range(4):
        a.e("ds_read_b32 %s, %s offset:%d" % (v(aT + tt), v(va), A_OFF + 64 * tt))
        a.e("ds_read_b32 %s, %s offset:%d" % (v(bT + tt), v(va), B_OFF + 64 * tt))
    a.e("v_lshrrev_b32 %s, 4, %s" % (v(vb), v(vl)))
    a.e("v_lshlrev_b32 %s, 4, %s" % (v(vb), v(vb)))
    a.e("s_lshl_b32 %s, %s, 7" % (s(S_T0), s(S_WN)))
    a.e("s_add_u32 %s, %s, %d" % (s(S_T0), s(S_T0), c.XTRA))
    a.e("v_add_u32 %s, %s, %s" % (v(vb), s(S_T0), v(vb)))
    for j in range(2):
        a.e("ds_read_b128 %s, %s offset:%d" % (v(csT + 4 * j, 4), v(vb), CS_OFF + 64 * j))
    mk_srd(a, SRD_O, c.pqbuf)
    lane_col_off(a, vo, vl, vt)
    a.e("v_and_b32 %s, 15, %s" % (v(vt), v(vl)))
    a.e("v_lshl_add_u32 %s, %s, 11, %s" % (v(vo), v(vt), v(vo)))
    a.e("s_lshl_b32 %s, %s, 7" % (s(S_T0), s(S_MT)))
    a.e("s_lshl_b32 %s, %s, 6" % (s(S_T1), s(S_WM)))
    a.e("s_add_u32 %s, %s, %s" % (s(S_T0), s(S_T0), s(S_T1)))
    a.e("s_lshl_b32 %s, %s, 11" % (s(S_T0), s(S_T0)))
    a.e("s_lshl_b32 %s, %s, 7" % (s(S_T1), s(S_NT)))
    a.e("s_add_u32 %s, %s, %s" % (s(S_T0), s(S_T0), s(S_T1)))
    a.e("s_lshl_b32 %s, %s, 6" % (s(S_T1), s(S_WN)))
    a.e("s_add_u32 %s, %s, %s" % (s(S_T0), s(S_T0), s(S_T1)))
    a.e("s_waitcnt lgkmcnt(0)")
    for tt in range(4):
        for j in range(2):
            x = acc(j, tt)
            for p in range(2):
                a.e(pk("v_pk_fma_f32", bc + 2 * p, [v(csT + 4 * j + 2 * p, 2), ('v', bT + tt), ('s', C_E)]))
            phi_pairs(a, x, 4, lambda p: ('v', aT + tt), lambda p: v(bc + 2 * p, 2), tmp, C_L, C_E)
            for p in range(2):
                a.e("v_cvt_pk_bf16_f32 %s, %s, %s" % (v(pq + 4 * tt + 2 * j + p), v(x + 2 * p), v(x + 2 * p + 1)))
        for p in range(2):
            a.e("v_permlane16_swap_b32 %s, %s" % (v(pq + 4 * tt + p), v(pq + 4 * tt + 2 + p)))
        a.e("s_add_u32 %s, %s, %d" % (s(S_T1), s(S_T0), tt * 16 * 2048))
        a.e("buffer_store_dwordx4 %s, %s, %s, %s offen" % (v(pq + 4 * tt, 4), v(vo), s(SRD_O, 4), s(S_T1)))

def apply_kernel(a, name, pqbuf, obuf):
    kernel_header(a, name)
    l_end = a.newlab("end")
    a.e("s_cmp_ge_u32 s2, 256"); a.e("s_cbranch_scc1 %s" % l_end)
    load_kernargs(a)
    a.e("v_lshrrev_b32 v1, 6, v0")
    a.e("v_and_b32 v2, 63, v0")
    a.e("s_and_b32 %s, s2, 31" % s(S_NT))
    a.e("s_lshr_b32 %s, s2, 5" % s(S_MT))
    a.e("v_readfirstlane_b32 %s, v1" % s(S_WAVE))
    a.e("s_waitcnt lgkmcnt(0)")
    mk_srd(a, SRD_S, ('ws', WS_KVP, KVP_B))
    mk_srd(a, SRD_X, pqbuf)
    mk_srd(a, SRD_O, obuf)
    a.e("v_and_b32 v3, 15, v2")
    a.e("v_lshrrev_b32 v4, 4, v2")
    a.e("v_lshlrev_b32 v5, 11, v3")
    a.e("v_lshl_add_u32 v5, v4, 4, v5")
    a.e("s_lshl_b32 %s, %s, 8" % (s(S_T0), s(S_MT)))
    a.e("s_lshl_b32 %s, %s, 6" % (s(S_T1), s(S_WAVE)))
    a.e("s_add_u32 %s, %s, %s" % (s(S_T0), s(S_T0), s(S_T1)))
    a.e("s_lshl_b32 %s, %s, 11" % (s(S_T0), s(S_T0)))
    a.e("s_lshl_b32 %s, %s, 6" % (s(S_T1), s(S_NT)))
    a.e("s_add_u32 %s, %s, %s" % (s(S_T4), s(S_T0), s(S_T1)))
    a.e("v_lshlrev_b32 v6, 7, v3")
    a.e("v_lshl_add_u32 v6, v4, 5, v6")
    a.e("v_lshlrev_b32 v7, 5, v4")
    a.e("v_add_u32 v7, 4096, v7")
    a.e("s_lshl_b32 %s, %s, 7" % (s(S_T0), s(S_WAVE)))
    a.e("s_add_u32 %s, %s, %s" % (s(S_T0), s(S_T0), s(S_NT)))
    a.e("s_mul_i32 %s, %s, %d" % (s(S_T0), s(S_T0), 1056 * 4))
    P = 32
    for m in range(4):
        for et in range(2):
            for i in range(2):
                a.e("buffer_load_dwordx4 %s, v6, %s, %s offen offset:%d" % (v(P + 24 * m + 8 * et + 4 * i, 4), s(SRD_S, 4), s(S_T0), et * 2048 + 16 * i))
        for i in range(2):
            a.e("buffer_load_dwordx4 %s, v7, %s, %s offen offset:%d" % (v(P + 24 * m + 16 + 4 * i, 4), s(SRD_S, 4), s(S_T0), 16 * i))
        if m < 3: a.e("s_add_u32 %s, %s, %d" % (s(S_T0), s(S_T0), 32 * 1056 * 4))
    Q = 8
    for tt in range(4):
        a.e("s_add_u32 %s, %s, %d" % (s(S_T1), s(S_T4), tt * 16 * 2048))
        a.e("buffer_load_dwordx4 %s, v5, %s, %s offen" % (v(Q + 4 * tt, 4), s(SRD_X, 4), s(S_T1)))
    a.e("s_waitcnt vmcnt(4)")
    for m in range(1, 4):
        for i in range(12):
            a.e(pk("v_pk_add_f32", P + 2 * i, [v(P + 2 * i, 2), v(P + 24 * m + 2 * i, 2)]))
    a.e("v_lshlrev_b32 v24, 4, v2")
    a.e("s_mul_i32 %s, %s, 6144" % (s(S_T0), s(S_WAVE)))
    a.e("v_add_u32 v25, %s, v24" % s(S_T0))
    for i in range(6): a.e("ds_write_b128 v25, %s offset:%d" % (v(P + 4 * i, 4), 1024 * i))
    a.e("s_waitcnt lgkmcnt(0)")
    a.e("s_barrier")
    for w in range(4):
        for i in range(6): a.e("ds_read_b128 %s, v24 offset:%d" % (v(P + 24 * w + 4 * i, 4), 6144 * w + 1024 * i))
        if w >= 1: a.e("s_waitcnt lgkmcnt(6)")
    a.e("s_waitcnt lgkmcnt(0)")
    for m in range(1, 4):
        for i in range(12):
            a.e(pk("v_pk_add_f32", P + 2 * i, [v(P + 2 * i, 2), v(P + 24 * m + 2 * i, 2)]))
    F = 128
    for t in range(3):
        for i in range(4):
            a.e("v_cvt_pk_bf16_f32 %s, %s, %s" % (v(F + 4 * t + i), v(P + 8 * t + 2 * i), v(P + 8 * t + 2 * i + 1)))
    a.e("s_waitcnt vmcnt(0)")
    N = 144
    for tt in range(4):
        for t in range(3):
            a.e("v_mfma_f32_16x16x32_bf16 %s, %s, %s, 0" % (v(N + 12 * tt + 4 * t, 4), v(F + 4 * t, 4), v(Q + 4 * tt, 4)))
    lane_col_off(a, 26, 2, 27)
    a.e("v_lshl_add_u32 v26, v3, 11, v26")
    O = 200
    for tt in range(4):
        n = N + 12 * tt
        a.e("v_add_f32 %s, 0x%x, %s" % (v(n + 8), EPS6, v(n + 8)))
        a.e("v_rcp_f32 %s, %s" % (v(n + 8), v(n + 8)))
        for p in range(4):
            a.e(pk("v_pk_mul_f32", n + 2 * p, [v(n + 2 * p, 2), ('v', n + 8)]))
        for p in range(4):
            a.e("v_cvt_pk_bf16_f32 %s, %s, %s" % (v(O + 4 * tt + p), v(n + 2 * p), v(n + 2 * p + 1)))
        for p in range(2):
            a.e("v_permlane16_swap_b32 %s, %s" % (v(O + 4 * tt + p), v(O + 4 * tt + 2 + p)))
        a.e("s_add_u32 %s, %s, %d" % (s(S_T1), s(S_T4), tt * 16 * 2048))
        a.e("buffer_store_dwordx4 %s, v26, %s, %s offen" % (v(O + 4 * tt, 4), s(SRD_O, 4), s(S_T1)))
    a.lab(l_end)
    a.e("s_endpgm")
    return kernel_desc(name, 216, 96)

def resid_epilogue(a, c, r):
    R = Regs(r.free0, 256)
    vl, vt, vt2 = r.vl, r.vt, r.vt2
    def acc(j, tt): return r.acc + (j * c.TM + tt) * 4
    rs = R.get(16, 4); va = R.get(4); vo = R.get(); vs = R.get(); S = R.get(4, 2); t2 = R.get(4, 2); u = R.get(4, 4); pkd = R.get(16, 4); msk = R.get()
    a.e("v_and_b32 %s, 15, %s" % (v(vt), v(vl)))
    a.e("v_lshrrev_b32 %s, 1, %s" % (v(vt2), v(vt)))
    a.e("v_lshlrev_b32 %s, 7, %s" % (v(vt), v(vt)))
    a.e("s_lshl_b32 %s, %s, 12" % (s(S_T0), s(S_WM)))
    a.e("s_add_u32 %s, %s, %d" % (s(S_T0), s(S_T0), c.XTRA))
    a.e("v_add_u32 %s, %s, %s" % (v(vt), s(S_T0), v(vt)))
    a.e("v_bfe_u32 %s, %s, 4, 1" % (v(vo), v(vl)))
    a.e("v_lshl_add_u32 %s, %s, 3, %s" % (v(vt), v(vo), v(vt)))
    a.e("v_bfe_u32 %s, %s, 5, 1" % (v(vo), v(vl)))
    for t in range(4):
        a.e("v_add_u32 %s, %d, %s" % (v(vs), 2 * t, v(vo)))
        a.e("v_xor_b32 %s, %s, %s" % (v(vs), v(vs), v(vt2)))
        a.e("v_lshl_add_u32 %s, %s, 4, %s" % (v(va + t), v(vs), v(vt)))
    for tt in range(2):
        for t in range(4):
            a.e("ds_read_b64 %s, %s offset:%d" % (v(rs + 8 * tt + 2 * t, 2), v(va + t), 2048 * tt))
    mk_srd(a, SRD_O, c.obuf)
    if c.ostat: mk_srd(a, SRD_S, c.ostat)
    lane_col_off(a, vo, vl, vt)
    a.e("v_and_b32 %s, 15, %s" % (v(vt), v(vl)))
    a.e("v_lshl_add_u32 %s, %s, 11, %s" % (v(vo), v(vt), v(vo)))
    a.e("s_lshl_b32 %s, %s, 7" % (s(S_T0), s(S_MT)))
    a.e("s_lshl_b32 %s, %s, 5" % (s(S_T1), s(S_WM)))
    a.e("s_add_u32 %s, %s, %s" % (s(S_T3), s(S_T0), s(S_T1)))
    a.e("s_lshl_b32 %s, %s, 11" % (s(S_T0), s(S_T3)))
    a.e("s_lshl_b32 %s, %s, 7" % (s(S_T1), s(S_NT)))
    a.e("s_add_u32 %s, %s, %s" % (s(S_T0), s(S_T0), s(S_T1)))
    a.e("v_mov_b32 %s, 0xffff0000" % v(msk))
    a.e("s_waitcnt lgkmcnt(0)")
    for tt in range(2):
        for t in range(4):
            x = acc(t, tt)
            for p in range(2):
                a.e("v_lshlrev_b32 %s, 16, %s" % (v(u + 2 * p), v(rs + 8 * tt + 2 * t + p)))
                a.e("v_and_b32 %s, %s, %s" % (v(u + 2 * p + 1), v(msk), v(rs + 8 * tt + 2 * t + p)))
            for p in range(2):
                a.e(pk("v_pk_add_f32", x + 2 * p, [v(x + 2 * p, 2), v(u + 2 * p, 2)]))
            for p in range(2):
                a.e("v_cvt_pk_bf16_f32 %s, %s, %s" % (v(pkd + 8 * tt + 2 * t + p), v(x + 2 * p), v(x + 2 * p + 1)))
            if c.ostat:
                for p in range(2):
                    if t == 0 and p == 0:
                        a.e("v_mov_b32 %s, %s" % (v(t2), v(x))); a.e("v_mov_b32 %s, %s" % (v(t2 + 1), v(x + 1)))
                        a.e(pk("v_pk_mul_f32", t2 + 2, [v(x, 2), v(x, 2)]))
                    else:
                        a.e(pk("v_pk_add_f32", t2, [v(t2, 2), v(x + 2 * p, 2)]))
                        a.e(pk("v_pk_fma_f32", t2 + 2, [v(x + 2 * p, 2), v(x + 2 * p, 2), v(t2 + 2, 2)]))
        if c.ostat:
            a.e("v_add_f32 %s, %s, %s" % (v(S + 2 * tt), v(t2), v(t2 + 1)))
            a.e("v_add_f32 %s, %s, %s" % (v(S + 2 * tt + 1), v(t2 + 2), v(t2 + 3)))
        for h in range(2):
            b = pkd + 8 * tt + 4 * h
            for p in range(2):
                a.e("v_permlane16_swap_b32 %s, %s" % (v(b + p), v(b + 2 + p)))
            a.e("s_add_u32 %s, %s, %d" % (s(S_T1), s(S_T0), tt * 16 * 2048))
            a.e("buffer_store_dwordx4 %s, %s, %s, %s offen offset:%d" % (v(b, 4), v(vo), s(SRD_O, 4), s(S_T1), 64 * h))
    if c.ostat:
        for sw in ("v_permlane16_swap_b32", "v_permlane32_swap_b32"):
            for i in range(4): a.e("v_mov_b32 %s, %s" % (v(u + i), v(S + i)))
            for i in range(4): a.e("%s %s, %s" % (sw, v(u + i), v(S + i)))
            for i in range(4): a.e("v_add_f32 %s, %s, %s" % (v(S + i), v(S + i), v(u + i)))
        a.e("v_and_b32 %s, 15, %s" % (v(vt), v(vl)))
        a.e("v_lshlrev_b32 %s, 7, %s" % (v(vt), v(vt)))
        a.e("s_lshl_b32 %s, %s, 7" % (s(S_T0), s(S_T3)))
        a.e("s_lshl_b32 %s, %s, 3" % (s(S_T1), s(S_NT)))
        a.e("s_add_u32 %s, %s, %s" % (s(S_T0), s(S_T0), s(S_T1)))
        a.e("s_mov_b64 exec, 0xffff")
        for tt in range(2):
            a.e("buffer_store_dwordx2 %s, %s, %s, %s offen offset:%d" % (v(S + 2 * tt, 2), v(vt), s(SRD_S, 4), s(S_T0), 2048 * tt))
        a.e("s_mov_b64 exec, -1")

def w1_epilogue(a, c, r):
    R = Regs(r.free0, 256)
    vl, vt, vt2 = r.vl, r.vt, r.vt2
    C_N = S_C0; C_1 = S_C0 + 2
    a.e("s_mov_b32 %s, 0x%x" % (s(C_N), NLOG2E)); a.e("s_mov_b32 %s, 1.0" % s(C_1))
    def acc(j, tt): return r.acc + (j * c.TM + tt) * 4
    aT = R.get(4); bT = R.get(4); cs = R.get(28, 4); bc = R.get(4, 4); tmp = R.get(4, 4); pkd = R.get(16, 4); va = R.get(); vb = R.get(); vo = R.get(); vh = R.get()
    a.e("v_and_b32 %s, 15, %s" % (v(va), v(vl)))
    a.e("v_lshlrev_b32 %s, 2, %s" % (v(va), v(va)))
    a.e("s_lshl_b32 %s, %s, 8" % (s(S_T0), s(S_WM)))
    a.e("s_add_u32 %s, %s, %d" % (s(S_T0), s(S_T0), c.XTRA))
    a.e("v_add_u32 %s, %s, %s" % (v(va), s(S_T0), v(va)))
    for tt in range(4):
        a.e("ds_read_b32 %s, %s offset:%d" % (v(aT + tt), v(va), A_OFF + 64 * tt))
        a.e("ds_read_b32 %s, %s offset:%d" % (v(bT + tt), v(va), B_OFF + 64 * tt))
    a.e("v_lshrrev_b32 %s, 4, %s" % (v(vb), v(vl)))
    a.e("v_lshlrev_b32 %s, 4, %s" % (v(vb), v(vb)))
    a.e("v_add_u32 %s, %d, %s" % (v(vb), c.XTRA + CS_OFF, v(vb)))
    a.e("s_lshl_b32 %s, %s, 6" % (s(S_T0), s(S_WN)))
    a.e("v_add_u32 %s, %s, %s" % (v(vh), s(S_T0), v(vb)))
    a.e("s_lshl_b32 %s, %s, 7" % (s(S_T0), s(S_WN)))
    a.e("v_add_u32 %s, %s, %s" % (v(vb), s(S_T0), v(vb)))
    a.e("s_waitcnt lgkmcnt(0)")
    for j, (si, ai) in enumerate(c.ct):
        if c.segs[si] == 'full': a.e("ds_read_b128 %s, %s offset:%d" % (v(cs + 4 * j, 4), v(vb), 256 * si + 64 * ai))
        else: a.e("ds_read_b128 %s, %s offset:%d" % (v(cs + 4 * j, 4), v(vh), 768))
    mk_srd(a, SRD_O, c.obuf)
    wcol_base(a, c, S_T2, S_HALFOFF)
    lane_col_off(a, vo, vl, vt)
    a.e("v_and_b32 %s, 15, %s" % (v(vt), v(vl)))
    a.e("v_mul_u32_u24 %s, 7168, %s" % (v(vt), v(vt)))
    a.e("v_add_u32 %s, %s, %s" % (v(vo), v(vo), v(vt)))
    a.e("s_lshl_b32 %s, %s, 6" % (s(S_T0), s(S_WN)))
    a.e("v_add_u32 %s, %s, %s" % (v(vo), s(S_T0), v(vo)))
    a.e("v_lshrrev_b32 %s, 4, %s" % (v(vh), v(vl)))
    a.e("v_lshl_add_u32 %s, %s, 3, %s" % (v(vh), v(vh), v(vt)))
    a.e("s_lshl_b32 %s, %s, 5" % (s(S_T0), s(S_WN)))
    a.e("s_add_u32 %s, %s, %s" % (s(S_T0), s(S_T0), s(S_HALFOFF)))
    a.e("s_add_u32 %s, %s, %s" % (s(S_T0), s(S_T0), s(S_T2)))
    a.e("v_add_u32 %s, %s, %s" % (v(vh), s(S_T0), v(vh)))
    a.e("v_add_u32 %s, %s, %s" % (v(vo), s(S_T2), v(vo)))
    a.e("s_lshl_b32 %s, %s, 7" % (s(S_T0), s(S_MT)))
    a.e("s_lshl_b32 %s, %s, 6" % (s(S_T1), s(S_WM)))
    a.e("s_add_u32 %s, %s, %s" % (s(S_T0), s(S_T0), s(S_T1)))
    a.e("s_mul_i32 %s, %s, 7168" % (s(S_T0), s(S_T0)))
    a.e("s_waitcnt lgkmcnt(0)")
    def silu(x, j, tt):
        for p in range(2):
            a.e(pk("v_pk_mul_f32", bc + 2 * p, [v(cs + 4 * j + 2 * p, 2), ('v', bT + tt)]))
        for p in range(2):
            a.e(pk("v_pk_fma_f32", x + 2 * p, [v(x + 2 * p, 2), ('v', aT + tt), v(bc + 2 * p, 2)]))
        for p in range(2):
            a.e(pk("v_pk_mul_f32", tmp + 2 * p, [v(x + 2 * p, 2), ('s', C_N)]))
        for i in range(4): a.e("v_exp_f32 %s, %s" % (v(tmp + i), v(tmp + i)))
        for p in range(2):
            a.e(pk("v_pk_add_f32", tmp + 2 * p, [v(tmp + 2 * p, 2), ('s', C_1)]))
        for i in range(4): a.e("v_rcp_f32 %s, %s" % (v(tmp + i), v(tmp + i)))
        for p in range(2):
            a.e(pk("v_pk_mul_f32", x + 2 * p, [v(x + 2 * p, 2), v(tmp + 2 * p, 2)]))
    k = 0
    for tt in range(4):
        a.e("s_add_u32 %s, %s, %d" % (s(S_T1), s(S_T0), tt * 16 * 7168))
        for si in range(3):
            b = pkd + 4 * (k & 3); k += 1
            for ai in range(2):
                j = 2 * si + ai; x = acc(j, tt)
                silu(x, j, tt)
                for p in range(2):
                    a.e("v_cvt_pk_bf16_f32 %s, %s, %s" % (v(b + 2 * ai + p), v(x + 2 * p), v(x + 2 * p + 1)))
            for p in range(2):
                a.e("v_permlane16_swap_b32 %s, %s" % (v(b + p), v(b + 2 + p)))
            a.e("buffer_store_dwordx4 %s, %s, %s, %s offen offset:%d" % (v(b, 4), v(vo), s(SRD_O, 4), s(S_T1), 128 * si))
        x = acc(6, tt); b = pkd + 4 * (k & 3); k += 1
        silu(x, 6, tt)
        for p in range(2):
            a.e("v_cvt_pk_bf16_f32 %s, %s, %s" % (v(b + p), v(x + 2 * p), v(x + 2 * p + 1)))
        a.e("buffer_store_dwordx2 %s, %s, %s, %s offen" % (v(b, 2), v(vh), s(SRD_O, 4), s(S_T1)))

def cfg_qkv(name, xbuf, stb, **kw):
    return Cfg(name=name, K=1024, xbuf=xbuf, x_pitch=2048, wbuf=('wqkv', 0, 1024 * 6144), w_pitch=6144,
               segs=['full'] * 3, w_seg_bytes=[0, 2048, 4096], w_ntile_bytes=128, NS=3, WM=2, WN=2, map=map_8x4, orient='TTNNNN',
               stbuf=stb, pqbuf=('ws', WS_PQ, ACT), pre=ln_pre, pre3=ln_pre3, xtra=2048 + 12288, stampbuf=('ws', WS_STAMP, MB), **kw)
def cfg_w1(name, xbuf, stb, **kw):
    return Cfg(name=name, K=1024, xbuf=xbuf, x_pitch=2048, wbuf=('w1', 0, 1024 * 7168), w_pitch=7168,
               segs=['full'] * 3 + ['half'], w_seg_bytes=[0, 128, 256], w_ntile_bytes=448, NS=3, WM=2, WN=2, map=map_8x4, orient='T' * 7,
               stbuf=stb, obuf=('ws', WS_H, HB), pre=ln_pre, pre3=ln_pre3, xtra=2048, stampbuf=('ws', WS_STAMP + 1 * 65536, MB), **kw)
def cfg_res(name, K, xbuf, xp, wname, resid, obuf, ostat, idx, **kw):
    return Cfg(name=name, K=K, xbuf=xbuf, x_pitch=xp, wbuf=(wname, 0, K * 2048), w_pitch=2048,
               segs=['full'], w_seg_bytes=[0], w_ntile_bytes=128, NS=6, WM=4, WN=1, SUBS=2, map=map_4x8, orient='TTTT',
               resid=resid, obuf=obuf, ostat=ostat, xtra=16384, stampbuf=('ws', WS_STAMP + idx * 65536, MB), **kw)

def build(path, upto=None, stamps=False, header=""):
    a = Asm()
    descs = []; launches = []
    X0 = ('x', 0, ACT); X1 = ('ws', WS_X1, ACT); X2 = ('ws', WS_X2, ACT); X3 = ('ws', WS_X3, ACT); OUT = ('out', 0, ACT)
    PQ = ('ws', WS_PQ, ACT); O = ('ws', WS_O, ACT); H = ('ws', WS_H, HB)
    a.raw('.amdgcn_target "amdgcn-amd-amdhsa--gfx950"'); a.raw(".text")
    descs.append(p0_kernel(a, "p0_kernel")); launches.append(("p0_kernel", 256, 256, 1024))
    for L in range(2):
        xin = X0 if L == 0 else X2
        xmid = X1 if L == 0 else X3
        xout = X2 if L == 0 else OUT
        c = cfg_qkv("qkv%d_kernel" % L, xin, stbuf(2 * L), stamps=stamps)
        gemm_kernel(a, c, qkv_epilogue); descs.append(kernel_desc(c.name, 256, 96)); launches.append((c.name, 256, 512, c.lds))
        n = "apply%d_kernel" % L
        descs.append(apply_kernel(a, n, PQ, O)); launches.append((n, 256, 256, 24576))
        c = cfg_res("wo%d_kernel" % L, 1024, O, 2048, 'wo', xin, xmid, stbuf(2 * L + 1), 2, stamps=stamps)
        gemm_kernel(a, c, resid_epilogue); descs.append(kernel_desc(c.name, 256, 96)); launches.append((c.name, 256, 512, c.lds))
        c = cfg_w1("w1%d_kernel" % L, xmid, stbuf(2 * L + 1), stamps=stamps)
        gemm_kernel(a, c, w1_epilogue); descs.append(kernel_desc(c.name, 256, 96)); launches.append((c.name, 256, 512, c.lds))
        c = cfg_res("w2%d_kernel" % L, 3584, H, 7168, 'w2', xmid, xout, stbuf(2) if L == 0 else None, 3, stamps=stamps)
        gemm_kernel(a, c, resid_epilogue); descs.append(kernel_desc(c.name, 256, 96)); launches.append((c.name, 256, 512, c.lds))
    a.raw('.section .rodata,"a"')
    for d in descs: a.raw(d)
    if upto: launches = launches[:upto]
    head = header + "".join("; @launch kernel=%s grid=(%d,1,1) block=(%d,1,1) lds=%d\n" % l for l in launches)
    open(path, 'w').write(head + a.text())
    return launches

if __name__ == '__main__':
    ref = open('interleave_layers__linear_attn_block__dense_activation_silu__prompt.s.ref').read().split('\n')
    hdr = "\n".join(l for l in ref[:10] if l.startswith(';') and '@launch' not in l and 'Override' not in l and 'grid=ceil' not in l) + "\n"
    out = sys.argv[1] if len(sys.argv) > 1 else 'interleave_layers__linear_attn_block__dense_activation_silu__prompt.s'
    print(build(out, header=hdr))
```

```python
from dsl import *

ARG = dict(x=0, wqkv=8, wo=16, bx=24, w1=32, w2=40, out=48, dbg=56, ws=64)

S_WAVE = 3; S_MT = 4; S_NT = 5; S_WM = 6; S_WN = 7
SRD_X = 8; SRD_W = 12; SRD_O = 16; SRD_R = 20; SRD_S = 24; SRD_P = 28
S_XOFF = 32; S_WOFF = 33; S_SLOT = 34; S_CNT = 35; S_INC = 36; S_T0 = 37; S_T1 = 38; S_T2 = 39
S_MX = 40; S_MS = 41
S_NEG = 46; S_POS = 47
S_P0 = 48
S_HALFOFF = 66; S_T3 = 67; S_T4 = 68; S_T5 = 69
S_STAMP = 70
S_C0 = 82
S_KH = 86
S_RT = 96
SRD_Q = 92

def ptr(name): return S_P0 + ARG[name] // 4

def load_kernargs(a):
    a.e("s_load_dwordx16 %s, s[0:1], 0" % s(S_P0, 16))
    a.e("s_load_dwordx2 %s, s[0:1], 64" % s(S_P0 + 16, 2))

def mk_srd(a, srd, buf):
    name, off, size = buf
    p = ptr(name)
    if off:
        a.e("s_add_u32 %s, %s, 0x%x" % (s(srd), s(p), off & 0xffffffff))
        a.e("s_addc_u32 %s, %s, 0" % (s(srd + 1), s(p + 1)))
    else:
        a.e("s_mov_b32 %s, %s" % (s(srd), s(p)))
        a.e("s_mov_b32 %s, %s" % (s(srd + 1), s(p + 1)))
    a.e("s_mov_b32 %s, 0x%x" % (s(srd + 2), size))
    a.e("s_mov_b32 %s, 0x20000" % s(srd + 3))

class Cfg:
    def __init__(self, **kw):
        self.BM = 128; self.BK = 64
        self.dma = True; self.mfma = True; self.reads = True
        self.stamps = False; self.prio = 2; self.ramp = 2; self.SUBS = 1; self.rper = 2
        self.pre = None; self.resid = None; self.bend = False; self.xtra = 0
        self.ld_pre = None; self.ld_post = None
        self.__dict__.update(kw)
        self.nfull = sum(1 for k in self.segs if k == 'full')
        self.nhalf = sum(1 for k in self.segs if k == 'half')
        self.XB = self.BM * 128
        self.WB = self.nfull * 8192 + self.nhalf * 4096
        self.STG = self.XB + self.WB
        self.nst = self.K // self.BK
        self.ndma = (self.XB + self.WB) // 1024 // 4
        self.TM = self.BM // 16 // self.WM
        if self.WN == 2:
            self.ct = []
            for si, k in enumerate(self.segs):
                if k == 'full': self.ct += [(si, 0), (si, 1)]
                else: self.ct += [(si, 2)]
            self.nwa = 3 if self.nhalf else 2
        else:
            assert self.WN == 1 and self.nhalf == 0
            self.ct = [(si, t) for si in range(self.nfull) for t in range(4)]
            self.nwa = 4
        self.TN = len(self.ct)
        self.XTRA = self.NS * self.STG
        self.lds = self.XTRA + self.xtra
        assert self.lds <= 163840
        if self.resid: self.bend = True

def wcol_base(a, c, sd, shalf):
    if c.nhalf:
        a.e("s_lshr_b32 %s, %s, 1" % (s(sd), s(S_NT)))
        a.e("s_mul_i32 %s, %s, 896" % (s(sd), s(sd)))
        a.e("s_and_b32 %s, %s, 1" % (s(shalf), s(S_NT)))
        a.e("s_lshl_b32 %s, %s, 9" % (s(shalf), s(shalf)))
        a.e("s_add_u32 %s, %s, %s" % (s(sd), s(sd), s(shalf)))
        a.e("s_and_b32 %s, %s, 1" % (s(shalf), s(S_NT)))
        a.e("s_mul_i32 %s, %s, -448" % (s(shalf), s(shalf)))
        a.e("s_add_u32 %s, %s, 384" % (s(shalf), s(shalf)))
    else:
        a.e("s_mul_i32 %s, %s, %d" % (s(sd), s(S_NT), c.w_ntile_bytes))

def stamp(a, c, i):
    if c.stamps: a.e("s_memtime %s" % s(S_STAMP + 2 * i, 2))

def rt_stamp(a, c, i):
    if c.stamps: a.e("s_memrealtime %s" % s(S_RT + 2 * i, 2))

def write_stamps(a, c, nst=5):
    if not c.stamps: return
    a.e("s_waitcnt vmcnt(0)")
    stamp(a, c, 5)
    if not getattr(c, 'rt_loop', False): rt_stamp(a, c, 1)
    mk_srd(a, SRD_Q, c.stampbuf)
    a.e("s_waitcnt lgkmcnt(0)")
    a.e("s_lshl_b32 %s, s2, 6" % s(S_T0))
    regs = [S_STAMP + i for i in range(12)] + [S_RT + i for i in range(4)]
    for i, rg in enumerate(regs):
        a.e("v_mov_b32 v1, %s" % s(rg))
        a.e("v_mov_b32 v2, %s" % s(S_T0))
        a.e("buffer_store_dword v1, v2, %s, 0 offen offset:%d" % (s(SRD_Q, 4), 4 * i))
        a.e("s_nop 1")

def x_voffsets(a, c, vl, vt, vt2, vx, pitch, rowbase=None):
    if rowbase: rowbase(a)
    else:
        a.e("s_lshl_b32 %s, %s, 7" % (s(S_T0), s(S_MT)))
        a.e("s_lshl_b32 %s, %s, 5" % (s(S_T1), s(S_WAVE)))
        a.e("s_add_u32 %s, %s, %s" % (s(S_T0), s(S_T0), s(S_T1)))
    a.e("s_mul_i32 %s, %s, %d" % (s(S_T0), s(S_T0), pitch))
    a.e("v_lshrrev_b32 %s, 3, %s" % (v(vt), v(vl)))
    a.e("v_mul_u32_u24 %s, %d, %s" % (v(vt), pitch, v(vt)))
    a.e("v_add_u32 %s, %s, %s" % (v(vt), s(S_T0), v(vt)))
    for j in range(4):
        a.e("v_lshrrev_b32 %s, 4, %s" % (v(vt2), v(vl)))
        if j & 1: a.e("v_add_u32 %s, 4, %s" % (v(vt2), v(vt2)))
        a.e("v_xor_b32 %s, %s, %s" % (v(vt2), v(vl), v(vt2)))
        a.e("v_and_b32 %s, 7, %s" % (v(vt2), v(vt2)))
        a.e("v_lshl_add_u32 %s, %s, 4, %s" % (v(vx + j), v(vt2), v(vt)))
        off = j * (8 * pitch - 1024)
        if off: a.e("v_add_u32 %s, 0x%x, %s" % (v(vx + j), off, v(vx + j)))

def loader(a, c):
    R = Regs(1, 128)
    vl = R.get(); vt = R.get(); vt2 = R.get()
    vx = R.get(4); vw = R.get(2 * c.nfull + c.nhalf)
    a.c("---- loader waves ----")
    a.e("v_and_b32 %s, 63, v0" % v(vl))
    x_voffsets(a, c, vl, vt, vt2, vx, c.x_pitch)
    a.e("s_lshl_b32 %s, %s, 4" % (s(S_T0), s(S_WAVE)))
    a.e("s_mul_i32 %s, %s, %d" % (s(S_T0), s(S_T0), c.w_pitch))
    wcol_base(a, c, S_T1, S_HALFOFF)
    a.e("s_add_u32 %s, %s, %s" % (s(S_T0), s(S_T0), s(S_T1)))
    a.e("v_lshrrev_b32 %s, 3, %s" % (v(vt), v(vl)))
    a.e("v_mul_u32_u24 %s, %d, %s" % (v(vt), c.w_pitch, v(vt)))
    a.e("v_add_u32 %s, %s, %s" % (v(vt), s(S_T0), v(vt)))
    for jj in range(2):
        a.e("v_lshrrev_b32 %s, 3, %s" % (v(vt2), v(vl)))
        a.e("v_and_b32 %s, 2, %s" % (v(vt2), v(vt2)))
        if jj: a.e("v_add_u32 %s, 4, %s" % (v(vt2), v(vt2)))
        a.e("v_xor_b32 %s, %s, %s" % (v(vt2), v(vl), v(vt2)))
        a.e("v_and_b32 %s, 7, %s" % (v(vt2), v(vt2)))
        for si in range(c.nfull):
            r = vw + 2 * si + jj
            a.e("v_lshl_add_u32 %s, %s, 4, %s" % (v(r), v(vt2), v(vt)))
            off = c.w_seg_bytes[si] + jj * (8 * c.w_pitch - 1024)
            if off: a.e("v_add_u32 %s, 0x%x, %s" % (v(r), off, v(r)))
    if c.nhalf:
        r = vw + 2 * c.nfull
        a.e("v_lshrrev_b32 %s, 2, %s" % (v(vt), v(vl)))
        a.e("v_mul_u32_u24 %s, %d, %s" % (v(vt), c.w_pitch, v(vt)))
        a.e("v_add_u32 %s, %s, %s" % (v(vt), s(S_T0), v(vt)))
        a.e("v_lshrrev_b32 %s, 4, %s" % (v(vt2), v(vl)))
        a.e("v_and_b32 %s, 2, %s" % (v(vt2), v(vt2)))
        a.e("v_xor_b32 %s, %s, %s" % (v(vt2), v(vl), v(vt2)))
        a.e("v_and_b32 %s, 3, %s" % (v(vt2), v(vt2)))
        a.e("v_lshl_add_u32 %s, %s, 4, %s" % (v(r), v(vt2), v(vt)))
        a.e("v_add_u32 %s, %s, %s" % (v(r), s(S_HALFOFF), v(r)))
    a.e("s_lshl_b32 %s, %s, 12" % (s(S_MX), s(S_WAVE)))
    for si in range(c.nfull):
        a.e("s_lshl_b32 %s, %s, 11" % (s(S_MS + si), s(S_WAVE)))
        a.e("s_add_u32 %s, %s, %d" % (s(S_MS + si), s(S_MS + si), c.XB + 8192 * si))
    if c.nhalf:
        a.e("s_lshl_b32 %s, %s, 10" % (s(S_MS + c.nfull), s(S_WAVE)))
        a.e("s_add_u32 %s, %s, %d" % (s(S_MS + c.nfull), s(S_MS + c.nfull), c.XB + 8192 * c.nfull))
    a.e("s_mov_b32 %s, 0" % s(S_XOFF))
    a.e("s_mov_b32 %s, 0" % s(S_WOFF))
    a.e("s_mov_b32 %s, 0" % s(S_SLOT))

    nissue = [0]
    def issue(steady=False):
        nissue[0] += 1
        if c.dma and not (getattr(c, 'dma_first', False) and (steady or nissue[0] > c.NS)):
            a.e("s_add_u32 m0, %s, %s" % (s(S_SLOT), s(S_MX)))
            a.e("s_nop 0")
            for j in range(4):
                a.e("buffer_load_dwordx4 %s, %s, %s offen offset:%d%s lds" % (v(vx + j), s(SRD_X, 4), s(S_XOFF), 1024 * j, getattr(c, 'xflags', '')))
            for si in range(c.nfull):
                a.e("s_add_u32 m0, %s, %s" % (s(S_SLOT), s(S_MS + si)))
                a.e("s_nop 0")
                for jj in range(2):
                    a.e("buffer_load_dwordx4 %s, %s, %s offen offset:%d%s lds" % (v(vw + 2 * si + jj), s(SRD_W, 4), s(S_WOFF), 1024 * jj, getattr(c, 'wflags', '')))
            if c.nhalf:
                a.e("s_add_u32 m0, %s, %s" % (s(S_SLOT), s(S_MS + c.nfull)))
                a.e("s_nop 0")
                a.e("buffer_load_dwordx4 %s, %s, %s offen%s lds" % (v(vw + 2 * c.nfull), s(SRD_W, 4), s(S_WOFF), getattr(c, 'wflags', '')))
        a.e("s_add_u32 %s, %s, 128" % (s(S_XOFF), s(S_XOFF)))
        a.e("s_add_u32 %s, %s, %d" % (s(S_WOFF), s(S_WOFF), 64 * c.w_pitch))
        a.e("s_add_u32 %s, %s, %d" % (s(S_SLOT), s(S_SLOT), c.STG))
        a.e("s_cmp_eq_u32 %s, %d" % (s(S_SLOT), c.NS * c.STG))
        a.e("s_cselect_b32 %s, 0, %s" % (s(S_SLOT), s(S_SLOT)))

    T = 0
    if c.resid:
        vr = R.get(4)
        T = 4
    def tail():
        mk_srd(a, SRD_R, c.resid)
        x_voffsets(a, c, vl, vt, vt2, vr, 2048)
        a.e("s_lshl_b32 %s, %s, 7" % (s(S_T0), s(S_NT)))
        a.e("s_lshl_b32 %s, %s, 12" % (s(S_T1), s(S_WAVE)))
        a.e("s_add_u32 m0, %s, %d" % (s(S_T1), c.XTRA))
        a.e("s_nop 0")
        for j in range(4):
            a.e("buffer_load_dwordx4 %s, %s, %s offen offset:%d lds" % (v(vr + j), s(SRD_R, 4), s(S_T0), 1024 * j))

    n = c.ndma if c.dma else 0
    NS = c.NS; nst = c.nst
    ops = []; issued = 0; plan = []
    for j in range(nst):
        allowed = min(nst - 1, NS - 1 if j == 0 else (j - 1) - 1 + NS)
        k = max(0, min(c.ramp, allowed + 1 - issued))
        t = False
        for q in range(k):
            ops += [issued] * n; issued += 1
        if T and issued == nst and 'tail' not in ops and (k > 0 or j == 0):
            ops += ['tail'] * T; t = True
        last = max([i for i, o in enumerate(ops) if o == j], default=-1)
        plan.append((k, len(ops) - 1 - last, t))
    if c.ld_pre: c.ld_pre(a, c, R, vl, vt, vt2)
    j = 0
    while j < nst:
        k, w, t = plan[j]
        run = 1
        while j + run < nst and plan[j + run] == plan[j] and not t: run += 1
        if run >= 3:
            a.e("s_mov_b32 %s, %d" % (s(S_CNT), run))
            lab = a.newlab("ld"); a.lab(lab)
            for _ in range(k): issue(True)
            a.e("s_waitcnt vmcnt(%d)" % w)
            a.e("s_barrier")
            a.e("s_sub_u32 %s, %s, 1" % (s(S_CNT), s(S_CNT)))
            a.e("s_cmp_lg_u32 %s, 0" % s(S_CNT))
            a.e("s_cbranch_scc1 %s" % lab)
            j += run
        else:
            for _ in range(k): issue()
            if t: tail()
            a.e("s_waitcnt vmcnt(%d)" % w)
            a.e("s_barrier")
            j += 1
    if c.ld_post: c.ld_post(a, c, R, vl, vt, vt2)
    if c.bend:
        a.e("s_waitcnt vmcnt(0)")
        a.e("s_barrier")

class CompRegs: pass

def compute_setup(a, c):
    R = Regs(1, 255)
    r = CompRegs(); r.R = R
    r.vl = R.get(); r.vt = R.get(); r.vt2 = R.get()
    r.nxa = 4 if getattr(c, 'splitk', False) else 2
    r.xa = R.get(r.nxa); r.wa = R.get(c.nwa)
    r.acc = R.get(c.TM * c.TN * 4, 4)
    r.xf = [R.get(c.TM * 4 * c.SUBS, 4) for _ in range(2)]
    r.wf = [R.get(c.TN * 4 * c.SUBS, 4) for _ in range(2)]
    r.free0 = r.xf[0]; r.free1 = R.p
    vl, vt, vt2 = r.vl, r.vt, r.vt2
    a.c("---- compute waves ----")
    a.e("v_and_b32 %s, 63, v0" % v(vl))
    if c.WN == 2:
        a.e("s_lshr_b32 %s, %s, 1" % (s(S_WM), s(S_WAVE)))
        a.e("s_and_b32 %s, %s, 1" % (s(S_WN), s(S_WAVE)))
    else:
        a.e("s_mov_b32 %s, %s" % (s(S_WM), s(S_WAVE)))
        a.e("s_mov_b32 %s, 0" % s(S_WN))
    if c.pre: c.pre(a, c, r)
    a.e("s_mul_i32 %s, %s, %d" % (s(S_T2), s(S_WM), c.TM * 16 * 128))
    a.e("v_and_b32 %s, 15, %s" % (v(vt), v(vl)))
    a.e("v_lshrrev_b32 %s, 1, %s" % (v(vt2), v(vt)))
    a.e("v_lshlrev_b32 %s, 7, %s" % (v(vt), v(vt)))
    a.e("v_add_u32 %s, %s, %s" % (v(vt), s(S_T2), v(vt)))
    a.e("v_lshrrev_b32 %s, 4, %s" % (v(r.xa), v(vl)))
    a.e("v_xor_b32 %s, %s, %s" % (v(vt2), v(vt2), v(r.xa)))
    a.e("v_lshl_add_u32 %s, %s, 4, %s" % (v(r.xa), v(vt2), v(vt)))
    a.e("v_xor_b32 %s, 64, %s" % (v(r.xa + 1), v(r.xa)))
    if r.nxa == 4:
        a.e("s_lshl_b32 %s, %s, 12" % (s(S_T0), s(S_KH)))
        a.e("s_xor_b32 %s, %s, 4096" % (s(S_T1), s(S_T0)))
        for i in range(2):
            a.e("v_add_u32 %s, %s, %s" % (v(r.xa + 2 + i), s(S_T1), v(r.xa + i)))
            a.e("v_add_u32 %s, %s, %s" % (v(r.xa + i), s(S_T0), v(r.xa + i)))
    kreg = r.free0; greg = r.free0 + 1
    a.e("v_lshrrev_b32 %s, 4, %s" % (v(vt), v(vl)))
    a.e("v_lshlrev_b32 %s, 3, %s" % (v(vt), v(vt)))
    a.e("v_bfe_u32 %s, %s, 2, 2" % (v(vt2), v(vl)))
    a.e("v_add_u32 %s, %s, %s" % (v(kreg), v(vt), v(vt2)))
    a.e("v_bfe_u32 %s, %s, 3, 1" % (v(greg), v(vl)))
    a.e("v_lshlrev_b32 %s, 1, %s" % (v(greg), v(greg)))
    a.e("v_bfe_u32 %s, %s, 4, 1" % (v(vt2), v(vl)))
    a.e("v_lshl_add_u32 %s, %s, 2, %s" % (v(greg), v(vt2), v(greg)))
    nfa = 2 if c.WN == 2 else 4
    for i in range(nfa):
        a.e("v_bfe_u32 %s, %s, 1, 1" % (v(vt2), v(vl)))
        if c.WN == 2:
            a.e("s_lshl_b32 %s, %s, 2" % (s(S_T2), s(S_WN)))
            a.e("s_add_u32 %s, %s, %d" % (s(S_T2), s(S_T2), 2 * i))
            a.e("v_add_u32 %s, %s, %s" % (v(vt2), s(S_T2), v(vt2)))
        elif i:
            a.e("v_add_u32 %s, %d, %s" % (v(vt2), 2 * i, v(vt2)))
        a.e("v_xor_b32 %s, %s, %s" % (v(vt2), v(vt2), v(greg)))
        a.e("v_lshlrev_b32 %s, 4, %s" % (v(vt2), v(vt2)))
        a.e("v_lshl_add_u32 %s, %s, 7, %s" % (v(vt2), v(kreg), v(vt2)))
        a.e("v_and_b32 %s, 1, %s" % (v(vt), v(vl)))
        a.e("v_lshl_add_u32 %s, %s, 3, %s" % (v(vt2), v(vt), v(vt2)))
        a.e("v_add_u32 %s, %d, %s" % (v(r.wa + i), c.XB, v(vt2)))
    if c.nhalf:
        a.e("v_bfe_u32 %s, %s, 1, 1" % (v(vt2), v(vl)))
        a.e("s_lshl_b32 %s, %s, 1" % (s(S_T2), s(S_WN)))
        a.e("v_add_u32 %s, %s, %s" % (v(vt2), s(S_T2), v(vt2)))
        a.e("v_bfe_u32 %s, %s, 4, 1" % (v(vt), v(vl)))
        a.e("v_lshlrev_b32 %s, 1, %s" % (v(vt), v(vt)))
        a.e("v_xor_b32 %s, %s, %s" % (v(vt2), v(vt2), v(vt)))
        a.e("v_lshlrev_b32 %s, 4, %s" % (v(vt2), v(vt2)))
        a.e("v_lshl_add_u32 %s, %s, 6, %s" % (v(vt2), v(kreg), v(vt2)))
        a.e("v_and_b32 %s, 1, %s" % (v(vt), v(vl)))
        a.e("v_lshl_add_u32 %s, %s, 3, %s" % (v(vt2), v(vt), v(vt2)))
        a.e("v_add_u32 %s, %d, %s" % (v(r.wa + 2), c.XB + c.nfull * 8192, v(vt2)))
    if getattr(c, 'pre2', None): c.pre2(a, c, r)
    for i in range(c.TM * c.TN * 4):
        a.e("v_mov_b32 %s, 0" % v(r.acc + i))
    if getattr(c, 'pre3', None): c.pre3(a, c, r)
    return r

def reads(c, r, st, sub, rsub=0, init=False):
    if not c.reads: return []
    if getattr(c, 'reads_first', False) and not init: return []
    xs = []; ws = []
    for tt in range(c.TM):
        if r.nxa == 4: xs.append("ds_read_b128 %s, %s offset:%d" % (v(r.xf[st] + 4 * (rsub * c.TM + tt), 4), v(r.xa + 2 * (tt >> 1) + sub), (tt & 1) * 2048))
        else: xs.append("ds_read_b128 %s, %s offset:%d" % (v(r.xf[st] + 4 * (rsub * c.TM + tt), 4), v(r.xa + sub), tt * 2048))
    for j, (si, ai) in enumerate(c.ct):
        half = c.segs[si] == 'half'
        for r2 in range(2):
            off = (sub * 2048 + r2 * 256) if half else (si * 8192 + sub * 4096 + r2 * 512)
            ws.append("ds_read_b64_tr_b16 %s, %s offset:%d" % (v(r.wf[st] + 4 * (rsub * c.TN + j) + 2 * r2, 2), v(r.wa + ai), off))
    return [xs[0], ws[0], ws[1]] + xs[1:] + ws[2:]

def mfmas(c, r, st, rsub=0):
    if not c.mfma: return []
    out = []
    for j in range(c.TN):
        for tt in range(c.TM):
            acc = v(r.acc + (j * c.TM + tt) * 4, 4)
            x = v(r.xf[st] + 4 * (rsub * c.TM + tt), 4); w = v(r.wf[st] + 4 * (rsub * c.TN + j), 4)
            if c.orient[j] == 'T': out.append("v_mfma_f32_16x16x32_bf16 %s, %s, %s, %s" % (acc, w, x, acc))
            else: out.append("v_mfma_f32_16x16x32_bf16 %s, %s, %s, %s" % (acc, x, w, acc))
    return out

def compute_loop(a, c, r):
    def addr_update():
        u = ["s_add_u32 %s, %s, %d" % (s(S_SLOT), s(S_SLOT), c.STG),
             "s_cmp_eq_u32 %s, %d" % (s(S_SLOT), c.NS * c.STG),
             "s_cselect_b32 %s, %s, %s" % (s(S_INC), s(S_NEG), s(S_POS)),
             "s_cselect_b32 %s, 0, %s" % (s(S_SLOT), s(S_SLOT))]
        for i in range(2): u.append("v_add_u32 %s, %s, %s" % (v(r.xa + i), s(S_INC), v(r.xa + i)))
        for i in range(c.nwa): u.append("v_add_u32 %s, %s, %s" % (v(r.wa + i), s(S_INC), v(r.wa + i)))
        return u
    a.e("s_mov_b32 %s, 0" % s(S_SLOT))
    a.e("s_mov_b32 %s, %d" % (s(S_NEG), -(c.NS - 1) * c.STG))
    a.e("s_mov_b32 %s, %d" % (s(S_POS), c.STG))
    if c.prio: a.e("s_setprio %d" % c.prio)
    a.e("s_waitcnt lgkmcnt(0)")
    a.e("s_barrier")
    stamp(a, c, 1)
    if getattr(c, 'rt_loop', False): rt_stamp(a, c, 0)
    lab = a.newlab("cl")
    if c.SUBS == 1:
        for i in reads(c, r, 0, 0, init=True): a.e(i)
        if getattr(c, 'reads_first', False):
            for i in reads(c, r, 1, 1, init=True): a.e(i)
        a.e("s_mov_b32 %s, %d" % (s(S_CNT), c.nst - 1))
        a.e("s_waitcnt lgkmcnt(0)")
        a.raw(".p2align 6")
        a.lab(lab)
        for i in interleave(mfmas(c, r, 0), reads(c, r, 1, 1) + addr_update()): a.e(i)
        a.e("s_waitcnt lgkmcnt(0)")
        a.e("s_barrier")
        for i in interleave(mfmas(c, r, 1), reads(c, r, 0, 0)): a.e(i)
        a.e("s_sub_u32 %s, %s, 1" % (s(S_CNT), s(S_CNT)))
        a.e("s_cmp_lg_u32 %s, 0" % s(S_CNT))
        a.e("s_waitcnt lgkmcnt(0)")
        a.e("s_cbranch_scc1 %s" % lab)
        for i in interleave(mfmas(c, r, 0), reads(c, r, 1, 1)): a.e(i)
        a.e("s_waitcnt lgkmcnt(0)")
        for i in mfmas(c, r, 1): a.e(i)
    else:
        def rd(st): return reads(c, r, st, 0, 0) + reads(c, r, st, 1, 1)
        def mm(st): return mfmas(c, r, st, 0) + mfmas(c, r, st, 1)
        def step(st):
            m = mm(st); fill = rd(1 - st) + addr_update()
            for i in (interleave(m, fill, per=c.rper) if m else fill): a.e(i)
        for i in rd(0) + addr_update(): a.e(i)
        a.e("s_waitcnt lgkmcnt(0)")
        a.e("s_barrier")
        assert c.nst % 2 == 0
        a.e("s_mov_b32 %s, %d" % (s(S_CNT), c.nst // 2 - 1))
        a.raw(".p2align 6")
        a.lab(lab)
        step(0)
        a.e("s_waitcnt lgkmcnt(0)")
        a.e("s_barrier")
        step(1)
        a.e("s_sub_u32 %s, %s, 1" % (s(S_CNT), s(S_CNT)))
        a.e("s_cmp_lg_u32 %s, 0" % s(S_CNT))
        a.e("s_waitcnt lgkmcnt(0)")
        a.e("s_barrier")
        a.e("s_cbranch_scc1 %s" % lab)
        step(0)
        a.e("s_waitcnt lgkmcnt(0)")
        for i in mm(1): a.e(i)
    if c.bend: a.e("s_barrier")
    a.e("s_setprio 0")
    stamp(a, c, 2)
    if getattr(c, 'rt_loop', False):
        rt_stamp(a, c, 1)
        a.e("s_waitcnt lgkmcnt(0)")

def map_8x4(a):
    a.e("s_and_b32 %s, s2, 1" % s(S_T0))
    a.e("s_lshl_b32 %s, %s, 3" % (s(S_T0), s(S_T0)))
    a.e("s_bfe_u32 %s, s2, 0x30003" % s(S_T1))
    a.e("s_add_u32 %s, %s, %s" % (s(S_MT), s(S_T0), s(S_T1)))
    a.e("s_bfe_u32 %s, s2, 0x20001" % s(S_T0))
    a.e("s_lshl_b32 %s, %s, 2" % (s(S_T0), s(S_T0)))
    a.e("s_lshr_b32 %s, s2, 6" % s(S_T1))
    a.e("s_add_u32 %s, %s, %s" % (s(S_NT), s(S_T0), s(S_T1)))

def map_4x8(a):
    a.e("s_and_b32 %s, s2, 3" % s(S_T0))
    a.e("s_lshl_b32 %s, %s, 2" % (s(S_T0), s(S_T0)))
    a.e("s_bfe_u32 %s, s2, 0x20003" % s(S_T1))
    a.e("s_add_u32 %s, %s, %s" % (s(S_MT), s(S_T0), s(S_T1)))
    a.e("s_bfe_u32 %s, s2, 0x10002" % s(S_T0))
    a.e("s_lshl_b32 %s, %s, 3" % (s(S_T0), s(S_T0)))
    a.e("s_lshr_b32 %s, s2, 5" % s(S_T1))
    a.e("s_add_u32 %s, %s, %s" % (s(S_NT), s(S_T0), s(S_T1)))

def map_dsk(a):
    a.e("s_and_b32 %s, s2, 1" % s(S_KH))
    a.e("s_bfe_u32 %s, s2, 0x10001" % s(S_T0))
    a.e("s_lshl_b32 %s, %s, 3" % (s(S_T0), s(S_T0)))
    a.e("s_bfe_u32 %s, s2, 0x30003" % s(S_T1))
    a.e("s_add_u32 %s, %s, %s" % (s(S_MT), s(S_T0), s(S_T1)))
    a.e("s_bfe_u32 %s, s2, 0x10002" % s(S_T0))
    a.e("s_lshl_b32 %s, %s, 2" % (s(S_T0), s(S_T0)))
    a.e("s_lshr_b32 %s, s2, 6" % s(S_T1))
    a.e("s_add_u32 %s, %s, %s" % (s(S_NT), s(S_T0), s(S_T1)))

def map_dsk2(a):
    a.e("s_bfe_u32 %s, s2, 0x10003" % s(S_KH))
    a.e("s_and_b32 %s, s2, 3" % s(S_T0))
    a.e("s_lshl_b32 %s, %s, 2" % (s(S_T0), s(S_T0)))
    a.e("s_bfe_u32 %s, s2, 0x20004" % s(S_T1))
    a.e("s_add_u32 %s, %s, %s" % (s(S_MT), s(S_T0), s(S_T1)))
    a.e("s_bfe_u32 %s, s2, 0x10002" % s(S_T0))
    a.e("s_lshl_b32 %s, %s, 2" % (s(S_T0), s(S_T0)))
    a.e("s_lshr_b32 %s, s2, 6" % s(S_T1))
    a.e("s_add_u32 %s, %s, %s" % (s(S_NT), s(S_T0), s(S_T1)))

def gemm_kernel(a, c, epilogue):
    kernel_header(a, c.name)
    l_end = a.newlab("end"); l_load = a.newlab("loader")
    a.e("s_cmp_ge_u32 s2, 256")
    a.e("s_cbranch_scc1 %s" % l_end)
    load_kernargs(a)
    stamp(a, c, 0)
    if not getattr(c, 'rt_loop', False): rt_stamp(a, c, 0)
    a.e("v_lshrrev_b32 v1, 6, v0")
    c.map(a)
    a.e("v_readfirstlane_b32 %s, v1" % s(S_WAVE))
    a.e("s_waitcnt lgkmcnt(0)")
    stamp(a, c, 4)
    mk_srd(a, SRD_X, c.xbuf)
    mk_srd(a, SRD_W, c.wbuf)
    a.e("s_cmp_ge_u32 %s, 4" % s(S_WAVE))
    a.e("s_cbranch_scc1 %s" % l_load)
    r = compute_setup(a, c)
    compute_loop(a, c, r)
    epilogue(a, c, r)
    stamp(a, c, 3)
    write_stamps(a, c)
    a.e("s_endpgm")
    a.lab(l_load)
    a.e("s_sub_u32 %s, %s, 4" % (s(S_WAVE), s(S_WAVE)))
    loader(a, c)
    a.lab(l_end)
    a.e("s_endpgm")
    c.vgprs = max(r.R.hi, 128)
```

```python
import sys; sys.path.insert(0, 'gen')
from core import *

MB = 1 << 20
WS_X1 = 0; WS_X2 = 4 * MB; WS_X3 = 8 * MB; WS_PQ = 12 * MB; WS_O = 16 * MB; WS_H = 20 * MB
WS_KVP = 36 * MB; WS_ST = 40 * MB; WS_CS = 42 * MB; WS_STAMP = 48 * MB
ACT = 2048 * 2048
HB = 2048 * 7168
KVP_B = 16 * 32 * 1056 * 4
ST_B = 2048 * 128
CS_B = 2 * 6656 * 4
def stbuf(i): return ('ws', WS_ST + i * ST_B, ST_B)
LOG2E = 0x3fb8aa3b; NLOG2E = 0xbfb8aa3b; EPS6 = 0x358637bd; EPS5 = 0x3727c5ac

def pk(op, d, srcs, bc=(), neg=()):
    ops = []; lo = []; hi = []
    for i, x in enumerate(srcs):
        if isinstance(x, tuple):
            kind, n = x
            base = n & ~1
            ops.append("%s[%d:%d]" % (kind, base, base + 1)); lo.append(n & 1); hi.append(n & 1)
        else:
            ops.append(x); lo.append(0); hi.append(1)
    t = "%s %s, %s" % (op, v(d, 2), ", ".join(ops))
    if any(lo): t += " op_sel:[%s]" % ",".join(map(str, lo))
    if not all(hi): t += " op_sel_hi:[%s]" % ",".join(map(str, hi))
    if neg:
        m = [1 if i in neg else 0 for i in range(len(srcs))]
        t += " neg_lo:[%s] neg_hi:[%s]" % (",".join(map(str, m)), ",".join(map(str, m)))
    return t

class SC:
    def __init__(self, stamps, idx): self.stamps = stamps; self.stampbuf = ('ws', WS_STAMP + idx * 65536, 65536)

def p0_kernel(a, name, sc):
    kernel_header(a, name)
    l_end = a.newlab("end"); l_nocs = a.newlab("nocs")
    a.e("s_cmp_ge_u32 s2, 256"); a.e("s_cbranch_scc1 %s" % l_end)
    load_kernargs(a)
    for i in range(5): stamp(a, sc, i)
    rt_stamp(a, sc, 0)
    a.e("v_lshrrev_b32 v1, 6, v0")
    a.e("v_and_b32 v2, 63, v0")
    a.e("v_readfirstlane_b32 %s, v1" % s(S_WAVE))
    a.e("s_waitcnt lgkmcnt(0)")
    mk_srd(a, SRD_X, ('x', 0, ACT))
    mk_srd(a, SRD_S, stbuf(0))
    mk_srd(a, SRD_O, ('ws', WS_CS, CS_B))
    if getattr(sc, 'hook', None): sc.hook(a)
    a.e("s_lshl_b32 %s, s2, 3" % s(S_T0))
    a.e("s_lshl_b32 %s, %s, 1" % (s(S_T1), s(S_WAVE)))
    a.e("s_add_u32 %s, %s, %s" % (s(S_T4), s(S_T0), s(S_T1)))
    a.e("s_lshl_b32 %s, %s, 11" % (s(S_T0), s(S_T4)))
    a.e("v_lshlrev_b32 v3, 5, v2")
    for rr in range(2):
        for i in range(2):
            a.e("buffer_load_dwordx4 %s, v3, %s, %s offen offset:%d" % (v(8 + 8 * rr + 4 * i, 4), s(SRD_X, 4), s(S_T0), 2048 * rr + 16 * i))
    a.e("s_cmp_ge_u32 s2, 208"); a.e("s_cbranch_scc1 %s" % l_nocs)
    a.e("s_lshr_b32 %s, s2, 1" % s(S_T0))
    a.e("s_and_b32 %s, s2, 1" % s(S_T5))
    a.e("s_cmp_lt_u32 %s, 48" % s(S_T0))
    a.e("s_cselect_b32 %s, %s, %s" % (s(SRD_W), s(ptr('wqkv')), s(ptr('w1'))))
    a.e("s_cselect_b32 %s, %s, %s" % (s(SRD_W + 1), s(ptr('wqkv') + 1), s(ptr('w1') + 1)))
    a.e("s_mov_b32 %s, %d" % (s(S_T1), 1024 * 6144)); a.e("s_mov_b32 %s, %d" % (s(S_T2), 1024 * 7168))
    a.e("s_cselect_b32 %s, %s, %s" % (s(SRD_W + 2), s(S_T1), s(S_T2)))
    a.e("s_mov_b32 %s, 0x20000" % s(SRD_W + 3))
    a.e("s_mov_b32 %s, 6144" % s(S_T1)); a.e("s_mov_b32 %s, 7168" % s(S_T2))
    a.e("s_cselect_b32 %s, %s, %s" % (s(S_T3), s(S_T1), s(S_T2)))
    a.e("s_sub_u32 %s, %s, 48" % (s(S_T1), s(S_T0)))
    a.e("s_cmp_lt_u32 %s, 48" % s(S_T0))
    a.e("s_cselect_b32 %s, %s, %s" % (s(S_T1), s(S_T0), s(S_T1)))
    a.e("s_lshl_b32 %s, %s, 7" % (s(S_T1), s(S_T1)))
    a.e("s_lshl_b32 %s, %s, 9" % (s(S_T2), s(S_T5)))
    a.e("s_mul_i32 %s, %s, %s" % (s(S_T2), s(S_T2), s(S_T3)))
    a.e("s_add_u32 %s, %s, %s" % (s(S_T1), s(S_T1), s(S_T2)))
    a.e("v_lshrrev_b32 v4, 3, v0")
    a.e("v_mul_lo_u32 v4, v4, %s" % s(S_T3))
    a.e("v_and_b32 v5, 7, v0")
    a.e("v_lshl_add_u32 v4, v5, 4, v4")
    a.e("s_lshl_b32 %s, %s, 5" % (s(S_T2), s(S_T3)))
    for p in range(16):
        a.e("buffer_load_dwordx4 %s, v4, %s, %s offen" % (v(32 + 4 * p, 4), s(SRD_W, 4), s(S_T1)))
        a.e("s_add_u32 %s, %s, %s" % (s(S_T1), s(S_T1), s(S_T2)))
    for i in range(8): a.e("v_mov_b32 %s, 0" % v(24 + i))
    a.e("v_mov_b32 v6, 0xffff0000")
    for p in range(16):
        a.e("s_waitcnt vmcnt(%d)" % (15 - p))
        for i in range(4):
            a.e("v_lshlrev_b32 v96, 16, %s" % v(32 + 4 * p + i))
            a.e("v_and_b32 v97, v6, %s" % v(32 + 4 * p + i))
            a.e(pk("v_pk_add_f32", 24 + 2 * i, [v(24 + 2 * i, 2), v(96, 2)]))
    for i in range(8):
        a.e("v_add_f32_dpp %s, %s, %s row_ror:8 row_mask:0xf bank_mask:0xf" % (v(24 + i), v(24 + i), v(24 + i)))
    for sw in ("v_permlane16_swap_b32", "v_permlane32_swap_b32"):
        for i in range(8): a.e("v_mov_b32 %s, %s" % (v(98 + i), v(24 + i)))
        for i in range(8): a.e("%s %s, %s" % (sw, v(98 + i), v(24 + i)))
        for i in range(8): a.e("v_add_f32 %s, %s, %s" % (v(24 + i), v(24 + i), v(98 + i)))
    a.e("v_and_b32 v5, 7, v2")
    a.e("v_lshlrev_b32 v5, 5, v5")
    a.e("s_lshl_b32 %s, %s, 8" % (s(S_T1), s(S_WAVE)))
    a.e("v_add_u32 v5, %s, v5" % s(S_T1))
    a.e("ds_write_b128 v5, %s" % v(24, 4))
    a.e("ds_write_b128 v5, %s offset:16" % v(28, 4))
    a.e("s_waitcnt lgkmcnt(0)")
    a.e("s_barrier")
    a.e("v_lshlrev_b32 v5, 2, v2")
    for w in range(4): a.e("ds_read_b32 %s, v5 offset:%d" % (v(98 + w), 256 * w))
    a.e("s_waitcnt lgkmcnt(0)")
    a.e("v_add_f32 v98, v98, v99"); a.e("v_add_f32 v100, v100, v101"); a.e("v_add_f32 v98, v98, v100")
    a.e("s_mul_i32 %s, %s, %d" % (s(S_T1), s(S_T5), 6656 * 4))
    a.e("s_lshl_b32 %s, %s, 8" % (s(S_T2), s(S_T0)))
    a.e("s_add_u32 %s, %s, %s" % (s(S_T1), s(S_T1), s(S_T2)))
    l_skip = a.newlab("skip")
    a.e("s_cmp_lg_u32 %s, 0" % s(S_WAVE)); a.e("s_cbranch_scc1 %s" % l_skip)
    a.e("buffer_store_dword v98, v5, %s, %s offen" % (s(SRD_O, 4), s(S_T1)))
    a.lab(l_skip)
    a.lab(l_nocs)
    a.e("s_waitcnt vmcnt(0)")
    a.e("v_mov_b32 v7, 0x3f803f80")
    for rr in range(2):
        a.e("v_mov_b32 %s, 0" % v(104 + 2 * rr)); a.e("v_mov_b32 %s, 0" % v(105 + 2 * rr))
    for i in range(8):
        for rr in range(2):
            a.e("v_dot2c_f32_bf16 %s, %s, v7" % (v(104 + 2 * rr), v(8 + 8 * rr + i)))
            a.e("v_dot2c_f32_bf16 %s, %s, %s" % (v(105 + 2 * rr), v(8 + 8 * rr + i), v(8 + 8 * rr + i)))
    for qp in ("[1,0,3,2]", "[2,3,0,1]"):
        for i in range(4):
            a.e("v_add_f32_dpp %s, %s, %s quad_perm:%s row_mask:0xf bank_mask:0xf" % (v(104 + i), v(104 + i), v(104 + i), qp))
    if getattr(sc, 'newstat', False):
        a.e("v_lshrrev_b32 v5, 2, v2")
        a.e("v_lshlrev_b32 v5, 14, v5")
        a.e("s_lshl_b32 %s, %s, 3" % (s(S_T0), s(S_T4)))
        for rr in range(2):
            a.e("buffer_store_dwordx2 %s, v5, %s, %s offen offset:%d" % (v(104 + 2 * rr, 2), s(SRD_S, 4), s(S_T0), 8 * rr))
    else:
        a.e("v_lshrrev_b32 v5, 2, v2")
        a.e("v_lshlrev_b32 v5, 3, v5")
        a.e("s_lshl_b32 %s, %s, 7" % (s(S_T0), s(S_T4)))
        for rr in range(2):
            a.e("buffer_store_dwordx2 %s, v5, %s, %s offen offset:%d" % (v(104 + 2 * rr, 2), s(SRD_S, 4), s(S_T0), 128 * rr))
    write_stamps(a, sc)
    a.lab(l_end)
    a.e("s_endpgm")
    return kernel_desc(name, 112, 102)

A_OFF = 0; B_OFF = 512; CS_OFF = 1024; KVX_OFF = 2048

def ln_pre(a, c, r):
    mk_srd(a, SRD_S, c.stbuf)
    mk_srd(a, SRD_R, ('ws', WS_CS, CS_B))
    f = r.free0 + 4
    r.ln_st = f; r.ln_cs = f + 16; r.ln_a = f + 18
    t = r.ln_a
    a.e("v_and_b32 %s, 0xff, v0" % v(t))
    a.e("v_lshrrev_b32 %s, 1, %s" % (v(t + 1), v(t)))
    a.e("v_lshlrev_b32 %s, 7, %s" % (v(t + 1), v(t + 1)))
    a.e("v_and_b32 %s, 1, %s" % (v(t + 2), v(t)))
    a.e("v_lshl_add_u32 %s, %s, 6, %s" % (v(t + 1), v(t + 2), v(t + 1)))
    a.e("s_lshl_b32 %s, %s, 14" % (s(S_T0), s(S_MT)))
    for i in range(4):
        a.e("buffer_load_dwordx4 %s, %s, %s, %s offen offset:%d" % (v(r.ln_st + 4 * i, 4), v(t + 1), s(SRD_S, 4), s(S_T0), 16 * i))
    if c.nhalf == 0:
        a.e("v_lshrrev_b32 %s, 6, %s" % (v(t + 1), v(t)))
        a.e("v_lshlrev_b32 %s, 10, %s" % (v(t + 1), v(t + 1)))
        a.e("v_and_b32 %s, 63, %s" % (v(t + 2), v(t)))
        a.e("v_add_u32 %s, %s, %s" % (v(t + 1), v(t + 1), v(t + 2)))
        a.e("s_lshl_b32 %s, %s, 6" % (s(S_T0), s(S_NT)))
        a.e("v_add_u32 %s, %s, %s" % (v(t + 1), s(S_T0), v(t + 1)))
        a.e("v_lshlrev_b32 %s, 2, %s" % (v(t + 1), v(t + 1)))
    else:
        wcol_base(a, c, S_T0, S_HALFOFF)
        a.e("s_add_u32 %s, %s, %s" % (s(S_T1), s(S_T0), s(S_HALFOFF)))
        a.e("s_sub_u32 %s, %s, 384" % (s(S_T1), s(S_T1)))
        a.e("v_mov_b32 %s, %s" % (v(t + 1), s(S_T0)))
        a.e("v_mov_b32 %s, %s" % (v(t + 2), s(S_T1)))
        a.e("v_cmp_le_u32 vcc, 192, %s" % v(t))
        a.e("v_cndmask_b32 %s, %s, %s, vcc" % (v(t + 1), v(t + 1), v(t + 2)))
        a.e("v_lshl_add_u32 %s, %s, 1, %s" % (v(t + 1), v(t), v(t + 1)))
        a.e("v_lshlrev_b32 %s, 1, %s" % (v(t + 1), v(t + 1)))
        a.e("v_add_u32 %s, %d, %s" % (v(t + 1), 3072 * 4, v(t + 1)))
    a.e("buffer_load_dword %s, %s, %s, 0 offen" % (v(r.ln_cs), v(t + 1), s(SRD_R, 4)))
    a.e("s_mov_b32 %s, %d" % (s(S_T0), 6656 * 4))
    a.e("buffer_load_dword %s, %s, %s, %s offen" % (v(r.ln_cs + 1), v(t + 1), s(SRD_R, 4), s(S_T0)))

def ln_pre3(a, c, r):
    t = r.ln_a; st = r.ln_st
    a.e("s_waitcnt vmcnt(0)")
    for i in range(1, 8):
        a.e(pk("v_pk_add_f32", st, [v(st, 2), v(st + 2 * i, 2)]))
    for i in range(2):
        a.e("v_add_f32_dpp %s, %s, %s quad_perm:[1,0,3,2] row_mask:0xf bank_mask:0xf" % (v(st + i), v(st + i), v(st + i)))
    a.e("v_mul_f32 %s, 0x3a800000, %s" % (v(st), v(st)))
    a.e("v_mul_f32 %s, 0x3a800000, %s" % (v(st + 1), v(st + 1)))
    a.e("v_fma_f32 %s, -%s, %s, %s" % (v(st + 1), v(st), v(st), v(st + 1)))
    a.e("v_max_f32 %s, 0, %s" % (v(st + 1), v(st + 1)))
    a.e("v_add_f32 %s, 0x%x, %s" % (v(st + 1), EPS5, v(st + 1)))
    a.e("v_rsq_f32 %s, %s" % (v(st + 1), v(st + 1)))
    a.e("v_mul_f32 %s, -%s, %s" % (v(st), v(st), v(st + 1)) if False else "v_mul_f32 %s, %s, %s" % (v(st), v(st), v(st + 1)))
    a.e("v_sub_f32 %s, 0, %s" % (v(st), v(st)))
    a.e("v_lshrrev_b32 %s, 1, %s" % (v(t + 1), v(t)))
    a.e("v_lshlrev_b32 %s, 2, %s" % (v(t + 1), v(t + 1)))
    a.e("v_add_u32 %s, %d, %s" % (v(t + 1), c.XTRA, v(t + 1)))
    a.e("ds_write_b32 %s, %s offset:%d" % (v(t + 1), v(st + 1), A_OFF))
    a.e("ds_write_b32 %s, %s offset:%d" % (v(t + 1), v(st), B_OFF))
    a.e("v_add_f32 %s, %s, %s" % (v(r.ln_cs), v(r.ln_cs), v(r.ln_cs + 1)))
    a.e("v_lshlrev_b32 %s, 2, %s" % (v(t + 1), v(t)))
    a.e("v_add_u32 %s, %d, %s" % (v(t + 1), c.XTRA, v(t + 1)))
    a.e("ds_write_b32 %s, %s offset:%d" % (v(t + 1), v(r.ln_cs), CS_OFF))

def lane_col_off(a, vd, vl, vt):
    a.e("v_bfe_u32 %s, %s, 4, 1" % (v(vd), v(vl)))
    a.e("v_lshlrev_b32 %s, 5, %s" % (v(vd), v(vd)))
    a.e("v_bfe_u32 %s, %s, 5, 1" % (v(vt), v(vl)))
    a.e("v_lshl_add_u32 %s, %s, 4, %s" % (v(vd), v(vt), v(vd)))

def phi_pairs(a, acc, n, av, bcv, tmp, c_log2e, c_eps):
    for p in range(n // 2):
        x = acc + 2 * p
        a.e(pk("v_pk_fma_f32", x, [av(p), v(x, 2), bcv(p)]))
    for p in range(n // 2):
        x = acc + 2 * p
        a.e(pk("v_pk_mul_f32", tmp + 2 * p, [v(x, 2), ('s', c_log2e)]))
    for i in range(n): a.e("v_exp_f32 %s, %s clamp" % (v(tmp + i), v(tmp + i)))
    for i in range(n): a.e("v_max_f32 %s, %s, %s" % (v(acc + i), s(c_eps), v(acc + i)))
    for p in range(n // 2):
        x = acc + 2 * p
        a.e(pk("v_pk_add_f32", x, [v(x, 2), v(tmp + 2 * p, 2)]))

def qkv_epilogue(a, c, r):
    R = Regs(r.free0, 256)
    vl, vt, vt2 = r.vl, r.vt, r.vt2
    C_L = S_C0; C_E = S_C0 + 2
    a.e("s_mov_b32 %s, 0x%x" % (s(C_L), LOG2E)); a.e("s_mov_b32 %s, 0x%x" % (s(C_E), EPS6))
    def acc(j, tt): return r.acc + (j * c.TM + tt) * 4
    aN = R.get(16, 4); bN = R.get(16, 4); csN = R.get(4, 2)
    va = R.get(); vb = R.get()
    a.e("v_lshrrev_b32 %s, 4, %s" % (v(va), v(vl)))
    a.e("v_lshlrev_b32 %s, 4, %s" % (v(va), v(va)))
    a.e("s_lshl_b32 %s, %s, 8" % (s(S_T0), s(S_WM)))
    a.e("s_add_u32 %s, %s, %d" % (s(S_T0), s(S_T0), c.XTRA))
    a.e("v_add_u32 %s, %s, %s" % (v(va), s(S_T0), v(va)))
    for tt in range(4):
        a.e("ds_read_b128 %s, %s offset:%d" % (v(aN + 4 * tt, 4), v(va), A_OFF + 64 * tt))
        a.e("ds_read_b128 %s, %s offset:%d" % (v(bN + 4 * tt, 4), v(va), B_OFF + 64 * tt))
    a.e("v_and_b32 %s, 15, %s" % (v(vb), v(vl)))
    a.e("v_lshlrev_b32 %s, 2, %s" % (v(vb), v(vb)))
    a.e("s_lshl_b32 %s, %s, 7" % (s(S_T0), s(S_WN)))
    a.e("s_add_u32 %s, %s, %d" % (s(S_T0), s(S_T0), c.XTRA))
    a.e("v_add_u32 %s, %s, %s" % (v(vb), s(S_T0), v(vb)))
    for j in range(2, 6):
        a.e("ds_read_b32 %s, %s offset:%d" % (v(csN + j - 2), v(vb), CS_OFF + (j >> 1) * 256 + (j & 1) * 64))
    tmp = R.get(4, 4); bc = R.get(4, 4)
    kf = R.get(16, 4); vf = R.get(16, 4)
    a.e("s_waitcnt lgkmcnt(0)")
    for jj in range(2):
        j = 4 + jj
        for tt in range(4):
            x = acc(j, tt)
            for p in range(2):
                a.e(pk("v_pk_mul_f32", bc + 2 * p, [v(bN + 4 * tt + 2 * p, 2), ('v', csN + 2 + jj)]))
            for p in range(2):
                a.e(pk("v_pk_fma_f32", x + 2 * p, [v(aN + 4 * tt + 2 * p, 2), v(x + 2 * p, 2), v(bc + 2 * p, 2)]))
            d = vf + 8 * jj + 4 * (tt >> 1) + 2 * (tt & 1)
            for p in range(2):
                a.e("v_cvt_pk_bf16_f32 %s, %s, %s" % (v(d + p), v(x + 2 * p), v(x + 2 * p + 1)))
    for jj in range(2):
        j = 2 + jj
        for tt in range(4):
            x = acc(j, tt)
            for p in range(2):
                a.e(pk("v_pk_fma_f32", bc + 2 * p, [v(bN + 4 * tt + 2 * p, 2), ('v', csN + jj), ('s', C_E)]))
            phi_pairs(a, x, 4, lambda p: v(aN + 4 * tt + 2 * p, 2), lambda p: v(bc + 2 * p, 2), tmp, C_L, C_E)
            d = kf + 8 * jj + 4 * (tt >> 1) + 2 * (tt & 1)
            for p in range(2):
                a.e("v_cvt_pk_bf16_f32 %s, %s, %s" % (v(d + p), v(x + 2 * p), v(x + 2 * p + 1)))
    ones = R.get(4, 4)
    for i in range(4): a.e("v_mov_b32 %s, 0x3f803f80" % v(ones + i))
    KV = acc(2, 0)
    def kvt(dt, et): return KV + (dt * 3 + et) * 4
    for p in range(2):
        for dt in range(2):
            for et in range(3):
                b = v(vf + 8 * et + 4 * p, 4) if et < 2 else v(ones, 4)
                cin = "0" if p == 0 else v(kvt(dt, et), 4)
                a.e("v_mfma_f32_16x16x32_bf16 %s, %s, %s, %s" % (v(kvt(dt, et), 4), v(kf + 8 * dt + 4 * p, 4), b, cin))
    l_w1 = a.newlab("wm1"); l_q = a.newlab("q")
    vx = R.get()
    a.e("v_lshlrev_b32 %s, 4, %s" % (v(vx), v(vl)))
    a.e("s_mul_i32 %s, %s, 6144" % (s(S_T0), s(S_WN)))
    a.e("s_add_u32 %s, %s, %d" % (s(S_T0), s(S_T0), c.XTRA + KVX_OFF))
    a.e("v_add_u32 %s, %s, %s" % (v(vx), s(S_T0), v(vx)))
    a.e("s_cmp_eq_u32 %s, 0" % s(S_WM))
    a.e("s_cbranch_scc1 %s" % l_w1)
    for i in range(6): a.e("ds_write_b128 %s, %s offset:%d" % (v(vx), v(KV + 4 * i, 4), 1024 * i))
    a.e("s_waitcnt lgkmcnt(0)")
    a.lab(l_w1)
    a.e("s_barrier")
    a.e("s_cmp_eq_u32 %s, 0" % s(S_WM))
    a.e("s_cbranch_scc0 %s" % l_q)
    ex = R.get(24, 4)
    for i in range(6): a.e("ds_read_b128 %s, %s offset:%d" % (v(ex + 4 * i, 4), v(vx), 1024 * i))
    mk_srd(a, SRD_O, ('ws', WS_KVP, KVP_B))
    a.e("s_lshl_b32 %s, %s, 5" % (s(S_T0), s(S_MT)))
    a.e("s_lshl_b32 %s, %s, 1" % (s(S_T1), s(S_NT)))
    a.e("s_add_u32 %s, %s, %s" % (s(S_T0), s(S_T0), s(S_T1)))
    a.e("s_add_u32 %s, %s, %s" % (s(S_T0), s(S_T0), s(S_WN)))
    a.e("s_mul_i32 %s, %s, %d" % (s(S_T0), s(S_T0), 1056 * 4))
    a.e("v_and_b32 %s, 15, %s" % (v(vt), v(vl)))
    a.e("v_lshlrev_b32 %s, 7, %s" % (v(vt), v(vt)))
    a.e("v_lshrrev_b32 %s, 4, %s" % (v(vt2), v(vl)))
    a.e("v_lshl_add_u32 %s, %s, 4, %s" % (v(vt), v(vt2), v(vt)))
    a.e("s_waitcnt lgkmcnt(0)")
    for i in range(12):
        a.e(pk("v_pk_add_f32", KV + 2 * i, [v(KV + 2 * i, 2), v(ex + 2 * i, 2)]))
    for dt in range(2):
        for et in range(2):
            a.e("buffer_store_dwordx4 %s, %s, %s, %s offen offset:%d" % (v(kvt(dt, et), 4), v(vt), s(SRD_O, 4), s(S_T0), et * 2048 + dt * 64))
    a.e("v_lshlrev_b32 %s, 4, %s" % (v(vt2), v(vt2)))
    a.e("v_add_u32 %s, 4096, %s" % (v(vt2), v(vt2)))
    a.e("s_mov_b32 exec_lo, 0x00010001"); a.e("s_mov_b32 exec_hi, 0x00010001")
    for dt in range(2):
        a.e("buffer_store_dwordx4 %s, %s, %s, %s offen offset:%d" % (v(kvt(dt, 2), 4), v(vt2), s(SRD_O, 4), s(S_T0), dt * 64))
    a.e("s_mov_b64 exec, -1")
    a.lab(l_q)
    R2 = Regs(r.free0, 256)
    aT = R2.get(4); bT = R2.get(4); csT = R2.get(8, 4); bc = R2.get(4, 4); tmp = R2.get(4, 4); pq = R2.get(16, 4); va = R2.get(); vo = R2.get(); vb = R2.get()
    a.e("v_and_b32 %s, 15, %s" % (v(va), v(vl)))
    a.e("v_lshlrev_b32 %s, 2, %s" % (v(va), v(va)))
    a.e("s_lshl_b32 %s, %s, 8" % (s(S_T0), s(S_WM)))
    a.e("s_add_u32 %s, %s, %d" % (s(S_T0), s(S_T0), c.XTRA))
    a.e("v_add_u32 %s, %s, %s" % (v(va), s(S_T0), v(va)))
    for tt in range(4):
        a.e("ds_read_b32 %s, %s offset:%d" % (v(aT + tt), v(va), A_OFF + 64 * tt))
        a.e("ds_read_b32 %s, %s offset:%d" % (v(bT + tt), v(va), B_OFF + 64 * tt))
    a.e("v_lshrrev_b32 %s, 4, %s" % (v(vb), v(vl)))
    a.e("v_lshlrev_b32 %s, 4, %s" % (v(vb), v(vb)))
    a.e("s_lshl_b32 %s, %s, 7" % (s(S_T0), s(S_WN)))
    a.e("s_add_u32 %s, %s, %d" % (s(S_T0), s(S_T0), c.XTRA))
    a.e("v_add_u32 %s, %s, %s" % (v(vb), s(S_T0), v(vb)))
    for j in range(2):
        a.e("ds_read_b128 %s, %s offset:%d" % (v(csT + 4 * j, 4), v(vb), CS_OFF + 64 * j))
    mk_srd(a, SRD_O, c.pqbuf)
    lane_col_off(a, vo, vl, vt)
    a.e("v_and_b32 %s, 15, %s" % (v(vt), v(vl)))
    a.e("v_lshl_add_u32 %s, %s, 11, %s" % (v(vo), v(vt), v(vo)))
    a.e("s_lshl_b32 %s, %s, 7" % (s(S_T0), s(S_MT)))
    a.e("s_lshl_b32 %s, %s, 6" % (s(S_T1), s(S_WM)))
    a.e("s_add_u32 %s, %s, %s" % (s(S_T0), s(S_T0), s(S_T1)))
    a.e("s_lshl_b32 %s, %s, 11" % (s(S_T0), s(S_T0)))
    a.e("s_lshl_b32 %s, %s, 7" % (s(S_T1), s(S_NT)))
    a.e("s_add_u32 %s, %s, %s" % (s(S_T0), s(S_T0), s(S_T1)))
    a.e("s_lshl_b32 %s, %s, 6" % (s(S_T1), s(S_WN)))
    a.e("s_add_u32 %s, %s, %s" % (s(S_T0), s(S_T0), s(S_T1)))
    a.e("s_waitcnt lgkmcnt(0)")
    for tt in range(4):
        for j in range(2):
            x = acc(j, tt)
            for p in range(2):
                a.e(pk("v_pk_fma_f32", bc + 2 * p, [v(csT + 4 * j + 2 * p, 2), ('v', bT + tt), ('s', C_E)]))
            phi_pairs(a, x, 4, lambda p: ('v', aT + tt), lambda p: v(bc + 2 * p, 2), tmp, C_L, C_E)
            for p in range(2):
                a.e("v_cvt_pk_bf16_f32 %s, %s, %s" % (v(pq + 4 * tt + 2 * j + p), v(x + 2 * p), v(x + 2 * p + 1)))
        for p in range(2):
            a.e("v_permlane16_swap_b32 %s, %s" % (v(pq + 4 * tt + p), v(pq + 4 * tt + 2 + p)))
        a.e("s_add_u32 %s, %s, %d" % (s(S_T1), s(S_T0), tt * 16 * 2048))
        a.e("buffer_store_dwordx4 %s, %s, %s, %s offen" % (v(pq + 4 * tt, 4), v(vo), s(SRD_O, 4), s(S_T1)))

def apply_kernel(a, name, pqbuf, obuf, sc):
    kernel_header(a, name)
    l_end = a.newlab("end")
    a.e("s_cmp_ge_u32 s2, 256"); a.e("s_cbranch_scc1 %s" % l_end)
    load_kernargs(a)
    for i in range(5): stamp(a, sc, i)
    rt_stamp(a, sc, 0)
    a.e("v_lshrrev_b32 v1, 6, v0")
    a.e("v_and_b32 v2, 63, v0")
    a.e("s_and_b32 %s, s2, 31" % s(S_NT))
    a.e("s_lshr_b32 %s, s2, 5" % s(S_MT))
    a.e("v_readfirstlane_b32 %s, v1" % s(S_WAVE))
    a.e("s_waitcnt lgkmcnt(0)")
    mk_srd(a, SRD_S, ('ws', WS_KVP, KVP_B))
    mk_srd(a, SRD_X, pqbuf)
    mk_srd(a, SRD_O, obuf)
    a.e("v_and_b32 v3, 15, v2")
    a.e("v_lshrrev_b32 v4, 4, v2")
    a.e("v_lshlrev_b32 v5, 11, v3")
    a.e("v_lshl_add_u32 v5, v4, 4, v5")
    a.e("s_lshl_b32 %s, %s, 8" % (s(S_T0), s(S_MT)))
    a.e("s_lshl_b32 %s, %s, 6" % (s(S_T1), s(S_WAVE)))
    a.e("s_add_u32 %s, %s, %s" % (s(S_T0), s(S_T0), s(S_T1)))
    a.e("s_lshl_b32 %s, %s, 11" % (s(S_T0), s(S_T0)))
    a.e("s_lshl_b32 %s, %s, 6" % (s(S_T1), s(S_NT)))
    a.e("s_add_u32 %s, %s, %s" % (s(S_T4), s(S_T0), s(S_T1)))
    a.e("v_lshlrev_b32 v6, 7, v3")
    a.e("v_lshl_add_u32 v6, v4, 5, v6")
    a.e("v_lshlrev_b32 v7, 5, v4")
    a.e("v_add_u32 v7, 4096, v7")
    a.e("s_lshl_b32 %s, %s, 7" % (s(S_T0), s(S_WAVE)))
    a.e("s_add_u32 %s, %s, %s" % (s(S_T0), s(S_T0), s(S_NT)))
    a.e("s_mul_i32 %s, %s, %d" % (s(S_T0), s(S_T0), 1056 * 4))
    P = 32
    for m in range(4):
        for et in range(2):
            for i in range(2):
                a.e("buffer_load_dwordx4 %s, v6, %s, %s offen offset:%d" % (v(P + 24 * m + 8 * et + 4 * i, 4), s(SRD_S, 4), s(S_T0), et * 2048 + 16 * i))
        for i in range(2):
            a.e("buffer_load_dwordx4 %s, v7, %s, %s offen offset:%d" % (v(P + 24 * m + 16 + 4 * i, 4), s(SRD_S, 4), s(S_T0), 16 * i))
        if m < 3: a.e("s_add_u32 %s, %s, %d" % (s(S_T0), s(S_T0), 32 * 1056 * 4))
    Q = 8
    for tt in range(4):
        a.e("s_add_u32 %s, %s, %d" % (s(S_T1), s(S_T4), tt * 16 * 2048))
        a.e("buffer_load_dwordx4 %s, v5, %s, %s offen" % (v(Q + 4 * tt, 4), s(SRD_X, 4), s(S_T1)))
    a.e("s_waitcnt vmcnt(4)")
    for m in range(1, 4):
        for i in range(12):
            a.e(pk("v_pk_add_f32", P + 2 * i, [v(P + 2 * i, 2), v(P + 24 * m + 2 * i, 2)]))
    a.e("v_lshlrev_b32 v24, 4, v2")
    a.e("s_mul_i32 %s, %s, 6144" % (s(S_T0), s(S_WAVE)))
    a.e("v_add_u32 v25, %s, v24" % s(S_T0))
    for i in range(6): a.e("ds_write_b128 v25, %s offset:%d" % (v(P + 4 * i, 4), 1024 * i))
    a.e("s_waitcnt lgkmcnt(0)")
    a.e("s_barrier")
    for w in range(4):
        for i in range(6): a.e("ds_read_b128 %s, v24 offset:%d" % (v(P + 24 * w + 4 * i, 4), 6144 * w + 1024 * i))
        if w >= 1: a.e("s_waitcnt lgkmcnt(6)")
    a.e("s_waitcnt lgkmcnt(0)")
    for m in range(1, 4):
        for i in range(12):
            a.e(pk("v_pk_add_f32", P + 2 * i, [v(P + 2 * i, 2), v(P + 24 * m + 2 * i, 2)]))
    F = 128
    for t in range(3):
        for i in range(4):
            a.e("v_cvt_pk_bf16_f32 %s, %s, %s" % (v(F + 4 * t + i), v(P + 8 * t + 2 * i), v(P + 8 * t + 2 * i + 1)))
    a.e("s_waitcnt vmcnt(0)")
    N = 144
    for tt in range(4):
        for t in range(3):
            a.e("v_mfma_f32_16x16x32_bf16 %s, %s, %s, 0" % (v(N + 12 * tt + 4 * t, 4), v(F + 4 * t, 4), v(Q + 4 * tt, 4)))
    lane_col_off(a, 26, 2, 27)
    a.e("v_lshl_add_u32 v26, v3, 11, v26")
    O = 200
    for tt in range(4):
        n = N + 12 * tt
        a.e("v_add_f32 %s, 0x%x, %s" % (v(n + 8), EPS6, v(n + 8)))
        a.e("v_rcp_f32 %s, %s" % (v(n + 8), v(n + 8)))
        for p in range(4):
            a.e(pk("v_pk_mul_f32", n + 2 * p, [v(n + 2 * p, 2), ('v', n + 8)]))
        for p in range(4):
            a.e("v_cvt_pk_bf16_f32 %s, %s, %s" % (v(O + 4 * tt + p), v(n + 2 * p), v(n + 2 * p + 1)))
        for p in range(2):
            a.e("v_permlane16_swap_b32 %s, %s" % (v(O + 4 * tt + p), v(O + 4 * tt + 2 + p)))
        a.e("s_add_u32 %s, %s, %d" % (s(S_T1), s(S_T4), tt * 16 * 2048))
        a.e("buffer_store_dwordx4 %s, v26, %s, %s offen" % (v(O + 4 * tt, 4), s(SRD_O, 4), s(S_T1)))
    write_stamps(a, sc)
    a.lab(l_end)
    a.e("s_endpgm")
    return kernel_desc(name, 216, 102)

def resid_epilogue(a, c, r):
    R = Regs(r.free0, 256)
    vl, vt, vt2 = r.vl, r.vt, r.vt2
    def acc(j, tt): return r.acc + (j * c.TM + tt) * 4
    rs = R.get(16, 4); va = R.get(4); vo = R.get(); vs = R.get(); S = R.get(4, 2); t2 = R.get(4, 2); u = R.get(4, 4); pkd = R.get(16, 4); msk = R.get()
    a.e("v_and_b32 %s, 15, %s" % (v(vt), v(vl)))
    a.e("v_lshrrev_b32 %s, 1, %s" % (v(vt2), v(vt)))
    a.e("v_lshlrev_b32 %s, 7, %s" % (v(vt), v(vt)))
    a.e("s_lshl_b32 %s, %s, 12" % (s(S_T0), s(S_WM)))
    a.e("s_add_u32 %s, %s, %d" % (s(S_T0), s(S_T0), c.XTRA))
    a.e("v_add_u32 %s, %s, %s" % (v(vt), s(S_T0), v(vt)))
    a.e("v_bfe_u32 %s, %s, 4, 1" % (v(vo), v(vl)))
    a.e("v_lshl_add_u32 %s, %s, 3, %s" % (v(vt), v(vo), v(vt)))
    a.e("v_bfe_u32 %s, %s, 5, 1" % (v(vo), v(vl)))
    for t in range(4):
        a.e("v_add_u32 %s, %d, %s" % (v(vs), 2 * t, v(vo)))
        a.e("v_xor_b32 %s, %s, %s" % (v(vs), v(vs), v(vt2)))
        a.e("v_lshl_add_u32 %s, %s, 4, %s" % (v(va + t), v(vs), v(vt)))
    for tt in range(2):
        for t in range(4):
            a.e("ds_read_b64 %s, %s offset:%d" % (v(rs + 8 * tt + 2 * t, 2), v(va + t), 2048 * tt))
    mk_srd(a, SRD_O, c.obuf)
    if c.ostat: mk_srd(a, SRD_S, c.ostat)
    lane_col_off(a, vo, vl, vt)
    a.e("v_and_b32 %s, 15, %s" % (v(vt), v(vl)))
    a.e("v_lshl_add_u32 %s, %s, 11, %s" % (v(vo), v(vt), v(vo)))
    a.e("s_lshl_b32 %s, %s, 7" % (s(S_T0), s(S_MT)))
    a.e("s_lshl_b32 %s, %s, 5" % (s(S_T1), s(S_WM)))
    a.e("s_add_u32 %s, %s, %s" % (s(S_T3), s(S_T0), s(S_T1)))
    a.e("s_lshl_b32 %s, %s, 11" % (s(S_T0), s(S_T3)))
    a.e("s_lshl_b32 %s, %s, 7" % (s(S_T1), s(S_NT)))
    a.e("s_add_u32 %s, %s, %s" % (s(S_T0), s(S_T0), s(S_T1)))
    a.e("v_mov_b32 %s, 0xffff0000" % v(msk))
    a.e("s_waitcnt lgkmcnt(0)")
    for tt in range(2):
        for t in range(4):
            x = acc(t, tt)
            for p in range(2):
                a.e("v_lshlrev_b32 %s, 16, %s" % (v(u + 2 * p), v(rs + 8 * tt + 2 * t + p)))
                a.e("v_and_b32 %s, %s, %s" % (v(u + 2 * p + 1), v(msk), v(rs + 8 * tt + 2 * t + p)))
            for p in range(2):
                a.e(pk("v_pk_add_f32", x + 2 * p, [v(x + 2 * p, 2), v(u + 2 * p, 2)]))
            for p in range(2):
                a.e("v_cvt_pk_bf16_f32 %s, %s, %s" % (v(pkd + 8 * tt + 2 * t + p), v(x + 2 * p), v(x + 2 * p + 1)))
            if c.ostat:
                for p in range(2):
                    if t == 0 and p == 0:
                        a.e("v_mov_b32 %s, %s" % (v(t2), v(x))); a.e("v_mov_b32 %s, %s" % (v(t2 + 1), v(x + 1)))
                        a.e(pk("v_pk_mul_f32", t2 + 2, [v(x, 2), v(x, 2)]))
                    else:
                        a.e(pk("v_pk_add_f32", t2, [v(t2, 2), v(x + 2 * p, 2)]))
                        a.e(pk("v_pk_fma_f32", t2 + 2, [v(x + 2 * p, 2), v(x + 2 * p, 2), v(t2 + 2, 2)]))
        if c.ostat:
            a.e("v_add_f32 %s, %s, %s" % (v(S + 2 * tt), v(t2), v(t2 + 1)))
            a.e("v_add_f32 %s, %s, %s" % (v(S + 2 * tt + 1), v(t2 + 2), v(t2 + 3)))
        for h in range(2):
            b = pkd + 8 * tt + 4 * h
            for p in range(2):
                a.e("v_permlane16_swap_b32 %s, %s" % (v(b + p), v(b + 2 + p)))
            a.e("s_add_u32 %s, %s, %d" % (s(S_T1), s(S_T0), tt * 16 * 2048))
            a.e("buffer_store_dwordx4 %s, %s, %s, %s offen offset:%d" % (v(b, 4), v(vo), s(SRD_O, 4), s(S_T1), 64 * h))
    if c.ostat:
        for sw in ("v_permlane16_swap_b32", "v_permlane32_swap_b32"):
            for i in range(4): a.e("v_mov_b32 %s, %s" % (v(u + i), v(S + i)))
            for i in range(4): a.e("%s %s, %s" % (sw, v(u + i), v(S + i)))
            for i in range(4): a.e("v_add_f32 %s, %s, %s" % (v(S + i), v(S + i), v(u + i)))
        a.e("v_and_b32 %s, 15, %s" % (v(vt), v(vl)))
        a.e("v_lshlrev_b32 %s, 7, %s" % (v(vt), v(vt)))
        a.e("s_lshl_b32 %s, %s, 7" % (s(S_T0), s(S_T3)))
        a.e("s_lshl_b32 %s, %s, 3" % (s(S_T1), s(S_NT)))
        a.e("s_add_u32 %s, %s, %s" % (s(S_T0), s(S_T0), s(S_T1)))
        a.e("s_mov_b64 exec, 0xffff")
        for tt in range(2):
            a.e("buffer_store_dwordx2 %s, %s, %s, %s offen offset:%d" % (v(S + 2 * tt, 2), v(vt), s(SRD_S, 4), s(S_T0), 2048 * tt))
        a.e("s_mov_b64 exec, -1")

def w1_epilogue(a, c, r):
    R = Regs(r.free0, 256)
    vl, vt, vt2 = r.vl, r.vt, r.vt2
    C_N = S_C0; C_1 = S_C0 + 2
    a.e("s_mov_b32 %s, 0x%x" % (s(C_N), NLOG2E)); a.e("s_mov_b32 %s, 1.0" % s(C_1))
    def acc(j, tt): return r.acc + (j * c.TM + tt) * 4
    aT = R.get(4); bT = R.get(4); cs = R.get(28, 4); bc = R.get(4, 4); tmp = R.get(4, 4); pkd = R.get(16, 4); va = R.get(); vb = R.get(); vo = R.get(); vh = R.get()
    a.e("v_and_b32 %s, 15, %s" % (v(va), v(vl)))
    a.e("v_lshlrev_b32 %s, 2, %s" % (v(va), v(va)))
    a.e("s_lshl_b32 %s, %s, 8" % (s(S_T0), s(S_WM)))
    a.e("s_add_u32 %s, %s, %d" % (s(S_T0), s(S_T0), c.XTRA))
    a.e("v_add_u32 %s, %s, %s" % (v(va), s(S_T0), v(va)))
    for tt in range(4):
        a.e("ds_read_b32 %s, %s offset:%d" % (v(aT + tt), v(va), A_OFF + 64 * tt))
        a.e("ds_read_b32 %s, %s offset:%d" % (v(bT + tt), v(va), B_OFF + 64 * tt))
    a.e("v_lshrrev_b32 %s, 4, %s" % (v(vb), v(vl)))
    a.e("v_lshlrev_b32 %s, 4, %s" % (v(vb), v(vb)))
    a.e("v_add_u32 %s, %d, %s" % (v(vb), c.XTRA + CS_OFF, v(vb)))
    a.e("s_lshl_b32 %s, %s, 6" % (s(S_T0), s(S_WN)))
    a.e("v_add_u32 %s, %s, %s" % (v(vh), s(S_T0), v(vb)))
    a.e("s_lshl_b32 %s, %s, 7" % (s(S_T0), s(S_WN)))
    a.e("v_add_u32 %s, %s, %s" % (v(vb), s(S_T0), v(vb)))
    a.e("s_waitcnt lgkmcnt(0)")
    for j, (si, ai) in enumerate(c.ct):
        if c.segs[si] == 'full': a.e("ds_read_b128 %s, %s offset:%d" % (v(cs + 4 * j, 4), v(vb), 256 * si + 64 * ai))
        else: a.e("ds_read_b128 %s, %s offset:%d" % (v(cs + 4 * j, 4), v(vh), 768))
    mk_srd(a, SRD_O, c.obuf)
    wcol_base(a, c, S_T2, S_HALFOFF)
    lane_col_off(a, vo, vl, vt)
    a.e("v_and_b32 %s, 15, %s" % (v(vt), v(vl)))
    a.e("v_mul_u32_u24 %s, 7168, %s" % (v(vt), v(vt)))
    a.e("v_add_u32 %s, %s, %s" % (v(vo), v(vo), v(vt)))
    a.e("s_lshl_b32 %s, %s, 6" % (s(S_T0), s(S_WN)))
    a.e("v_add_u32 %s, %s, %s" % (v(vo), s(S_T0), v(vo)))
    a.e("v_lshrrev_b32 %s, 4, %s" % (v(vh), v(vl)))
    a.e("v_lshl_add_u32 %s, %s, 3, %s" % (v(vh), v(vh), v(vt)))
    a.e("s_lshl_b32 %s, %s, 5" % (s(S_T0), s(S_WN)))
    a.e("s_add_u32 %s, %s, %s" % (s(S_T0), s(S_T0), s(S_HALFOFF)))
    a.e("s_add_u32 %s, %s, %s" % (s(S_T0), s(S_T0), s(S_T2)))
    a.e("v_add_u32 %s, %s, %s" % (v(vh), s(S_T0), v(vh)))
    a.e("v_add_u32 %s, %s, %s" % (v(vo), s(S_T2), v(vo)))
    a.e("s_lshl_b32 %s, %s, 7" % (s(S_T0), s(S_MT)))
    a.e("s_lshl_b32 %s, %s, 6" % (s(S_T1), s(S_WM)))
    a.e("s_add_u32 %s, %s, %s" % (s(S_T0), s(S_T0), s(S_T1)))
    a.e("s_mul_i32 %s, %s, 7168" % (s(S_T0), s(S_T0)))
    a.e("s_waitcnt lgkmcnt(0)")
    def silu(x, j, tt):
        for p in range(2):
            a.e(pk("v_pk_mul_f32", bc + 2 * p, [v(cs + 4 * j + 2 * p, 2), ('v', bT + tt)]))
        for p in range(2):
            a.e(pk("v_pk_fma_f32", x + 2 * p, [v(x + 2 * p, 2), ('v', aT + tt), v(bc + 2 * p, 2)]))
        for p in range(2):
            a.e(pk("v_pk_mul_f32", tmp + 2 * p, [v(x + 2 * p, 2), ('s', C_N)]))
        for i in range(4): a.e("v_exp_f32 %s, %s" % (v(tmp + i), v(tmp + i)))
        for p in range(2):
            a.e(pk("v_pk_add_f32", tmp + 2 * p, [v(tmp + 2 * p, 2), ('s', C_1)]))
        for i in range(4): a.e("v_rcp_f32 %s, %s" % (v(tmp + i), v(tmp + i)))
        for p in range(2):
            a.e(pk("v_pk_mul_f32", x + 2 * p, [v(x + 2 * p, 2), v(tmp + 2 * p, 2)]))
    k = 0
    for tt in range(4):
        a.e("s_add_u32 %s, %s, %d" % (s(S_T1), s(S_T0), tt * 16 * 7168))
        for si in range(3):
            b = pkd + 4 * (k & 3); k += 1
            for ai in range(2):
                j = 2 * si + ai; x = acc(j, tt)
                silu(x, j, tt)
                for p in range(2):
                    a.e("v_cvt_pk_bf16_f32 %s, %s, %s" % (v(b + 2 * ai + p), v(x + 2 * p), v(x + 2 * p + 1)))
            for p in range(2):
                a.e("v_permlane16_swap_b32 %s, %s" % (v(b + p), v(b + 2 + p)))
            a.e("buffer_store_dwordx4 %s, %s, %s, %s offen offset:%d" % (v(b, 4), v(vo), s(SRD_O, 4), s(S_T1), 128 * si))
        x = acc(6, tt); b = pkd + 4 * (k & 3); k += 1
        silu(x, 6, tt)
        for p in range(2):
            a.e("v_cvt_pk_bf16_f32 %s, %s, %s" % (v(b + p), v(x + 2 * p), v(x + 2 * p + 1)))
        a.e("buffer_store_dwordx2 %s, %s, %s, %s offen" % (v(b, 2), v(vh), s(SRD_O, 4), s(S_T1)))

def cfg_qkv(name, xbuf, stb, **kw):
    return Cfg(name=name, K=1024, xbuf=xbuf, x_pitch=2048, wbuf=('wqkv', 0, 1024 * 6144), w_pitch=6144,
               segs=['full'] * 3, w_seg_bytes=[0, 2048, 4096], w_ntile_bytes=128, NS=3, WM=2, WN=2, map=map_8x4, orient='TTNNNN',
               stbuf=stb, pqbuf=('ws', WS_PQ, ACT), pre=ln_pre, pre3=ln_pre3, xtra=2048 + 12288, **kw)
def cfg_w1(name, xbuf, stb, **kw):
    return Cfg(name=name, K=1024, xbuf=xbuf, x_pitch=2048, wbuf=('w1', 0, 1024 * 7168), w_pitch=7168,
               segs=['full'] * 3 + ['half'], w_seg_bytes=[0, 128, 256], w_ntile_bytes=448, NS=3, WM=2, WN=2, map=map_8x4, orient='T' * 7,
               stbuf=stb, obuf=('ws', WS_H, HB), pre=ln_pre, pre3=ln_pre3, xtra=2048, **kw)
def cfg_res(name, K, xbuf, xp, wname, resid, obuf, ostat, idx, **kw):
    return Cfg(name=name, K=K, xbuf=xbuf, x_pitch=xp, wbuf=(wname, 0, K * 2048), w_pitch=2048,
               segs=['full'], w_seg_bytes=[0], w_ntile_bytes=128, NS=6, WM=4, WN=1, SUBS=2, map=map_4x8, orient='TTTT',
               resid=resid, obuf=obuf, ostat=ostat, xtra=16384, **kw)

def build(path, upto=None, stamps=False, header="", opt=None):
    opt = opt or {}
    a = Asm()
    descs = []; launches = []
    X0 = ('x', 0, ACT); X1 = ('ws', WS_X1, ACT); X2 = ('ws', WS_X2, ACT); X3 = ('ws', WS_X3, ACT); OUT = ('out', 0, ACT)
    PQ = ('ws', WS_PQ, ACT); O = ('ws', WS_O, ACT); H = ('ws', WS_H, HB)
    a.raw('.amdgcn_target "amdgcn-amd-amdhsa--gfx950"'); a.raw(".text")
    def sb(): return ('ws', WS_STAMP + len(launches) * 65536, 65536)
    descs.append(p0_kernel(a, "p0_kernel", SC(stamps, 0))); launches.append(("p0_kernel", 256, 256, 1024))
    for L in range(2):
        xin = X0 if L == 0 else X2
        xmid = X1 if L == 0 else X3
        xout = X2 if L == 0 else OUT
        c = cfg_qkv("qkv%d_kernel" % L, xin, stbuf(2 * L), stamps=stamps, stampbuf=sb(), **opt.get('qkv', {}))
        gemm_kernel(a, c, qkv_epilogue); descs.append(kernel_desc(c.name, 256, 102)); launches.append((c.name, 256, 512, c.lds))
        n = "apply%d_kernel" % L
        descs.append(apply_kernel(a, n, PQ, O, SC(stamps, len(launches)))); launches.append((n, 256, 256, 24576))
        c = cfg_res("wo%d_kernel" % L, 1024, O, 2048, 'wo', xin, xmid, stbuf(2 * L + 1), 2, stamps=stamps, stampbuf=sb(), **opt.get('wo', {}))
        gemm_kernel(a, c, resid_epilogue); descs.append(kernel_desc(c.name, 256, 102)); launches.append((c.name, 256, 512, c.lds))
        c = cfg_w1("w1%d_kernel" % L, xmid, stbuf(2 * L + 1), stamps=stamps, stampbuf=sb(), **opt.get('w1', {}))
        gemm_kernel(a, c, w1_epilogue); descs.append(kernel_desc(c.name, 256, 102)); launches.append((c.name, 256, 512, c.lds))
        c = cfg_res("w2%d_kernel" % L, 3584, H, 7168, 'w2', xmid, xout, stbuf(2) if L == 0 else None, 3, stamps=stamps, stampbuf=sb(), **opt.get('w2', {}))
        gemm_kernel(a, c, resid_epilogue); descs.append(kernel_desc(c.name, 256, 102)); launches.append((c.name, 256, 512, c.lds))
    a.raw('.section .rodata,"a"')
    for d in descs: a.raw(d)
    if upto: launches = launches[:upto]
    head = header + "".join("; @launch kernel=%s grid=(%d,1,1) block=(%d,1,1) lds=%d\n" % l for l in launches)
    open(path, 'w').write(head + a.text())
    return launches

if __name__ == '__main__':
    ref = open('interleave_layers__linear_attn_block__dense_activation_silu__prompt.s.ref').read().split('\n')
    hdr = "\n".join(l for l in ref[:10] if l.startswith(';') and '@launch' not in l and 'Override' not in l and 'grid=ceil' not in l) + "\n"
    out = sys.argv[1] if len(sys.argv) > 1 else 'interleave_layers__linear_attn_block__dense_activation_silu__prompt.s'
    print(build(out, header=hdr))
```

```python
import sys; sys.path.insert(0, 'gen')
from core import *
import full
from full import pk, lane_col_off, p0_kernel, SC, MB, ACT, HB, KVP_B, ST_B, CS_B, LOG2E, NLOG2E, EPS6, EPS5

WS_X1 = 0; WS_X2 = 5 * MB; WS_X3 = 10 * MB
WS_O = [15 * MB, 20 * MB]; WS_H = [66 * MB, 82 * MB]; WS_KVP = [52 * MB, 56 * MB]
WS_ST = full.WS_ST; WS_CS = full.WS_CS
WS_ST = 60 * MB; WS_CS = 62 * MB; WS_FLAG = 63 * MB; WS_STAMP = 64 * MB
full.WS_ST = WS_ST; full.WS_CS = WS_CS
def stbuf(i): return ('ws', WS_ST + i * ST_B, ST_B)
FLAG_B = 1 << 20
CSQ = ('ws', WS_CS, 16 * 3072 * 4); CSU = ('ws', WS_CS + 262144, 16 * 3584 * 4)
CSQF = ('ws', WS_CS + 524288, 3072 * 4); CSUF = ('ws', WS_CS + 524288 + 16384, 3584 * 4)
F_C = 50
def foffc(): return 10 * 65536
F_K, F_O, F_X1, F_H, F_X = 0, 1, 2, 3, 4
def foff(kind, L): return (L * 5 + kind) * 65536

L_X7 = 131072; L_KVX = 122880; L_AEX = 122880; L_RES = 135168; L_STAT = 151552; L_CS = L_STAT + 3072; L_CNT = 155648; LDS_TOTAL = 155776
SRD_F = 88
SPIN_MAX = 400000

class G:
    stprio = 0
    bst = True
    HP = 7168
    XP = 2048

class M:
    stamps = False
    filt = None
    itphase = None
    detail = False

def tstamp(a, name, names, clk=False):
    if not M.stamps: return
    if M.filt and not M.filt(name): return
    i = len(names); names.append(name)
    assert i < 63
    a.e("s_memrealtime s[96:97]")
    if clk: a.e("s_memtime s[98:99]")
    a.e("s_waitcnt lgkmcnt(0)")
    a.e("v_writelane_b32 v255, s96, %d" % i)
    if clk:
        names.append(name + "#clk")
        a.e("v_writelane_b32 v255, s98, %d" % (i + 1))

def flush_stamps(a, role):
    if not M.stamps: return
    mk_srd(a, SRD_Q, ('ws', WS_STAMP, 256 * 8 * 256))
    a.e("s_lshl_b32 %s, s2, 11" % s(S_T0))
    a.e("s_add_u32 %s, %s, %d" % (s(S_T1), s(S_WAVE), 4 * role))
    a.e("s_lshl_b32 %s, %s, 8" % (s(S_T1), s(S_T1)))
    a.e("s_add_u32 %s, %s, %s" % (s(S_T0), s(S_T0), s(S_T1)))
    a.e("v_and_b32 v1, 63, v0"); a.e("v_lshlrev_b32 v1, 2, v1")
    a.e("buffer_store_dword v255, v1, %s, %s offen" % (s(SRD_Q, 4), s(S_T0)))

def poll(a, off_sreg_setup, nslots, vl, vt, code):
    off_sreg_setup()
    lab = a.newlab("poll"); done = a.newlab("polld")
    a.e("v_and_b32 %s, %d, %s" % (v(vt), nslots - 1, v(vl)))
    a.e("v_lshlrev_b32 %s, 7, %s" % (v(vt), v(vt)))
    a.e("s_mov_b32 %s, %d" % (s(S_T4), SPIN_MAX))
    a.lab(lab)
    a.e("buffer_load_dword %s, %s, %s, %s offen sc1" % (v(vt + 1), v(vt), s(SRD_F, 4), s(S_T3)))
    a.e("s_waitcnt vmcnt(0)")
    a.e("v_cmp_ne_u32 vcc, 0, %s" % v(vt + 1))
    a.e("s_cmp_eq_u64 vcc, -1")
    a.e("s_cbranch_scc1 %s" % done)
    a.e("s_sleep 1")
    a.e("s_sub_u32 %s, %s, 1" % (s(S_T4), s(S_T4)))
    a.e("s_cmp_lg_u32 %s, 0" % s(S_T4))
    a.e("s_cbranch_scc1 %s" % lab)
    a.e("s_mov_b32 %s, %s" % (s(SRD_Q), s(ptr('dbg')))); a.e("s_mov_b32 %s, %s" % (s(SRD_Q + 1), s(ptr('dbg') + 1)))
    a.e("s_mov_b32 %s, 256" % s(SRD_Q + 2)); a.e("s_mov_b32 %s, 0x20000" % s(SRD_Q + 3))
    a.e("v_mov_b32 %s, %d" % (v(vt + 1), code)); a.e("v_mov_b32 %s, 0" % v(vt))
    a.e("buffer_store_dword %s, %s, %s, 0 offen" % (v(vt + 1), v(vt), s(SRD_Q, 4)))
    a.lab(done)

def set_flag(a, off_setup, vt):
    off_setup()
    a.e("s_waitcnt vmcnt(0)")
    a.e("v_mov_b32 %s, 1" % v(vt)); a.e("v_mov_b32 %s, 0" % v(vt + 1))
    a.e("s_mov_b64 exec, 1")
    a.e("buffer_store_dword %s, %s, %s, %s offen sc1" % (v(vt), v(vt + 1), s(SRD_F, 4), s(S_T3)))
    a.e("s_mov_b64 exec, -1")

def set_flag_wg(a, off_setup, vt):
    sk = a.newlab("nf")
    a.e("s_waitcnt vmcnt(0)")
    a.e("v_mov_b32 %s, 1" % v(vt)); a.e("v_mov_b32 %s, %d" % (v(vt + 1), L_CNT))
    a.e("s_mov_b64 exec, 1")
    a.e("ds_add_rtn_u32 %s, %s, %s" % (v(vt + 1), v(vt + 1), v(vt)))
    a.e("s_waitcnt lgkmcnt(0)")
    a.e("v_readfirstlane_b32 %s, %s" % (s(S_T4), v(vt + 1)))
    a.e("s_and_b32 %s, %s, 3" % (s(S_T4), s(S_T4)))
    a.e("s_cmp_eq_u32 %s, 3" % s(S_T4)); a.e("s_cbranch_scc0 %s" % sk)
    off_setup()
    a.e("v_mov_b32 %s, 0" % v(vt + 1))
    a.e("buffer_store_dword %s, %s, %s, %s offen sc1" % (v(vt), v(vt + 1), s(SRD_F, 4), s(S_T3)))
    a.lab(sk)
    a.e("s_mov_b64 exec, -1")

def flag_off(a, kind, L, row_s, slot_expr=None):
    a.e("s_lshl_b32 %s, %s, 12" % (s(S_T3), s(row_s)))
    a.e("s_add_u32 %s, %s, %d" % (s(S_T3), s(S_T3), foff(kind, L)))
    if slot_expr: slot_expr()

class LRegs: pass

def loader_setup(a, c, lr):
    vl, vt, vt2 = lr.vl, lr.vt, lr.vt2
    vx, vw, vr = lr.vx, lr.vw, lr.vr
    c.map(a)
    mk_srd(a, SRD_X, c.xbuf); mk_srd(a, SRD_W, c.wbuf); mk_srd(a, SRD_R, c.tailbuf)
    a.e("s_lshl_b32 %s, %s, 4" % (s(S_T0), s(S_WAVE)))
    a.e("s_mul_i32 %s, %s, %d" % (s(S_T0), s(S_T0), c.w_pitch))
    wcol_base(a, c, S_T1, S_HALFOFF)
    a.e("s_add_u32 %s, %s, %s" % (s(S_T0), s(S_T0), s(S_T1)))
    a.e("v_lshrrev_b32 %s, 3, %s" % (v(vt), v(vl)))
    a.e("v_mul_u32_u24 %s, %d, %s" % (v(vt), c.w_pitch, v(vt)))
    a.e("v_add_u32 %s, %s, %s" % (v(vt), s(S_T0), v(vt)))
    for jj in range(2):
        a.e("v_lshrrev_b32 %s, 3, %s" % (v(vt2), v(vl)))
        a.e("v_and_b32 %s, 2, %s" % (v(vt2), v(vt2)))
        if jj: a.e("v_add_u32 %s, 4, %s" % (v(vt2), v(vt2)))
        a.e("v_xor_b32 %s, %s, %s" % (v(vt2), v(vl), v(vt2)))
        a.e("v_and_b32 %s, 7, %s" % (v(vt2), v(vt2)))
        for si in range(c.nfull):
            r = vw + 2 * si + jj
            a.e("v_lshl_add_u32 %s, %s, 4, %s" % (v(r), v(vt2), v(vt)))
            off = c.w_seg_bytes[si] + jj * (8 * c.w_pitch - 1024)
            if off: a.e("v_add_u32 %s, 0x%x, %s" % (v(r), off, v(r)))
    if c.nhalf:
        r = vw + 2 * c.nfull
        a.e("v_lshrrev_b32 %s, 2, %s" % (v(vt), v(vl)))
        a.e("v_mul_u32_u24 %s, %d, %s" % (v(vt), c.w_pitch, v(vt)))
        a.e("v_add_u32 %s, %s, %s" % (v(vt), s(S_T0), v(vt)))
        a.e("v_lshrrev_b32 %s, 4, %s" % (v(vt2), v(vl)))
        a.e("v_and_b32 %s, 2, %s" % (v(vt2), v(vt2)))
        a.e("v_xor_b32 %s, %s, %s" % (v(vt2), v(vl), v(vt2)))
        a.e("v_and_b32 %s, 3, %s" % (v(vt2), v(vt2)))
        a.e("v_lshl_add_u32 %s, %s, 4, %s" % (v(r), v(vt2), v(vt)))
        a.e("v_add_u32 %s, %s, %s" % (v(r), s(S_HALFOFF), v(r)))
    a.e("s_lshl_b32 %s, %s, 12" % (s(S_MX), s(S_WAVE)))
    for si in range(c.nfull):
        a.e("s_lshl_b32 %s, %s, 11" % (s(S_MS + si), s(S_WAVE)))
        a.e("s_add_u32 %s, %s, %d" % (s(S_MS + si), s(S_MS + si), c.XB + 8192 * si))
    if c.nhalf:
        a.e("s_lshl_b32 %s, %s, 10" % (s(S_MS + c.nfull), s(S_WAVE)))
        a.e("s_add_u32 %s, %s, %d" % (s(S_MS + c.nfull), s(S_MS + c.nfull), c.XB + 8192 * c.nfull))
    if c.rot:
        a.e("s_add_u32 %s, %s, %s" % (s(S_T0), s(S_MT), s(S_NT)))
        a.e("s_and_b32 %s, %s, 15" % (s(S_T0), s(S_T0)))
        a.e("s_lshl_b32 %s, %s, 7" % (s(S_XOFF), s(S_T0)))
        a.e("s_mul_i32 %s, %s, %d" % (s(S_WOFF), s(S_T0), 64 * c.w_pitch))
    elif getattr(c, 'splitk', False):
        a.e("s_mul_i32 %s, %s, %d" % (s(S_XOFF), s(S_KH), c.K * 2))
        a.e("s_mul_i32 %s, %s, %d" % (s(S_WOFF), s(S_KH), c.K * c.w_pitch))
    else:
        a.e("s_mov_b32 %s, 0" % s(S_XOFF)); a.e("s_mov_b32 %s, 0" % s(S_WOFF))

def issueW(a, c, lr, slot):
    def m0(sreg):
        if slot is None: a.e("s_add_u32 m0, %s, %s" % (s(S_SLOT), s(sreg)))
        else: a.e("s_add_u32 m0, %s, %d" % (s(sreg), slot * c.STG))
        a.e("s_nop 0")
    for si in range(c.nfull):
        m0(S_MS + si)
        for jj in range(2):
            a.e("buffer_load_dwordx4 %s, %s, %s offen offset:%d%s lds" % (v(lr.vw + 2 * si + jj), s(SRD_W, 4), s(S_WOFF), 1024 * jj, c.wflags))
    if c.nhalf:
        m0(S_MS + c.nfull)
        a.e("buffer_load_dwordx4 %s, %s, %s offen%s lds" % (v(lr.vw + 2 * c.nfull), s(SRD_W, 4), s(S_WOFF), c.wflags))
    a.e("s_add_u32 %s, %s, %d" % (s(S_WOFF), s(S_WOFF), 64 * c.w_pitch))
    if c.rot:
        a.e("s_cmp_eq_u32 %s, %d" % (s(S_WOFF), c.K * c.w_pitch))
        a.e("s_cselect_b32 %s, 0, %s" % (s(S_WOFF), s(S_WOFF)))

def issueX(a, c, lr, slot):
    if slot is None: a.e("s_add_u32 m0, %s, %s" % (s(S_SLOT), s(S_MX)))
    else: a.e("s_add_u32 m0, %s, %d" % (s(S_MX), slot * c.STG))
    a.e("s_nop 0")
    for j in range(4):
        a.e("buffer_load_dwordx4 %s, %s, %s offen offset:%d%s lds" % (v(lr.vx + j), s(SRD_X, 4), s(S_XOFF), 1024 * j, c.xflags))
    a.e("s_add_u32 %s, %s, 128" % (s(S_XOFF), s(S_XOFF)))
    if c.rot:
        a.e("s_cmp_eq_u32 %s, %d" % (s(S_XOFF), c.K * 2))
        a.e("s_cselect_b32 %s, 0, %s" % (s(S_XOFF), s(S_XOFF)))

class Job:
    nops = 1
    def setup(self, a, c, lr): pass
    def emit(self, a, c, lr): pass

class JobXW(Job):
    def setup(self, a, c, lr):
        vp = lr.vpf; vt = lr.vt; vl = lr.vl
        lx = a.newlab("jx"); le = a.newlab("je")
        a.e("s_cmp_ge_u32 %s, 2" % s(S_WAVE)); a.e("s_cbranch_scc0 %s" % lx)
        for i in range(4): a.e("s_mov_b32 %s, %s" % (s(SRD_P + i), s(SRD_W + i)))
        a.e("s_bfe_u32 %s, s2, 0x20003" % s(S_T0))
        a.e("s_lshl_b32 %s, %s, 4" % (s(S_T0), s(S_T0)))
        a.e("s_sub_u32 %s, %s, 2" % (s(S_T1), s(S_WAVE)))
        a.e("s_lshl_b32 %s, %s, 8" % (s(S_T1), s(S_T1)))
        a.e("s_add_u32 %s, %s, %s" % (s(S_T0), s(S_T0), s(S_T1)))
        a.e("s_add_u32 %s, %s, %d" % (s(S_T0), s(S_T0), c.NS * 64))
        a.e("v_lshrrev_b32 %s, 4, %s" % (v(vt), v(vl)))
        a.e("v_lshlrev_b32 %s, 6, %s" % (v(vt), v(vt)))
        a.e("v_and_b32 %s, 15, %s" % (v(vp), v(vl)))
        a.e("v_add_u32 %s, %s, %s" % (v(vp), v(vp), v(vt)))
        a.e("v_add_u32 %s, %s, %s" % (v(vp), s(S_T0), v(vp)))
        a.e("v_mul_u32_u24 %s, %d, %s" % (v(vp), c.w_pitch, v(vp)))
        a.e("s_lshl_b32 %s, %s, 7" % (s(S_T0), s(S_NT)))
        a.e("v_add_u32 %s, %s, %s" % (v(vp), s(S_T0), v(vp)))
        a.e("s_mov_b32 %s, %d" % (s(S_PFINC), 8 * 64 * c.w_pitch))
        a.e("s_branch %s" % le)
        a.lab(lx)
        for i in range(4): a.e("s_mov_b32 %s, %s" % (s(SRD_P + i), s(SRD_X + i)))
        a.e("s_lshr_b32 %s, s2, 5" % s(S_T0))
        a.e("s_lshl_b32 %s, %s, 4" % (s(S_T0), s(S_T0)))
        a.e("s_lshl_b32 %s, %s, 7" % (s(S_T1), s(S_MT)))
        a.e("s_add_u32 %s, %s, %s" % (s(S_T0), s(S_T0), s(S_T1)))
        a.e("v_and_b32 %s, 15, %s" % (v(vp), v(vl)))
        a.e("v_add_u32 %s, %s, %s" % (v(vp), s(S_T0), v(vp)))
        a.e("v_mul_u32_u24 %s, %d, %s" % (v(vp), c.x_pitch, v(vp)))
        a.e("v_lshrrev_b32 %s, 4, %s" % (v(vt), v(vl)))
        a.e("s_lshl_b32 %s, %s, 2" % (s(S_T0), s(S_WAVE)))
        a.e("v_add_u32 %s, %s, %s" % (v(vt), s(S_T0), v(vt)))
        a.e("v_lshl_add_u32 %s, %s, 7, %s" % (v(vp), v(vt), v(vp)))
        a.e("s_mov_b32 %s, %d" % (s(S_PFINC), 8 * 128))
        a.lab(le)
        a.e("s_mov_b32 %s, 0" % s(S_PFOFF))
    def emit(self, a, c, lr):
        a.e("buffer_load_dword %s, %s, %s, %s offen sc1" % (v(lr.vd), v(lr.vpf), s(SRD_P, 4), s(S_PFOFF)))
        a.e("s_add_u32 %s, %s, %s" % (s(S_PFOFF), s(S_PFOFF), s(S_PFINC)))

class JobWbulk(Job):
    nops = 2
    def setup(self, a, c, lr): pass
    def emit(self, a, c, lr):
        vp = lr.vpf; vt = lr.vt; vl = lr.vl
        a.e("s_bfe_u32 %s, s2, 0x30003" % s(S_T0))
        a.e("s_lshl_b32 %s, %s, 7" % (s(S_T0), s(S_T0)))
        a.e("s_lshl_b32 %s, %s, 5" % (s(S_T1), s(S_WAVE)))
        a.e("s_add_u32 %s, %s, %s" % (s(S_T0), s(S_T0), s(S_T1)))
        a.e("v_and_b32 %s, 31, %s" % (v(vp), v(vl)))
        a.e("v_add_u32 %s, %s, %s" % (v(vp), s(S_T0), v(vp)))
        a.e("v_mul_u32_u24 %s, %d, %s" % (v(vp), c.w_pitch, v(vp)))
        wcol_base(a, c, S_T0, S_HALFOFF)
        a.e("v_add_u32 %s, %s, %s" % (v(vp), s(S_T0), v(vp)))
        step = c.w_seg_bytes[1]
        a.e("v_lshrrev_b32 %s, 5, %s" % (v(vt), v(vl)))
        a.e("v_mul_u32_u24 %s, %d, %s" % (v(vt), step, v(vt)))
        a.e("v_add_u32 %s, %s, %s" % (v(vt), v(vt), v(vp)))
        a.e("buffer_load_dword %s, %s, %s, 0 offen" % (v(lr.vd), v(vt), s(SRD_W, 4)))
        if c.nhalf:
            a.e("v_lshrrev_b32 %s, 5, %s" % (v(vt), v(vl)))
            a.e("s_sub_u32 %s, %s, %d" % (s(S_T0), s(S_HALFOFF), 2 * step))
            a.e("v_mul_lo_u32 %s, %s, %s" % (v(vt), v(vt), s(S_T0)))
            a.e("v_add_u32 %s, %s, %s" % (v(vt), v(vt), v(vp)))
            a.e("v_add_u32 %s, %d, %s" % (v(vt), 2 * step, v(vt)))
        else:
            a.e("v_add_u32 %s, %d, %s" % (v(vt), 2 * step, v(vp)))
        a.e("buffer_load_dword %s, %s, %s, 0 offen" % (v(lr.vd), v(vt), s(SRD_W, 4)))

class JobWarm(Job):
    def __init__(self, buf, per_wave, shift): self.buf = buf; self.pw = per_wave; self.shift = shift
    def emit(self, a, c, lr):
        vt = lr.vt; vl = lr.vl
        mk_srd(a, SRD_P, self.buf)
        a.e("s_lshl_b32 %s, s2, 2" % s(S_T0)); a.e("s_add_u32 %s, %s, %s" % (s(S_T0), s(S_T0), s(S_WAVE)))
        a.e("s_mul_i32 %s, %s, %d" % (s(S_T0), s(S_T0), self.pw * 128))
        a.e("v_lshrrev_b32 %s, %d, %s" % (v(vt), self.shift, v(vl)))
        a.e("v_min_u32 %s, %d, %s" % (v(vt), self.pw - 1, v(vt)))
        a.e("v_lshlrev_b32 %s, 7, %s" % (v(vt), v(vt)))
        a.e("buffer_load_dword %s, %s, %s, %s offen" % (v(lr.vd), v(vt), s(SRD_P, 4), s(S_T0)))

class JobCond(Job):
    nops = 0
    def __init__(self, jobs, g): self.jobs = jobs; self.g = g
    def __eq__(self, o): return self is o
    def __hash__(self): return id(self)
    def emit(self, a, c, lr):
        sk = a.newlab("jc")
        a.e("s_bfe_u32 %s, s2, 0x30003" % s(S_T0)); a.e("s_cmp_lg_u32 %s, %d" % (s(S_T0), self.g)); a.e("s_cbranch_scc1 %s" % sk)
        for j in self.jobs: j.emit(a, c, lr)
        a.lab(sk)

def dbg_srd(a):
    a.e("s_mov_b32 %s, %s" % (s(SRD_Q), s(ptr('dbg')))); a.e("s_mov_b32 %s, %s" % (s(SRD_Q + 1), s(ptr('dbg') + 1)))
    a.e("s_mov_b32 %s, 256" % s(SRD_Q + 2)); a.e("s_mov_b32 %s, 0x20000" % s(SRD_Q + 3))

class JobZero(Job):
    def emit(self, a, c, lr):
        z = lr.vc16
        for i in range(4): a.e("v_mov_b32 %s, 0" % v(z + i))
        a.e("v_lshlrev_b32 %s, 4, %s" % (v(lr.vt), v(lr.vl)))
        a.e("s_lshl_b32 %s, s2, 2" % s(S_T0)); a.e("s_add_u32 %s, %s, %s" % (s(S_T0), s(S_T0), s(S_WAVE)))
        a.e("s_lshl_b32 %s, %s, 10" % (s(S_T0), s(S_T0)))
        a.e("buffer_store_dwordx4 %s, %s, %s, %s offen sc1" % (v(z, 4), v(lr.vt), s(SRD_F, 4), s(S_T0)))

class JobArrive(Job):
    def __init__(self, kind): self.kind = kind
    def emit(self, a, c, lr):
        l0 = a.newlab("ar0"); l1 = a.newlab("ar1")
        a.e("s_cmp_eq_u32 %s, 0" % s(S_WAVE)); a.e("s_cbranch_scc1 %s" % l0)
        a.e("v_mov_b32 %s, 0" % v(lr.vt))
        a.e("buffer_load_dword %s, %s, %s, 0 offen sc1" % (v(lr.vd), v(lr.vt), s(SRD_F, 4)))
        a.e("s_branch %s" % l1)
        a.lab(l0)
        a.e("v_mov_b32 %s, 1" % v(lr.vt2))
        if self.kind == 'init':
            dbg_srd(a)
            a.e("s_and_b32 %s, s2, 31" % s(S_T0)); a.e("s_lshl_b32 %s, %s, 2" % (s(S_T0), s(S_T0)))
            a.e("v_mov_b32 %s, 0" % v(lr.vt))
            a.e("s_mov_b64 exec, 1")
            a.e("buffer_atomic_add %s, %s, %s, %s offen sc1" % (v(lr.vt2), v(lr.vt), s(SRD_Q, 4), s(S_T0)))
        else:
            a.e("s_lshl_b32 %s, %s, 8" % (s(S_T0), s(S_NT))); a.e("s_lshl_b32 %s, %s, 2" % (s(S_T1), s(S_MT)))
            a.e("s_add_u32 %s, %s, %s" % (s(S_T0), s(S_T0), s(S_T1))); a.e("s_add_u32 %s, %s, %d" % (s(S_T0), s(S_T0), foffc()))
            a.e("v_mov_b32 %s, 0" % v(lr.vt))
            a.e("s_mov_b64 exec, 1")
            a.e("buffer_store_dword %s, %s, %s, %s offen sc1" % (v(lr.vt2), v(lr.vt), s(SRD_F, 4), s(S_T0)))
        a.e("s_mov_b64 exec, -1")
        a.lab(l1)

class JobLazy(Job):
    def __init__(self, kind): self.kind = kind
    def addr(self, a, c, lr):
        if self.kind == 'init':
            dbg_srd(a)
            a.e("v_and_b32 %s, 31, %s" % (v(lr.vt), v(lr.vl))); a.e("v_lshlrev_b32 %s, 2, %s" % (v(lr.vt), v(lr.vt)))
            a.e("s_mov_b32 %s, 0" % s(S_T3))
            return SRD_Q
        a.e("v_and_b32 %s, 15, %s" % (v(lr.vt), v(lr.vl))); a.e("v_lshlrev_b32 %s, 2, %s" % (v(lr.vt), v(lr.vt)))
        a.e("s_lshl_b32 %s, %s, 8" % (s(S_T3), s(S_NT))); a.e("s_add_u32 %s, %s, %d" % (s(S_T3), s(S_T3), foffc()))
        return SRD_F
    def emit(self, a, c, lr):
        srd = self.addr(a, c, lr)
        a.e("buffer_load_dword %s, %s, %s, %s offen sc1" % (v(lr.vlz), v(lr.vt), s(srd, 4), s(S_T3)))
    def ok_cmp(self, a, lr, reg):
        if self.kind == 'init': a.e("v_cmp_le_u32 vcc, 8, %s" % v(reg))
        else: a.e("v_cmp_ne_u32 vcc, 0, %s" % v(reg))
    def check(self, a, c, lr):
        done = a.newlab("lzd"); lab = a.newlab("lzs")
        self.ok_cmp(a, lr, lr.vlz)
        a.e("s_cmp_eq_u64 vcc, -1"); a.e("s_cbranch_scc1 %s" % done)
        srd = self.addr(a, c, lr)
        a.e("s_mov_b32 %s, %d" % (s(S_T4), SPIN_MAX))
        a.lab(lab)
        a.e("buffer_load_dword %s, %s, %s, %s offen sc1" % (v(lr.vlz), v(lr.vt), s(srd, 4), s(S_T3)))
        a.e("s_waitcnt vmcnt(0)")
        self.ok_cmp(a, lr, lr.vlz)
        a.e("s_cmp_eq_u64 vcc, -1"); a.e("s_cbranch_scc1 %s" % done)
        a.e("s_sleep 1")
        a.e("s_sub_u32 %s, %s, 1" % (s(S_T4), s(S_T4))); a.e("s_cmp_lg_u32 %s, 0" % s(S_T4)); a.e("s_cbranch_scc1 %s" % lab)
        dbg_srd(a)
        a.e("v_mov_b32 %s, 0x300" % v(lr.vlz)); a.e("v_mov_b32 %s, 252" % v(lr.vt))
        a.e("buffer_store_dword %s, %s, %s, 0 offen" % (v(lr.vlz), v(lr.vt), s(SRD_Q, 4)))
        a.lab(done)

def cs_loads(a, c, lr):
    t = lr.vt; u = lr.vt2; vl = lr.vl
    mk_srd(a, SRD_P, ((CSU if c.nhalf else CSQ) if c.L == 0 else (CSUF if c.nhalf else CSQF)))
    a.e("v_and_b32 %s, 0xff, v0" % v(lr.vcs))
    if c.nhalf == 0:
        a.e("v_lshrrev_b32 %s, 6, %s" % (v(t), v(lr.vcs)))
        a.e("v_lshlrev_b32 %s, 10, %s" % (v(t), v(t)))
        a.e("v_and_b32 %s, 63, %s" % (v(u), v(lr.vcs)))
        a.e("v_add_u32 %s, %s, %s" % (v(t), v(t), v(u)))
        a.e("s_lshl_b32 %s, %s, 6" % (s(S_T0), s(S_NT)))
        a.e("v_add_u32 %s, %s, %s" % (v(t), s(S_T0), v(t)))
        a.e("v_lshlrev_b32 %s, 2, %s" % (v(t), v(t)))
        a.e("v_min_u32 %s, %d, %s" % (v(t), 3071 * 4, v(t)))
        stride = 3072 * 4
    else:
        wcol_base(a, c, S_T0, S_HALFOFF)
        a.e("s_add_u32 %s, %s, %s" % (s(S_T1), s(S_T0), s(S_HALFOFF)))
        a.e("s_sub_u32 %s, %s, 384" % (s(S_T1), s(S_T1)))
        a.e("v_mov_b32 %s, %s" % (v(t), s(S_T0)))
        a.e("v_mov_b32 %s, %s" % (v(u), s(S_T1)))
        a.e("v_cmp_le_u32 vcc, 192, %s" % v(lr.vcs))
        a.e("v_cndmask_b32 %s, %s, %s, vcc" % (v(t), v(t), v(u)))
        a.e("v_lshl_add_u32 %s, %s, 1, %s" % (v(t), v(lr.vcs), v(t)))
        a.e("v_lshlrev_b32 %s, 1, %s" % (v(t), v(t)))
        a.e("v_min_u32 %s, %d, %s" % (v(t), 3583 * 4, v(t)))
        stride = 3584 * 4
    a.e("v_mov_b32 %s, %s" % (v(lr.vca), v(t)))
    if c.L == 1:
        a.e("buffer_load_dword %s, %s, %s, 0 offen sc1" % (v(lr.vc16), v(t), s(SRD_P, 4)))
        return
    a.e("s_mov_b32 %s, 0" % s(S_T0))
    for i in range(16):
        a.e("buffer_load_dword %s, %s, %s, %s offen sc1" % (v(lr.vc16 + i), v(t), s(SRD_P, 4), s(S_T0)))
        if i < 15: a.e("s_add_u32 %s, %s, %d" % (s(S_T0), s(S_T0), stride))

def st_loads(a, c, lr):
    mk_srd(a, SRD_R, c.tailbuf)
    t = lr.vt; u = lr.vt2
    a.e("v_and_b32 %s, 0xff, v0" % v(u))
    a.e("v_lshrrev_b32 %s, 1, %s" % (v(t), v(u)))
    a.e("v_lshlrev_b32 %s, 3, %s" % (v(t), v(t)))
    a.e("v_and_b32 %s, 1, %s" % (v(u), v(u)))
    a.e("v_lshl_add_u32 %s, %s, 17, %s" % (v(t), v(u), v(t)))
    a.e("s_lshl_b32 %s, %s, 10" % (s(S_T0), s(S_MT)))
    for i in range(8):
        a.e("buffer_load_dwordx2 %s, %s, %s, %s offen sc1" % (v(lr.vs16 + 2 * i, 2), v(t), s(SRD_R, 4), s(S_T0)))
        if i < 7: a.e("s_add_u32 %s, %s, 16384" % (s(S_T0), s(S_T0)))

def st_finish(a, c, lr):
    D = lr.vs16; S = lr.vs16 + 4; t = lr.vt
    for st in (4, 2, 1):
        for i in range(st):
            a.e("v_add_f32 %s, %s, %s" % (v(D + 2 * i), v(D + 2 * i), v(D + 2 * (i + st))))
            a.e("v_add_f32 %s, %s, %s" % (v(D + 2 * i + 1), v(D + 2 * i + 1), v(D + 2 * (i + st) + 1)))
    for i in range(2):
        a.e("v_add_f32_dpp %s, %s, %s quad_perm:[1,0,3,2] row_mask:0xf bank_mask:0xf" % (v(D + i), v(D + i), v(D + i)))
    a.e("v_mul_f32 %s, 0xba800000, %s" % (v(S), v(D)))
    a.e("v_mul_f32 %s, 0x3a800000, %s" % (v(S + 1), v(D + 1)))
    a.e("v_fma_f32 %s, -%s, %s, %s" % (v(S + 1), v(S), v(S), v(S + 1)))
    a.e("v_max_f32 %s, 0, %s" % (v(S + 1), v(S + 1)))
    a.e("v_add_f32 %s, 0x%x, %s" % (v(S + 1), EPS5, v(S + 1)))
    a.e("v_rsq_f32 %s, %s" % (v(S + 2), v(S + 1)))
    a.e("v_and_b32 %s, 0xfe, v0" % v(t))
    a.e("v_lshlrev_b32 %s, 1, %s" % (v(t), v(t)))
    a.e("v_add_u32 %s, %d, %s" % (v(t), L_STAT, v(t)))
    a.e("ds_write_b32 %s, %s" % (v(t), v(S)))
    if c.kind == 'q':
        a.e("ds_write_b32 %s, %s offset:512" % (v(t), v(S + 2)))
    else:
        a.e("v_sqrt_f32 %s, %s" % (v(S + 3), v(S + 1)))
        a.e("v_mul_f32 %s, 0x%x, %s" % (v(S + 2), NLOG2E, v(S + 2)))
        a.e("ds_write_b32 %s, %s offset:512" % (v(t), v(S + 2)))
        a.e("ds_write_b32 %s, %s offset:1024" % (v(t), v(S + 3)))

def cs_finish(a, c, lr):
    if c.L == 0:
        for st in (8, 4, 2, 1):
            for i in range(st): a.e("v_add_f32 %s, %s, %s" % (v(lr.vc16 + i), v(lr.vc16 + i), v(lr.vc16 + i + st)))
    a.e("v_lshlrev_b32 %s, 2, %s" % (v(lr.vt), v(lr.vcs)))
    a.e("v_add_u32 %s, %d, %s" % (v(lr.vt), L_CS, v(lr.vt)))
    a.e("ds_write_b32 %s, %s" % (v(lr.vt), v(lr.vc16)))
    if c.L == 0:
        sk = a.newlab("csf")
        a.e("s_cmp_lg_u32 %s, 0" % s(S_MT)); a.e("s_cbranch_scc1 %s" % sk)
        mk_srd(a, SRD_P, CSUF if c.nhalf else CSQF)
        n = 224 if c.nhalf else 192
        a.e("v_cmp_gt_u32 vcc, %d, %s" % (n, v(lr.vcs)))
        a.e("s_and_saveexec_b64 s[96:97], vcc")
        ske = a.newlab("csz")
        a.e("s_cbranch_execz %s" % ske)
        a.e("buffer_store_dword %s, %s, %s, 0 offen sc1" % (v(lr.vc16), v(lr.vca), s(SRD_P, 4)))
        a.lab(ske)
        a.e("s_mov_b64 exec, -1")
        a.lab(sk)

S_PFOFF = 100; S_PFINC = 101

def loader_pre(a, c, lr):
    loader_setup(a, c, lr)
    if not c.nopre:
        for st in range(c.NS): issueW(a, c, lr, st)
    for jb in c.jobs_pre: jb.emit(a, c, lr)
    x_voffsets(a, c, lr.vl, lr.vt, lr.vt2, lr.vx, c.x_pitch)
    if getattr(c, 'splitk', False):
        def rb(a):
            a.e("s_lshl_b32 %s, %s, 7" % (s(S_T0), s(S_MT)))
            a.e("s_and_b32 %s, %s, 1" % (s(S_T1), s(S_WAVE))); a.e("s_lshl_b32 %s, %s, 6" % (s(S_T1), s(S_T1)))
            a.e("s_add_u32 %s, %s, %s" % (s(S_T0), s(S_T0), s(S_T1)))
            a.e("s_lshl_b32 %s, %s, 5" % (s(S_T1), s(S_KH))); a.e("s_add_u32 %s, %s, %s" % (s(S_T0), s(S_T0), s(S_T1)))
        x_voffsets(a, c, lr.vl, lr.vt, lr.vt2, lr.vr, c.tail_pitch, rowbase=rb)
    elif c.tail_pitch:
        x_voffsets(a, c, lr.vl, lr.vt, lr.vt2, lr.vr, c.tail_pitch)
    elif not c.cs:
        a.e("s_lshl_b32 %s, %s, 16" % (s(S_T0), s(S_WAVE)))
        a.e("v_lshlrev_b32 %s, 4, %s" % (v(lr.vt), v(lr.vl)))
        a.e("v_add_u32 %s, %s, %s" % (v(lr.vt), s(S_T0), v(lr.vt)))
        for j in range(4):
            a.e("v_add_u32 %s, %d, %s" % (v(lr.vr + j), j * (16384 - 1024), v(lr.vt)))
    if c.win: c.win.setup(a, c, lr)

def loader_main(a, c, lr, names):
    NS = c.NS; nst = c.nst; nW = c.ndma - 4
    if c.inflag is not None:
        kind, L = c.inflag
        skip = a.newlab("np")
        a.e("s_cmp_lg_u32 %s, 0" % s(S_WAVE)); a.e("s_cbranch_scc1 %s" % skip)
        poll(a, lambda: flag_off(a, kind, L, S_MT), 16, lr.vl, lr.vp, 0x100 + kind + 16 * L)
        a.lab(skip)
    tstamp(a, c.name + ".polled", names)
    a.e("s_barrier")
    ops = []
    if not c.nopre:
        for st in range(NS): ops += [('W', st)] * nW
    for jb in c.jobs_pre: ops += [('P', 0)] * jb.nops
    if c.win:
        ops += [('P', 0)]; c.win.emit(a, c, lr)
    issued = 0; plan = []; tail_done = False; cs_done = False
    for j in range(nst):
        allowed = min(nst - 1, NS - 1 if j == 0 else max(NS - 1, (j - 1) - 1 + NS))
        k = max(0, min(c.ramp, allowed + 1 - issued))
        units = []
        for q in range(k):
            if issued < NS and c.nopre: ops += [('X', issued)] * 4 + [('W', issued)] * nW; units.append(('S', issued))
            elif issued < NS: ops += [('X', issued)] * 4; units.append(('X', issued))
            else: ops += [('X', issued)] * 4 + [('W', issued)] * nW; units.append(('F', None))
            if c.win and (issued + c.win_lead) % 8 == 0 and issued + c.win_lead < nst:
                ops += [('P', 0)]; units.append(('P', c.win))
            issued += 1
        for jb in c.jobs_at.get(j, []):
            ops += [('P', 0)] * jb.nops; units.append(('P', jb))
        t = 0
        if c.cs:
            jst = nst - 3 if (c.lazy and c.kind == 'q') else nst - 5
            ncs = 16 if c.L == 0 else 1
            t = []
            if j == nst - 3 and c.lazy: t.append('chk')
            if j == jst: ops += [('T', 0)] * 8; t.append('st')
            if j == nst - 3: ops += [('T', 0)] * ncs; t.append('cs')
            if j == nst - 1:
                lastT = max(i for i, o in enumerate(ops) if o[0] == 'T')
                t.append(('fin', len(ops) - 1 - lastT))
            t = tuple(t) if t else 0
        elif issued == nst and not tail_done:
            ops += [('T', 0)] * 4; t = 1; tail_done = True
        last = max(i for i, o in enumerate(ops) if o[0] in 'XW' and o[1] == j)
        w = len(ops) - 1 - last
        assert w <= 63
        plan.append((tuple(units), w, t))
    a.e("s_mov_b32 %s, 0" % s(S_SLOT))
    def emit_units(units):
        for kind, st in units:
            if kind == 'X': issueX(a, c, lr, st)
            elif kind == 'S': issueX(a, c, lr, st); issueW(a, c, lr, st)
            elif kind == 'P': st.emit(a, c, lr)
            else:
                issueX(a, c, lr, None); issueW(a, c, lr, None)
                a.e("s_add_u32 %s, %s, %d" % (s(S_SLOT), s(S_SLOT), c.STG))
                a.e("s_cmp_eq_u32 %s, %d" % (s(S_SLOT), c.NS * c.STG))
                a.e("s_cselect_b32 %s, 0, %s" % (s(S_SLOT), s(S_SLOT)))
    def tail():
        c.tail_soff(a)
        a.e("s_lshl_b32 %s, %s, 12" % (s(S_T1), s(S_WAVE)))
        a.e("s_add_u32 m0, %s, %d" % (s(S_T1), L_RES))
        a.e("s_nop 0")
        for j in range(4):
            a.e("buffer_load_dwordx4 %s, %s, %s offen offset:%d sc1 lds" % (v(lr.vr + j), s(SRD_R, 4), s(S_T0), 1024 * j))
    def one(e):
        units, w, t = e
        emit_units(units)
        if t == 1: tail()
        if isinstance(t, tuple):
            for x in t:
                if x == 'chk': c.lazy.check(a, c, lr)
                elif x == 'st': st_loads(a, c, lr)
                elif x == 'cs': cs_loads(a, c, lr)
                else:
                    a.e("s_waitcnt vmcnt(%d)" % x[1])
                    if G.stprio: a.e("s_setprio %d" % G.stprio)
                    st_finish(a, c, lr); cs_finish(a, c, lr)
                    if G.stprio: a.e("s_setprio 0")
                    a.e("s_waitcnt lgkmcnt(0)")
        a.e("s_waitcnt vmcnt(%d)" % w)
        a.e("s_barrier")
    j = 0
    while j < nst:
        done = False
        for p in (1, 8):
            n = 1
            while j + (n + 1) * p <= nst and plan[j + n * p:j + (n + 1) * p] == plan[j:j + p] and not any(e[2] for e in plan[j:j + p]): n += 1
            if (p == 1 and n >= 3 and not (c.win and j + n < nst - 12 and n < 8)) or (p == 8 and n >= 2):
                if p == 1 and c.win and n < 8 and j + 16 <= nst: continue
                a.e("s_mov_b32 %s, %d" % (s(S_CNT), n))
                lab = a.newlab("ld"); a.lab(lab)
                for e in plan[j:j + p]: one(e)
                a.e("s_sub_u32 %s, %s, 1" % (s(S_CNT), s(S_CNT)))
                a.e("s_cmp_lg_u32 %s, 0" % s(S_CNT))
                a.e("s_cbranch_scc1 %s" % lab)
                j += n * p; done = True; break
        if not done:
            one(plan[j]); j += 1
    a.e("s_waitcnt vmcnt(0) lgkmcnt(0)")
    a.e("s_barrier")

def cs_stage(a, c, r):
    mk_srd(a, SRD_R, ('ws', WS_CS, CS_B))
    t = r.free0 + 8
    a.e("v_and_b32 %s, 0xff, v0" % v(t))
    if c.nhalf == 0:
        a.e("v_lshrrev_b32 %s, 6, %s" % (v(t + 1), v(t)))
        a.e("v_lshlrev_b32 %s, 10, %s" % (v(t + 1), v(t + 1)))
        a.e("v_and_b32 %s, 63, %s" % (v(t + 2), v(t)))
        a.e("v_add_u32 %s, %s, %s" % (v(t + 1), v(t + 1), v(t + 2)))
        a.e("s_lshl_b32 %s, %s, 6" % (s(S_T0), s(S_NT)))
        a.e("v_add_u32 %s, %s, %s" % (v(t + 1), s(S_T0), v(t + 1)))
        a.e("v_lshlrev_b32 %s, 2, %s" % (v(t + 1), v(t + 1)))
    else:
        wcol_base(a, c, S_T0, S_HALFOFF)
        a.e("s_add_u32 %s, %s, %s" % (s(S_T1), s(S_T0), s(S_HALFOFF)))
        a.e("s_sub_u32 %s, %s, 384" % (s(S_T1), s(S_T1)))
        a.e("v_mov_b32 %s, %s" % (v(t + 1), s(S_T0)))
        a.e("v_mov_b32 %s, %s" % (v(t + 2), s(S_T1)))
        a.e("v_cmp_le_u32 vcc, 192, %s" % v(t))
        a.e("v_cndmask_b32 %s, %s, %s, vcc" % (v(t + 1), v(t + 1), v(t + 2)))
        a.e("v_lshl_add_u32 %s, %s, 1, %s" % (v(t + 1), v(t), v(t + 1)))
        a.e("v_lshlrev_b32 %s, 1, %s" % (v(t + 1), v(t + 1)))
        a.e("v_add_u32 %s, %d, %s" % (v(t + 1), 3072 * 4, v(t + 1)))
    a.e("buffer_load_dword %s, %s, %s, 0 offen" % (v(t + 3), v(t + 1), s(SRD_R, 4)))
    a.e("s_mov_b32 %s, %d" % (s(S_T0), 6656 * 4))
    a.e("buffer_load_dword %s, %s, %s, %s offen" % (v(t + 4), v(t + 1), s(SRD_R, 4), s(S_T0)))
    r.cs_t = t

def cs_stage3(a, c, r):
    t = r.cs_t
    a.e("s_waitcnt vmcnt(0)")
    a.e("v_add_f32 %s, %s, %s" % (v(t + 3), v(t + 3), v(t + 4)))
    a.e("v_lshlrev_b32 %s, 2, %s" % (v(t + 1), v(t)))
    a.e("v_add_u32 %s, %d, %s" % (v(t + 1), L_CS, v(t + 1)))
    a.e("ds_write_b32 %s, %s" % (v(t + 1), v(t + 3)))

class EX: pass
def extra_setup(a, c, r):
    ex = EX(); R = r.R
    ex.ones = R.get(4, 4); ex.cs = R.get(4 * c.TN, 4)
    ex.st = (c.kind == 'q')
    if ex.st: ex.s1 = R.get(16, 4); ex.s2 = R.get(16, 4)
    for i in range(4): a.e("v_mov_b32 %s, 0x3f803f80" % v(ex.ones + i))
    return ex

def extra_mfmas(c, r, ex, st):
    out = []
    for j in range(c.TN):
        d = v(ex.cs + 4 * j, 4)
        out.append("v_mfma_f32_16x16x32_bf16 %s, %s, %s, %s" % (d, v(ex.ones, 4), v(r.wf[st] + 4 * j, 4), "0" if st == 0 else d))
    if ex.st:
        for tt in range(4):
            x = v(r.xf[st] + 4 * tt, 4)
            d = v(ex.s1 + 4 * tt, 4); out.append("v_mfma_f32_16x16x32_bf16 %s, %s, %s, %s" % (d, x, v(ex.ones, 4), "0" if st == 0 else d))
            d = v(ex.s2 + 4 * tt, 4); out.append("v_mfma_f32_16x16x32_bf16 %s, %s, %s, %s" % (d, x, x, "0" if st == 0 else d))
    return out

def extra_publish(a, c, r, ex):
    vl, vt, vt2 = r.vl, r.vt, r.vt2
    a.e("s_add_u32 %s, %s, %s" % (s(S_T5), s(S_MT), s(S_NT))); a.e("s_and_b32 %s, %s, 15" % (s(S_T5), s(S_T5)))
    l_nocs = a.newlab("nocs")
    a.e("s_cmp_lg_u32 %s, 0" % s(S_WM)); a.e("s_cbranch_scc1 %s" % l_nocs)
    mk_srd(a, SRD_O, CSU if c.nhalf else CSQ)
    ncol = 3584 if c.nhalf else 3072
    a.e("s_mul_i32 %s, %s, %d" % (s(S_T0), s(S_T5), ncol * 4))
    if c.nhalf:
        wcol_base(a, c, S_T2, S_HALFOFF)
        a.e("s_lshl_b32 %s, %s, 1" % (s(S_T1), s(S_T2)))
    else:
        a.e("s_lshl_b32 %s, %s, 8" % (s(S_T1), s(S_NT)))
    a.e("s_add_u32 %s, %s, %s" % (s(S_T0), s(S_T0), s(S_T1)))
    a.e("s_lshl_b32 %s, %s, 7" % (s(S_T1), s(S_WN)))
    a.e("s_add_u32 %s, %s, %s" % (s(S_T4), s(S_T0), s(S_T1)))
    a.e("v_lshlrev_b32 %s, 2, %s" % (v(vt), v(vl)))
    a.e("v_cmp_le_u32 vcc, 16, %s" % v(vl))
    nseg = c.nfull
    for si in range(nseg):
        a.e("v_cndmask_b32 %s, %s, %s, vcc" % (v(ex.cs + 8 * si), v(ex.cs + 8 * si), v(ex.cs + 8 * si + 4)))
    a.e("s_mov_b32 exec_hi, 0")
    for si in range(nseg):
        segb = c.w_seg_bytes[si] * 2
        a.e("s_add_u32 %s, %s, %d" % (s(S_T1), s(S_T4), segb))
        a.e("buffer_store_dword %s, %s, %s, %s offen sc1" % (v(ex.cs + 8 * si), v(vt), s(SRD_O, 4), s(S_T1)))
    if c.nhalf:
        a.e("s_lshl_b32 %s, %s, 1" % (s(S_T1), s(S_HALFOFF)))
        a.e("s_add_u32 %s, %s, %s" % (s(S_T1), s(S_T1), s(S_T0)))
        a.e("s_lshl_b32 %s, %s, 6" % (s(S_T3), s(S_WN)))
        a.e("s_add_u32 %s, %s, %s" % (s(S_T1), s(S_T1), s(S_T3)))
        a.e("s_mov_b32 exec_lo, 0xffff")
        a.e("buffer_store_dword %s, %s, %s, %s offen sc1" % (v(ex.cs + 24), v(vt), s(SRD_O, 4), s(S_T1)))
    a.e("s_mov_b64 exec, -1")
    a.lab(l_nocs)
    if ex.st:
        l_nost = a.newlab("nost")
        a.e("s_cmp_lg_u32 %s, 0" % s(S_WN)); a.e("s_cbranch_scc1 %s" % l_nost)
        mk_srd(a, SRD_S, c.tailbuf)
        for bit, (x, y) in ((1, (0, 1)), (1, (2, 3)), (2, (0, 2))):
            a.e("v_and_b32 %s, %d, %s" % (v(vt), bit, v(vl)))
            a.e("v_cmp_ne_u32 vcc, 0, %s" % v(vt))
            for tt in range(4):
                for base in (ex.s1, ex.s2):
                    a.e("v_cndmask_b32 %s, %s, %s, vcc" % (v(base + 4 * tt + x), v(base + 4 * tt + x), v(base + 4 * tt + y)))
        for tt in range(4):
            a.e("v_mov_b32 %s, %s" % (v(ex.s1 + 4 * tt + 1), v(ex.s2 + 4 * tt)))
        a.e("v_and_b32 %s, 15, %s" % (v(vt), v(vl))); a.e("v_lshlrev_b32 %s, 3, %s" % (v(vt), v(vt)))
        a.e("s_lshl_b32 %s, %s, 14" % (s(S_T0), s(S_T5)))
        a.e("s_lshl_b32 %s, %s, 10" % (s(S_T1), s(S_MT))); a.e("s_add_u32 %s, %s, %s" % (s(S_T0), s(S_T0), s(S_T1)))
        a.e("s_lshl_b32 %s, %s, 9" % (s(S_T1), s(S_WM))); a.e("s_add_u32 %s, %s, %s" % (s(S_T0), s(S_T0), s(S_T1)))
        a.e("s_mov_b32 exec_lo, 0x00f0000f"); a.e("s_mov_b32 exec_hi, 0xf0000f00")
        for tt in range(4):
            a.e("buffer_store_dwordx2 %s, %s, %s, %s offen offset:%d sc1" % (v(ex.s1 + 4 * tt, 2), v(vt), s(SRD_S, 4), s(S_T0), 128 * tt))
        a.e("s_mov_b64 exec, -1")
        a.lab(l_nost)

def compute_main(a, c, names):
    c.map(a)
    r = compute_setup(a, c)
    tstamp(a, c.name + ".setup", names)
    a.e("s_waitcnt lgkmcnt(0)")
    a.e("s_barrier")
    tstamp(a, c.name + ".Bpre", names)
    def addr_update():
        u = ["s_add_u32 %s, %s, %d" % (s(S_SLOT), s(S_SLOT), c.STG),
             "s_cmp_eq_u32 %s, %d" % (s(S_SLOT), c.NS * c.STG),
             "s_cselect_b32 %s, %s, %s" % (s(S_INC), s(S_NEG), s(S_POS)),
             "s_cselect_b32 %s, 0, %s" % (s(S_SLOT), s(S_SLOT))]
        for i in range(r.nxa): u.append("v_add_u32 %s, %s, %s" % (v(r.xa + i), s(S_INC), v(r.xa + i)))
        for i in range(c.nwa): u.append("v_add_u32 %s, %s, %s" % (v(r.wa + i), s(S_INC), v(r.wa + i)))
        return u
    a.e("s_mov_b32 %s, 0" % s(S_SLOT))
    a.e("s_mov_b32 %s, %d" % (s(S_NEG), -(c.NS - 1) * c.STG))
    a.e("s_mov_b32 %s, %d" % (s(S_POS), c.STG))
    if c.prio: a.e("s_setprio %d" % c.prio)
    a.e("s_barrier")
    tstamp(a, c.name + ".B0", names)
    lab = a.newlab("cl")
    if c.SUBS == 1:
        for i in reads(c, r, 0, 0): a.e(i)
        cnt = c.nst - 1
        if c.extra:
            ex = extra_setup(a, c, r)
            a.e("s_waitcnt lgkmcnt(0)")
            for i in interleave(mfmas(c, r, 0) + extra_mfmas(c, r, ex, 0), reads(c, r, 1, 1) + addr_update()): a.e(i)
            a.e("s_waitcnt lgkmcnt(0)")
            a.e("s_barrier")
            for i in interleave(mfmas(c, r, 1) + extra_mfmas(c, r, ex, 1), reads(c, r, 0, 0)): a.e(i)
            extra_publish(a, c, r, ex)
            cnt -= 1
        a.e("s_mov_b32 %s, %d" % (s(S_CNT), cnt))
        a.e("s_waitcnt lgkmcnt(0)")
        a.raw(".p2align 6")
        a.lab(lab)
        if c.extra:
            sk = a.newlab("vm")
            a.e("s_cmp_lg_u32 %s, %d" % (s(S_CNT), cnt - 1)); a.e("s_cbranch_scc1 %s" % sk)
            a.e("s_waitcnt vmcnt(0)")
            a.lab(sk)
        for i in interleave(mfmas(c, r, 0), reads(c, r, 1, 1) + addr_update()): a.e(i)
        a.e("s_waitcnt lgkmcnt(0)")
        a.e("s_barrier")
        if M.stamps and M.itphase == c.name:
            a.e("s_memrealtime s[96:97]"); a.e("s_waitcnt lgkmcnt(0)")
            a.e("s_add_u32 m0, %s, 40" % s(S_CNT)); a.e("s_nop 3")
            a.e("v_writelane_b32 v255, s96, m0")
        for i in interleave(mfmas(c, r, 1), reads(c, r, 0, 0)): a.e(i)
        a.e("s_sub_u32 %s, %s, 1" % (s(S_CNT), s(S_CNT)))
        a.e("s_cmp_lg_u32 %s, 0" % s(S_CNT))
        a.e("s_waitcnt lgkmcnt(0)")
        a.e("s_cbranch_scc1 %s" % lab)
        for i in interleave(mfmas(c, r, 0), reads(c, r, 1, 1)): a.e(i)
        a.e("s_waitcnt lgkmcnt(0)")
        a.e("s_barrier")
        for i in mfmas(c, r, 1): a.e(i)
    else:
        def rd(st): return reads(c, r, st, 0, 0) + reads(c, r, st, 1, 1)
        def mm(st): return mfmas(c, r, st, 0) + mfmas(c, r, st, 1)
        def step(st):
            m = mm(st); fill = rd(1 - st) + addr_update()
            for i in interleave(m, fill, per=c.rper): a.e(i)
        for i in rd(0) + addr_update(): a.e(i)
        a.e("s_waitcnt lgkmcnt(0)")
        a.e("s_barrier")
        a.e("s_mov_b32 %s, %d" % (s(S_CNT), c.nst // 2 - 1))
        a.raw(".p2align 6")
        a.lab(lab)
        step(0)
        a.e("s_waitcnt lgkmcnt(0)")
        a.e("s_barrier")
        step(1)
        a.e("s_sub_u32 %s, %s, 1" % (s(S_CNT), s(S_CNT)))
        a.e("s_cmp_lg_u32 %s, 0" % s(S_CNT))
        a.e("s_waitcnt lgkmcnt(0)")
        a.e("s_barrier")
        a.e("s_cbranch_scc1 %s" % lab)
        m = mm(0)
        for i in interleave(m, rd(1), per=c.rper): a.e(i)
        a.e("s_waitcnt lgkmcnt(0)")
        a.e("s_barrier")
        for i in mm(1): a.e(i)
    a.e("s_setprio 0")
    tstamp(a, c.name + ".loopend", names)
    return r

def row_stats(a, c, r, R, want):
    vl = r.vl
    b = R.get(); t = R.get(2); D = R.get(32, 4); S = R.get(4, 2)
    a.e("s_lshl_b32 %s, %s, 9" % (s(S_T0), s(S_WM)))
    a.e("s_add_u32 %s, %s, %d" % (s(S_T0), s(S_T0), L_RES))
    a.e("v_lshlrev_b32 %s, 3, %s" % (v(b), v(vl)))
    a.e("v_add_u32 %s, %s, %s" % (v(b), s(S_T0), v(b)))
    for i in range(16):
        a.e("ds_read_b64 %s, %s offset:%d" % (v(D + 2 * i, 2), v(b), 1024 * i))
        if i == 11: a.e("s_waitcnt lgkmcnt(6)")
    a.e("s_waitcnt lgkmcnt(0)")
    for st in (8, 4, 2, 1):
        for i in range(st):
            a.e("v_add_f32 %s, %s, %s" % (v(D + 2 * i), v(D + 2 * i), v(D + 2 * (i + st))))
            a.e("v_add_f32 %s, %s, %s" % (v(D + 2 * i + 1), v(D + 2 * i + 1), v(D + 2 * (i + st) + 1)))
    a.e("v_mul_f32 %s, 0xba800000, %s" % (v(S), v(D)))
    a.e("v_mul_f32 %s, 0x3a800000, %s" % (v(S + 1), v(D + 1)))
    a.e("v_fma_f32 %s, -%s, %s, %s" % (v(S + 1), v(S), v(S), v(S + 1)))
    a.e("v_max_f32 %s, 0, %s" % (v(S + 1), v(S + 1)))
    a.e("v_add_f32 %s, 0x%x, %s" % (v(S + 1), EPS5, v(S + 1)))
    a.e("v_rsq_f32 %s, %s" % (v(S + 2), v(S + 1)))
    a.e("s_mul_i32 %s, %s, 768" % (s(S_T0), s(S_WAVE)))
    a.e("s_add_u32 %s, %s, %d" % (s(S_T0), s(S_T0), L_STAT))
    a.e("v_lshlrev_b32 %s, 2, %s" % (v(t), v(vl)))
    a.e("v_add_u32 %s, %s, %s" % (v(t), s(S_T0), v(t)))
    a.e("ds_write_b32 %s, %s" % (v(t), v(S)))
    if want == 'qkv':
        a.e("ds_write_b32 %s, %s offset:256" % (v(t), v(S + 2)))
    else:
        a.e("v_sqrt_f32 %s, %s" % (v(S + 3), v(S + 1)))
        a.e("v_mul_f32 %s, 0x%x, %s" % (v(S + 2), NLOG2E, v(S + 2)))
        a.e("ds_write_b32 %s, %s offset:256" % (v(t), v(S + 2)))
        a.e("ds_write_b32 %s, %s offset:512" % (v(t), v(S + 3)))
    a.e("s_waitcnt lgkmcnt(0)")
    a.e("s_mov_b32 %s, %s" % (s(S_T5), s(S_T0)))

def phi4(a, x, nm, cs, rs, tmp, C_L, C_E):
    for i in range(4): a.e("v_fmac_f32 %s, %s, %s" % (v(x + i), nm(i), cs(i)))
    for i in range(4): a.e("v_fmaak_f32 %s, %s, %s, 0x%x" % (v(x + i), v(x + i), rs(i), EPS6))
    for i in range(4): a.e("v_mul_f32 %s, %s, %s" % (v(tmp + i), s(C_L), v(x + i)))
    for i in range(4): a.e("v_exp_f32 %s, %s clamp" % (v(tmp + i), v(tmp + i)))
    for i in range(4): a.e("v_max_f32 %s, %s, %s" % (v(x + i), s(C_E), v(x + i)))
    for i in range(4): a.e("v_add_f32 %s, %s, %s" % (v(x + i), v(x + i), v(tmp + i)))

def qkv_epi(a, c, r, L, names):
    vl, vt, vt2 = r.vl, r.vt, r.vt2
    C_L = S_C0; C_E = S_C0 + 2
    a.e("s_mov_b32 %s, 0x%x" % (s(C_L), LOG2E)); a.e("s_mov_b32 %s, 0x%x" % (s(C_E), EPS6))
    def acc(j, tt): return r.acc + (j * c.TM + tt) * 4
    a.e("s_lshl_b32 %s, %s, 8" % (s(S_T5), s(S_WM))); a.e("s_add_u32 %s, %s, %d" % (s(S_T5), s(S_T5), L_STAT))
    R = Regs(r.free0, 255)
    mN = R.get(16, 4); rN = R.get(16, 4); csN = R.get(4, 2)
    va = R.get(); vb = R.get()
    a.e("v_lshrrev_b32 %s, 4, %s" % (v(va), v(vl)))
    a.e("v_lshlrev_b32 %s, 4, %s" % (v(va), v(va)))
    a.e("v_add_u32 %s, %s, %s" % (v(va), s(S_T5), v(va)))
    for tt in range(4):
        a.e("ds_read_b128 %s, %s offset:%d" % (v(mN + 4 * tt, 4), v(va), 64 * tt))
        a.e("ds_read_b128 %s, %s offset:%d" % (v(rN + 4 * tt, 4), v(va), 512 + 64 * tt))
    a.e("v_and_b32 %s, 15, %s" % (v(vb), v(vl)))
    a.e("v_lshlrev_b32 %s, 2, %s" % (v(vb), v(vb)))
    a.e("s_lshl_b32 %s, %s, 7" % (s(S_T0), s(S_WN)))
    a.e("s_add_u32 %s, %s, %d" % (s(S_T0), s(S_T0), L_CS))
    a.e("v_add_u32 %s, %s, %s" % (v(vb), s(S_T0), v(vb)))
    for j in range(2, 6):
        a.e("ds_read_b32 %s, %s offset:%d" % (v(csN + j - 2), v(vb), (j >> 1) * 256 + (j & 1) * 64))
    tmp = R.get(4, 4)
    kf = R.get(16, 4); vf = R.get(16, 4)
    a.e("s_waitcnt lgkmcnt(0)")
    for jj in range(2):
        j = 2 + jj
        for tt in range(4):
            x = acc(j, tt)
            phi4(a, x, lambda i: v(mN + 4 * tt + i), lambda i: v(csN + jj), lambda i: v(rN + 4 * tt + i), tmp, C_L, C_E)
            d = kf + 8 * jj + 4 * (tt >> 1) + 2 * (tt & 1)
            for p in range(2):
                a.e("v_cvt_pk_bf16_f32 %s, %s, %s" % (v(d + p), v(x + 2 * p), v(x + 2 * p + 1)))
    for jj in range(2):
        j = 4 + jj
        for tt in range(4):
            x = acc(j, tt)
            for i in range(4): a.e("v_fmac_f32 %s, %s, %s" % (v(x + i), v(mN + 4 * tt + i), v(csN + 2 + jj)))
            for i in range(4): a.e("v_mul_f32 %s, %s, %s" % (v(x + i), v(x + i), v(rN + 4 * tt + i)))
            d = vf + 8 * jj + 4 * (tt >> 1) + 2 * (tt & 1)
            for p in range(2):
                a.e("v_cvt_pk_bf16_f32 %s, %s, %s" % (v(d + p), v(x + 2 * p), v(x + 2 * p + 1)))
    ones = R.get(4, 4)
    for i in range(4): a.e("v_mov_b32 %s, 0x3f803f80" % v(ones + i))
    KV = acc(2, 0)
    def kvt(dt, et): return KV + (dt * 3 + et) * 4
    for p in range(2):
        for dt in range(2):
            for et in range(3):
                b = v(vf + 8 * et + 4 * p, 4) if et < 2 else v(ones, 4)
                cin = "0" if p == 0 else v(kvt(dt, et), 4)
                a.e("v_mfma_f32_16x16x32_bf16 %s, %s, %s, %s" % (v(kvt(dt, et), 4), v(kf + 8 * dt + 4 * p, 4), b, cin))
    l_w1 = a.newlab("wm1"); l_q = a.newlab("q")
    vx = R.get()
    a.e("v_lshlrev_b32 %s, 4, %s" % (v(vx), v(vl)))
    a.e("s_mul_i32 %s, %s, 6144" % (s(S_T0), s(S_WN)))
    a.e("s_add_u32 %s, %s, %d" % (s(S_T0), s(S_T0), L_KVX))
    a.e("v_add_u32 %s, %s, %s" % (v(vx), s(S_T0), v(vx)))
    a.e("s_cmp_eq_u32 %s, 0" % s(S_WM))
    a.e("s_cbranch_scc1 %s" % l_w1)
    for i in range(6): a.e("ds_write_b128 %s, %s offset:%d" % (v(vx), v(KV + 4 * i, 4), 1024 * i))
    a.e("s_waitcnt lgkmcnt(0)")
    a.lab(l_w1)
    a.e("s_barrier")
    a.e("s_cmp_eq_u32 %s, 0" % s(S_WM))
    a.e("s_cbranch_scc0 %s" % l_q)
    ex = R.get(24, 4)
    for i in range(6): a.e("ds_read_b128 %s, %s offset:%d" % (v(ex + 4 * i, 4), v(vx), 1024 * i))
    mk_srd(a, SRD_O, ('ws', WS_KVP[L], KVP_B))
    a.e("s_lshl_b32 %s, %s, 5" % (s(S_T0), s(S_MT)))
    a.e("s_lshl_b32 %s, %s, 1" % (s(S_T1), s(S_NT)))
    a.e("s_add_u32 %s, %s, %s" % (s(S_T0), s(S_T0), s(S_T1)))
    a.e("s_add_u32 %s, %s, %s" % (s(S_T0), s(S_T0), s(S_WN)))
    a.e("s_mul_i32 %s, %s, %d" % (s(S_T0), s(S_T0), 1056 * 4))
    a.e("v_and_b32 %s, 15, %s" % (v(vt), v(vl)))
    a.e("v_lshlrev_b32 %s, 7, %s" % (v(vt), v(vt)))
    a.e("v_lshrrev_b32 %s, 4, %s" % (v(vt2), v(vl)))
    a.e("v_lshl_add_u32 %s, %s, 4, %s" % (v(vt), v(vt2), v(vt)))
    a.e("s_waitcnt lgkmcnt(0)")
    for i in range(24):
        a.e("v_add_f32 %s, %s, %s" % (v(KV + i), v(KV + i), v(ex + i)))
    for dt in range(2):
        for et in range(2):
            a.e("buffer_store_dwordx4 %s, %s, %s, %s offen offset:%d sc1" % (v(kvt(dt, et), 4), v(vt), s(SRD_O, 4), s(S_T0), et * 2048 + dt * 64))
    a.e("v_lshlrev_b32 %s, 4, %s" % (v(vt2), v(vt2)))
    a.e("v_add_u32 %s, 4096, %s" % (v(vt2), v(vt2)))
    a.e("s_mov_b32 exec_lo, 0x00010001"); a.e("s_mov_b32 exec_hi, 0x00010001")
    for dt in range(2):
        a.e("buffer_store_dwordx4 %s, %s, %s, %s offen offset:%d sc1" % (v(kvt(dt, 2), 4), v(vt2), s(SRD_O, 4), s(S_T0), dt * 64))
    a.e("s_mov_b64 exec, -1")
    def slot():
        a.e("s_lshl_b32 %s, %s, 1" % (s(S_T4), s(S_MT)))
        a.e("s_add_u32 %s, %s, %s" % (s(S_T4), s(S_T4), s(S_WN)))
        a.e("s_lshl_b32 %s, %s, 7" % (s(S_T4), s(S_T4)))
        a.e("s_add_u32 %s, %s, %s" % (s(S_T3), s(S_T3), s(S_T4)))
    set_flag(a, lambda: flag_off(a, F_K, L, S_NT, slot), vt)
    a.lab(l_q)
    tstamp(a, c.name + ".kvpub", names)
    R2 = Regs(r.free0, 255)
    mT = R2.get(4); rT = R2.get(4); csT = R2.get(8, 4); tmp = R2.get(4, 4); pq = R2.get(16, 4); va = R2.get(); vb = R2.get()
    a.e("v_and_b32 %s, 15, %s" % (v(va), v(vl)))
    a.e("v_lshlrev_b32 %s, 2, %s" % (v(va), v(va)))
    a.e("v_add_u32 %s, %s, %s" % (v(va), s(S_T5), v(va)))
    for tt in range(4):
        a.e("ds_read_b32 %s, %s offset:%d" % (v(mT + tt), v(va), 64 * tt))
        a.e("ds_read_b32 %s, %s offset:%d" % (v(rT + tt), v(va), 512 + 64 * tt))
    a.e("v_lshrrev_b32 %s, 4, %s" % (v(vb), v(vl)))
    a.e("v_lshlrev_b32 %s, 4, %s" % (v(vb), v(vb)))
    a.e("s_lshl_b32 %s, %s, 7" % (s(S_T0), s(S_WN)))
    a.e("s_add_u32 %s, %s, %d" % (s(S_T0), s(S_T0), L_CS))
    a.e("v_add_u32 %s, %s, %s" % (v(vb), s(S_T0), v(vb)))
    for j in range(2):
        a.e("ds_read_b128 %s, %s offset:%d" % (v(csT + 4 * j, 4), v(vb), 64 * j))
    a.e("s_waitcnt lgkmcnt(0)")
    for tt in range(4):
        for j in range(2):
            x = acc(j, tt)
            phi4(a, x, lambda i: v(mT + tt), lambda i: v(csT + 4 * j + i), lambda i: v(rT + tt), tmp, C_L, C_E)
            for p in range(2):
                a.e("v_cvt_pk_bf16_f32 %s, %s, %s" % (v(pq + 4 * tt + 2 * j + p), v(x + 2 * p), v(x + 2 * p + 1)))
    tstamp(a, c.name + ".qdone", names)
    a.e("s_barrier")
    tstamp(a, c.name + ".kvready", names)
    mk_srd(a, SRD_S, ('ws', WS_KVP[L], KVP_B))
    P = r.acc
    a.e("v_lshlrev_b32 %s, 4, %s" % (v(vt), v(vl)))
    a.e("v_and_b32 %s, 7, %s" % (v(vt2), v(vl)))
    a.e("v_lshlrev_b32 %s, 4, %s" % (v(vt2), v(vt2)))
    a.e("v_add_u32 %s, 4096, %s" % (v(vt2), v(vt2)))
    a.e("s_lshl_b32 %s, %s, 8" % (s(S_T0), s(S_WM)))
    a.e("s_lshl_b32 %s, %s, 1" % (s(S_T1), s(S_NT)))
    a.e("s_add_u32 %s, %s, %s" % (s(S_T0), s(S_T0), s(S_T1)))
    a.e("s_add_u32 %s, %s, %s" % (s(S_T0), s(S_T0), s(S_WN)))
    a.e("s_mul_i32 %s, %s, %d" % (s(S_T0), s(S_T0), 1056 * 4))
    ACC = R2.get(20, 4)
    for half in range(2):
        for m in range(4):
            for i in range(4):
                a.e("buffer_load_dwordx4 %s, %s, %s, %s offen offset:%d sc1" % (v(P + 20 * m + 4 * i, 4), v(vt), s(SRD_S, 4), s(S_T0), 1024 * i))
            a.e("buffer_load_dwordx4 %s, %s, %s, %s offen sc1" % (v(P + 20 * m + 16, 4), v(vt2), s(SRD_S, 4), s(S_T0)))
            a.e("s_add_u32 %s, %s, %d" % (s(S_T0), s(S_T0), 32 * 1056 * 4))
        for m in range(4):
            a.e("s_waitcnt vmcnt(%d)" % (5 * (3 - m)))
            for i in range(20):
                if half == 0 and m == 0: a.e("v_mov_b32 %s, %s" % (v(ACC + i), v(P + i)))
                else: a.e("v_add_f32 %s, %s, %s" % (v(ACC + i), v(ACC + i), v(P + 20 * m + i)))
    a.e("v_lshlrev_b32 %s, 4, %s" % (v(vt), v(vl)))
    a.e("s_mul_i32 %s, %s, 5120" % (s(S_T0), s(S_WAVE)))
    a.e("s_add_u32 %s, %s, %d" % (s(S_T0), s(S_T0), L_AEX))
    a.e("v_add_u32 %s, %s, %s" % (v(vt), s(S_T0), v(vt)))
    for i in range(5): a.e("ds_write_b128 %s, %s offset:%d" % (v(vt), v(ACC + 4 * i, 4), 1024 * i))
    a.e("s_waitcnt lgkmcnt(0)")
    a.e("s_barrier")
    a.e("v_and_b32 %s, 15, %s" % (v(vt), v(vl)))
    a.e("v_lshlrev_b32 %s, 7, %s" % (v(vt), v(vt)))
    a.e("v_lshrrev_b32 %s, 4, %s" % (v(vt2), v(vl)))
    a.e("v_lshl_add_u32 %s, %s, 4, %s" % (v(vt), v(vt2), v(vt)))
    a.e("v_lshlrev_b32 %s, 4, %s" % (v(vt2), v(vt2)))
    a.e("s_mul_i32 %s, %s, 5120" % (s(S_T0), s(S_WN)))
    a.e("s_add_u32 %s, %s, %d" % (s(S_T0), s(S_T0), L_AEX))
    a.e("v_add_u32 %s, %s, %s" % (v(vt), s(S_T0), v(vt)))
    a.e("v_add_u32 %s, %s, %s" % (v(vt2), s(S_T0), v(vt2)))
    Z = P
    for w in range(2):
        for et in range(2):
            for hh in range(2):
                a.e("ds_read_b128 %s, %s offset:%d" % (v(Z + 24 * w + 8 * et + 4 * hh, 4), v(vt), w * 10240 + et * 2048 + hh * 64))
        for hh in range(2):
            a.e("ds_read_b128 %s, %s offset:%d" % (v(Z + 24 * w + 16 + 4 * hh, 4), v(vt2), w * 10240 + 4096 + hh * 64))
    a.e("s_waitcnt lgkmcnt(0)")
    for i in range(24): a.e("v_add_f32 %s, %s, %s" % (v(Z + i), v(Z + i), v(Z + 24 + i)))
    F = Z + 48
    for t in range(3):
        for i in range(4):
            a.e("v_cvt_pk_bf16_f32 %s, %s, %s" % (v(F + 4 * t + i), v(Z + 8 * t + 2 * i), v(Z + 8 * t + 2 * i + 1)))
    N = Z
    for tt in range(4):
        for t in range(3):
            a.e("v_mfma_f32_16x16x32_bf16 %s, %s, %s, 0" % (v(N + 12 * tt + 4 * t, 4), v(F + 4 * t, 4), v(pq + 4 * tt, 4)))
    mk_srd(a, SRD_O, ('ws', WS_O[L], 2048 * G.XP))
    vo = R2.get(); O = R2.get(16, 4)
    lane_col_off(a, vo, vl, vt)
    a.e("v_and_b32 %s, 15, %s" % (v(vt), v(vl)))
    a.e("v_mad_u32_u24 %s, %s, %s, %s" % (v(vo), v(vt), s(xp_reg(a, G.XP)), v(vo)))
    a.e("s_lshl_b32 %s, %s, 7" % (s(S_T0), s(S_MT)))
    a.e("s_lshl_b32 %s, %s, 6" % (s(S_T1), s(S_WM)))
    a.e("s_add_u32 %s, %s, %s" % (s(S_T0), s(S_T0), s(S_T1)))
    a.e("s_mul_i32 %s, %s, %d" % (s(S_T0), s(S_T0), G.XP))
    a.e("s_lshl_b32 %s, %s, 7" % (s(S_T1), s(S_NT)))
    a.e("s_add_u32 %s, %s, %s" % (s(S_T0), s(S_T0), s(S_T1)))
    a.e("s_lshl_b32 %s, %s, 6" % (s(S_T1), s(S_WN)))
    a.e("s_add_u32 %s, %s, %s" % (s(S_T0), s(S_T0), s(S_T1)))
    for tt in range(4):
        n = N + 12 * tt
        a.e("v_add_f32 %s, 0x%x, %s" % (v(n + 8), EPS6, v(n + 8)))
        a.e("v_rcp_f32 %s, %s" % (v(n + 8), v(n + 8)))
        for p in range(8): a.e("v_mul_f32 %s, %s, %s" % (v(n + p), v(n + p), v(n + 8)))
        for p in range(4):
            a.e("v_cvt_pk_bf16_f32 %s, %s, %s" % (v(O + 4 * tt + p), v(n + 2 * p), v(n + 2 * p + 1)))
        for p in range(2):
            a.e("v_permlane16_swap_b32 %s, %s" % (v(O + 4 * tt + p), v(O + 4 * tt + 2 + p)))
        a.e("s_add_u32 %s, %s, %d" % (s(S_T1), s(S_T0), tt * 16 * G.XP))
        a.e("buffer_store_dwordx4 %s, %s, %s, %s offen sc1" % (v(O + 4 * tt, 4), v(vo), s(SRD_O, 4), s(S_T1)))
    out_flag(a, F_O, L, vt)
    tstamp(a, c.name + ".opub", names)

def xp_reg(a, val):
    a.e("s_mov_b32 %s, %d" % (s(S_T4), val))
    return S_T4

def out_flag(a, kind, L, vt):
    def slot():
        a.e("s_lshl_b32 %s, %s, 7" % (s(S_T4), s(S_NT)))
        a.e("s_add_u32 %s, %s, %s" % (s(S_T3), s(S_T3), s(S_T4)))
    set_flag_wg(a, lambda: flag_off(a, kind, L, S_MT, slot), vt)

def resid_epi(a, c, r, names):
    R = Regs(r.free0, 255)
    vl, vt, vt2 = r.vl, r.vt, r.vt2
    def acc(j, tt): return r.acc + (j * c.TM + tt) * 4
    rs = R.get(16, 4); va = R.get(4); vo = R.get(); vs = R.get(); S = R.get(4, 2); t2 = R.get(4, 2); u = R.get(4, 4); pkd = R.get(16, 4); msk = R.get()
    a.e("v_and_b32 %s, 15, %s" % (v(vt), v(vl)))
    a.e("v_lshrrev_b32 %s, 1, %s" % (v(vt2), v(vt)))
    a.e("v_lshlrev_b32 %s, 7, %s" % (v(vt), v(vt)))
    a.e("s_lshl_b32 %s, %s, 12" % (s(S_T0), s(S_WM)))
    a.e("s_add_u32 %s, %s, %d" % (s(S_T0), s(S_T0), L_RES))
    a.e("v_add_u32 %s, %s, %s" % (v(vt), s(S_T0), v(vt)))
    a.e("v_bfe_u32 %s, %s, 4, 1" % (v(vo), v(vl)))
    a.e("v_lshl_add_u32 %s, %s, 3, %s" % (v(vt), v(vo), v(vt)))
    a.e("v_bfe_u32 %s, %s, 5, 1" % (v(vo), v(vl)))
    for t in range(4):
        a.e("v_add_u32 %s, %d, %s" % (v(vs), 2 * t, v(vo)))
        a.e("v_xor_b32 %s, %s, %s" % (v(vs), v(vs), v(vt2)))
        a.e("v_lshl_add_u32 %s, %s, 4, %s" % (v(va + t), v(vs), v(vt)))
    for tt in range(2):
        for t in range(4):
            a.e("ds_read_b64 %s, %s offset:%d" % (v(rs + 8 * tt + 2 * t, 2), v(va + t), 2048 * tt))
    mk_srd(a, SRD_O, c.obuf)
    if c.ostat: mk_srd(a, SRD_S, c.ostat)
    lane_col_off(a, vo, vl, vt)
    a.e("v_and_b32 %s, 15, %s" % (v(vt), v(vl)))
    a.e("v_mad_u32_u24 %s, %s, %s, %s" % (v(vo), v(vt), s(xp_reg(a, c.o_pitch)), v(vo)))
    a.e("s_lshl_b32 %s, %s, 7" % (s(S_T0), s(S_MT)))
    a.e("s_lshl_b32 %s, %s, 5" % (s(S_T1), s(S_WM)))
    a.e("s_add_u32 %s, %s, %s" % (s(S_T5), s(S_T0), s(S_T1)))
    a.e("s_mul_i32 %s, %s, %d" % (s(S_T0), s(S_T5), c.o_pitch))
    a.e("s_lshl_b32 %s, %s, 7" % (s(S_T1), s(S_NT)))
    a.e("s_add_u32 %s, %s, %s" % (s(S_T0), s(S_T0), s(S_T1)))
    a.e("v_mov_b32 %s, 0xffff0000" % v(msk))
    sc = " sc1" if c.outflag is not None else ""
    a.e("s_waitcnt lgkmcnt(0)")
    for tt in range(2):
        for t in range(4):
            x = acc(t, tt)
            for p in range(2):
                a.e("v_lshlrev_b32 %s, 16, %s" % (v(u + 2 * p), v(rs + 8 * tt + 2 * t + p)))
                a.e("v_and_b32 %s, %s, %s" % (v(u + 2 * p + 1), v(msk), v(rs + 8 * tt + 2 * t + p)))
            for i in range(4): a.e("v_add_f32 %s, %s, %s" % (v(x + i), v(x + i), v(u + i)))
            for p in range(2):
                a.e("v_cvt_pk_bf16_f32 %s, %s, %s" % (v(pkd + 8 * tt + 2 * t + p), v(x + 2 * p), v(x + 2 * p + 1)))
            if c.ostat:
                for i in range(4):
                    if t == 0 and i < 2:
                        a.e("v_mov_b32 %s, %s" % (v(t2 + i), v(x + i))); a.e("v_mul_f32 %s, %s, %s" % (v(t2 + 2 + i), v(x + i), v(x + i)))
                    else:
                        a.e("v_add_f32 %s, %s, %s" % (v(t2 + (i & 1)), v(t2 + (i & 1)), v(x + i)))
                        a.e("v_fmac_f32 %s, %s, %s" % (v(t2 + 2 + (i & 1)), v(x + i), v(x + i)))
        if c.ostat:
            a.e("v_add_f32 %s, %s, %s" % (v(S + 2 * tt), v(t2), v(t2 + 1)))
            a.e("v_add_f32 %s, %s, %s" % (v(S + 2 * tt + 1), v(t2 + 2), v(t2 + 3)))
        for h in range(2):
            b = pkd + 8 * tt + 4 * h
            for p in range(2):
                a.e("v_permlane16_swap_b32 %s, %s" % (v(b + p), v(b + 2 + p)))
            a.e("s_add_u32 %s, %s, %d" % (s(S_T1), s(S_T0), tt * 16 * c.o_pitch))
            a.e("buffer_store_dwordx4 %s, %s, %s, %s offen offset:%d%s" % (v(b, 4), v(vo), s(SRD_O, 4), s(S_T1), 64 * h, sc))
    if c.ostat:
        for sw in ("v_permlane16_swap_b32", "v_permlane32_swap_b32"):
            for i in range(4): a.e("v_mov_b32 %s, %s" % (v(u + i), v(S + i)))
            for i in range(4): a.e("%s %s, %s" % (sw, v(u + i), v(S + i)))
            for i in range(4): a.e("v_add_f32 %s, %s, %s" % (v(S + i), v(S + i), v(u + i)))
        a.e("v_cmp_le_u32 vcc, 16, %s" % v(vl))
        a.e("v_cndmask_b32 %s, %s, %s, vcc" % (v(S), v(S), v(S + 2)))
        a.e("v_cndmask_b32 %s, %s, %s, vcc" % (v(S + 1), v(S + 1), v(S + 3)))
        a.e("v_lshlrev_b32 %s, 3, %s" % (v(vt), v(vl)))
        a.e("s_lshl_b32 %s, %s, 3" % (s(S_T0), s(S_T5)))
        a.e("s_lshl_b32 %s, %s, 14" % (s(S_T1), s(S_NT)))
        a.e("s_add_u32 %s, %s, %s" % (s(S_T0), s(S_T0), s(S_T1)))
        a.e("s_mov_b32 exec_hi, 0")
        a.e("buffer_store_dwordx2 %s, %s, %s, %s offen sc1" % (v(S, 2), v(vt), s(SRD_S, 4), s(S_T0)))
        a.e("s_mov_b64 exec, -1")
    if G.bst: a.e("s_barrier")
    if c.outflag is not None:
        out_flag(a, c.outflag[0], c.outflag[1], vt)
    tstamp(a, c.name + ".pub", names)

WS_XCH = [100 * MB, 110 * MB]
def foffp(L): return 11 * 65536 + L * 131072

def dsk_epi(a, c, r, names):
    L = c.L
    R = Regs(r.free0, 255)
    vl, vt, vt2 = r.vl, r.vt, r.vt2
    def acc(j, sl): return r.acc + (j * c.TM + sl) * 4
    mk_srd(a, SRD_S, ('ws', WS_XCH[L], 8 * MB))
    vx = R.get()
    a.e("v_lshlrev_b32 %s, 4, %s" % (v(vx), v(vl)))
    a.e("s_lshl_b32 %s, s2, 2" % s(S_T0)); a.e("s_add_u32 %s, %s, %s" % (s(S_T0), s(S_T0), s(S_WAVE)))
    a.e("s_lshl_b32 %s, %s, 13" % (s(S_T0), s(S_T0)))
    for j in range(4):
        for i in range(2):
            k = 2 * j + i
            if k == 4 or k == 0:
                a.e("s_add_u32 %s, %s, %d" % (s(S_T1), s(S_T0), 4096 * (k // 4)))
            a.e("buffer_store_dwordx4 %s, %s, %s, %s offen offset:%d sc1" % (v(acc(j, 2 + i), 4), v(vx), s(SRD_S, 4), s(S_T1), 1024 * (k % 4)))
    if G.bst: a.e("s_barrier")
    def fo():
        a.e("s_lshl_b32 %s, s2, 2" % s(S_T3)); a.e("s_add_u32 %s, %s, %s" % (s(S_T3), s(S_T3), s(S_WAVE)))
        a.e("s_lshl_b32 %s, %s, 7" % (s(S_T3), s(S_T3))); a.e("s_add_u32 %s, %s, %d" % (s(S_T3), s(S_T3), foffp(L)))
    rs = R.get(16, 4); va = R.get(4); vo = R.get(); vs = R.get(); S = R.get(4, 2); t2 = R.get(4, 2); u = R.get(4, 4); pkd = R.get(16, 4); msk = R.get()
    P = R.get(32, 4)
    a.e("v_and_b32 %s, 15, %s" % (v(vt), v(vl)))
    a.e("v_lshrrev_b32 %s, 1, %s" % (v(vt2), v(vt)))
    a.e("v_lshlrev_b32 %s, 7, %s" % (v(vt), v(vt)))
    a.e("s_lshl_b32 %s, %s, 12" % (s(S_T1), s(S_WM)))
    a.e("s_add_u32 %s, %s, %d" % (s(S_T1), s(S_T1), L_RES))
    a.e("v_add_u32 %s, %s, %s" % (v(vt), s(S_T1), v(vt)))
    a.e("v_bfe_u32 %s, %s, 4, 1" % (v(vo), v(vl)))
    a.e("v_lshl_add_u32 %s, %s, 3, %s" % (v(vt), v(vo), v(vt)))
    a.e("v_bfe_u32 %s, %s, 5, 1" % (v(vo), v(vl)))
    a.e("s_lshl_b32 %s, %s, 2" % (s(S_T1), s(S_WN)))
    a.e("v_add_u32 %s, %s, %s" % (v(vo), s(S_T1), v(vo)))
    for jj in range(2):
        a.e("v_add_u32 %s, %d, %s" % (v(vs), 2 * jj, v(vo)))
        a.e("v_xor_b32 %s, %s, %s" % (v(vs), v(vs), v(vt2)))
        a.e("v_lshl_add_u32 %s, %s, 4, %s" % (v(va + jj), v(vs), v(vt)))
    for i in range(2):
        for j in range(4):
            a.e("ds_read_b64 %s, %s offset:%d" % (v(rs + 8 * i + 2 * j, 2), v(va + (j & 1)), 8192 * (j >> 1) + 2048 * i))
    set_flag(a, fo, vt)
    tstamp(a, c.name + ".sent", names)
    def po():
        a.e("s_xor_b32 %s, s2, %d" % (s(S_T3), c.pxor)); a.e("s_lshl_b32 %s, %s, 2" % (s(S_T3), s(S_T3))); a.e("s_add_u32 %s, %s, %s" % (s(S_T3), s(S_T3), s(S_WAVE)))
        a.e("s_lshl_b32 %s, %s, 7" % (s(S_T3), s(S_T3))); a.e("s_add_u32 %s, %s, %d" % (s(S_T3), s(S_T3), foffp(L)))
    poll(a, po, 1, vl, vs - 0 if False else u, 0x400 + L)
    tstamp(a, c.name + ".got", names)
    a.e("s_xor_b32 %s, s2, %d" % (s(S_T0), c.pxor)); a.e("s_lshl_b32 %s, %s, 2" % (s(S_T0), s(S_T0))); a.e("s_add_u32 %s, %s, %s" % (s(S_T0), s(S_T0), s(S_WAVE)))
    a.e("s_lshl_b32 %s, %s, 13" % (s(S_T0), s(S_T0)))
    for j in range(4):
        for i in range(2):
            k = 2 * j + i
            if k == 4 or k == 0:
                a.e("s_add_u32 %s, %s, %d" % (s(S_T1), s(S_T0), 4096 * (k // 4)))
            a.e("buffer_load_dwordx4 %s, %s, %s, %s offen offset:%d sc1" % (v(P + 4 * k, 4), v(vx), s(SRD_S, 4), s(S_T1), 1024 * (k % 4)))
    mk_srd(a, SRD_O, c.obuf)
    lane_col_off(a, vo, vl, vt)
    a.e("v_and_b32 %s, 15, %s" % (v(vt), v(vl)))
    a.e("v_mad_u32_u24 %s, %s, %s, %s" % (v(vo), v(vt), s(xp_reg(a, c.o_pitch)), v(vo)))
    a.e("s_lshl_b32 %s, %s, 7" % (s(S_T0), s(S_MT)))
    a.e("s_lshl_b32 %s, %s, 6" % (s(S_T1), s(S_WM))); a.e("s_add_u32 %s, %s, %s" % (s(S_T0), s(S_T0), s(S_T1)))
    a.e("s_lshl_b32 %s, %s, 5" % (s(S_T1), s(S_KH))); a.e("s_add_u32 %s, %s, %s" % (s(S_T5), s(S_T0), s(S_T1)))
    a.e("s_mul_i32 %s, %s, %d" % (s(S_T0), s(S_T5), c.o_pitch))
    a.e("s_lshl_b32 %s, %s, 8" % (s(S_T1), s(S_NT))); a.e("s_add_u32 %s, %s, %s" % (s(S_T0), s(S_T0), s(S_T1)))
    a.e("s_lshl_b32 %s, %s, 6" % (s(S_T1), s(S_WN))); a.e("s_add_u32 %s, %s, %s" % (s(S_T0), s(S_T0), s(S_T1)))
    a.e("v_mov_b32 %s, 0xffff0000" % v(msk))
    sc = " sc1" if c.outflag is not None else ""
    a.e("s_waitcnt lgkmcnt(0)")
    for i in range(2):
        for j in range(4):
            x = acc(j, i); k = 2 * j + i
            for p in range(2):
                a.e("v_lshlrev_b32 %s, 16, %s" % (v(u + 2 * p), v(rs + 8 * i + 2 * j + p)))
                a.e("v_and_b32 %s, %s, %s" % (v(u + 2 * p + 1), v(msk), v(rs + 8 * i + 2 * j + p)))
            for e in range(4): a.e("v_add_f32 %s, %s, %s" % (v(x + e), v(x + e), v(u + e)))
    a.e("s_waitcnt vmcnt(0)")
    for i in range(2):
        for j in range(4):
            x = acc(j, i); k = 2 * j + i
            for e in range(4): a.e("v_add_f32 %s, %s, %s" % (v(x + e), v(x + e), v(P + 4 * k + e)))
            for p in range(2):
                a.e("v_cvt_pk_bf16_f32 %s, %s, %s" % (v(pkd + 8 * i + 2 * j + p), v(x + 2 * p), v(x + 2 * p + 1)))
            if c.ostat:
                for e in range(4):
                    if j == 0 and e < 2:
                        a.e("v_mov_b32 %s, %s" % (v(t2 + e), v(x + e))); a.e("v_mul_f32 %s, %s, %s" % (v(t2 + 2 + e), v(x + e), v(x + e)))
                    else:
                        a.e("v_add_f32 %s, %s, %s" % (v(t2 + (e & 1)), v(t2 + (e & 1)), v(x + e)))
                        a.e("v_fmac_f32 %s, %s, %s" % (v(t2 + 2 + (e & 1)), v(x + e), v(x + e)))
        if c.ostat:
            a.e("v_add_f32 %s, %s, %s" % (v(S + 2 * i), v(t2), v(t2 + 1)))
            a.e("v_add_f32 %s, %s, %s" % (v(S + 2 * i + 1), v(t2 + 2), v(t2 + 3)))
        for h in range(2):
            b = pkd + 8 * i + 4 * h
            for p in range(2):
                a.e("v_permlane16_swap_b32 %s, %s" % (v(b + p), v(b + 2 + p)))
            a.e("s_add_u32 %s, %s, %d" % (s(S_T1), s(S_T0), i * 16 * c.o_pitch))
            a.e("buffer_store_dwordx4 %s, %s, %s, %s offen offset:%d%s" % (v(b, 4), v(vo), s(SRD_O, 4), s(S_T1), 128 * h, sc))
    if c.ostat:
        mk_srd(a, SRD_S, c.ostat)
        for sw in ("v_permlane16_swap_b32", "v_permlane32_swap_b32"):
            for i in range(4): a.e("v_mov_b32 %s, %s" % (v(u + i), v(S + i)))
            for i in range(4): a.e("%s %s, %s" % (sw, v(u + i), v(S + i)))
            for i in range(4): a.e("v_add_f32 %s, %s, %s" % (v(S + i), v(S + i), v(u + i)))
        a.e("v_cmp_le_u32 vcc, 16, %s" % v(vl))
        a.e("v_cndmask_b32 %s, %s, %s, vcc" % (v(S), v(S), v(S + 2)))
        a.e("v_cndmask_b32 %s, %s, %s, vcc" % (v(S + 1), v(S + 1), v(S + 3)))
        a.e("v_lshlrev_b32 %s, 3, %s" % (v(vt), v(vl)))
        a.e("s_lshl_b32 %s, %s, 3" % (s(S_T0), s(S_T5)))
        a.e("s_lshl_b32 %s, %s, 1" % (s(S_T1), s(S_NT))); a.e("s_add_u32 %s, %s, %s" % (s(S_T1), s(S_T1), s(S_WN)))
        a.e("s_lshl_b32 %s, %s, 14" % (s(S_T1), s(S_T1)))
        a.e("s_add_u32 %s, %s, %s" % (s(S_T0), s(S_T0), s(S_T1)))
        a.e("s_mov_b32 exec_hi, 0")
        a.e("buffer_store_dwordx2 %s, %s, %s, %s offen sc1" % (v(S, 2), v(vt), s(SRD_S, 4), s(S_T0)))
        a.e("s_mov_b64 exec, -1")
    if c.outflag is not None:
        def slot():
            a.e("s_lshl_b32 %s, %s, 1" % (s(S_T4), s(S_NT))); a.e("s_add_u32 %s, %s, %s" % (s(S_T4), s(S_T4), s(S_KH)))
            a.e("s_lshl_b32 %s, %s, 7" % (s(S_T4), s(S_T4))); a.e("s_add_u32 %s, %s, %s" % (s(S_T3), s(S_T3), s(S_T4)))
        set_flag_wg(a, lambda: flag_off(a, c.outflag[0], c.outflag[1], S_MT, slot), vt)
    tstamp(a, c.name + ".pub", names)

class JobWbulkD(Job):
    nops = 2
    def emit(self, a, c, lr):
        vp = lr.vpf; vl = lr.vl
        a.e("s_bfe_u32 %s, s2, 0x30003" % s(S_T0)); a.e("s_mul_i32 %s, %s, 224" % (s(S_T0), s(S_T0)))
        a.e("s_mul_i32 %s, %s, 56" % (s(S_T1), s(S_WAVE))); a.e("s_add_u32 %s, %s, %s" % (s(S_T0), s(S_T0), s(S_T1)))
        a.e("s_mul_i32 %s, %s, %d" % (s(S_T1), s(S_KH), c.K)); a.e("s_add_u32 %s, %s, %s" % (s(S_T0), s(S_T0), s(S_T1)))
        a.e("v_min_u32 %s, 55, %s" % (v(vp), v(vl)))
        a.e("v_add_u32 %s, %s, %s" % (v(vp), s(S_T0), v(vp)))
        a.e("v_mul_u32_u24 %s, %d, %s" % (v(vp), c.w_pitch, v(vp)))
        a.e("s_lshl_b32 %s, %s, 8" % (s(S_T0), s(S_NT)))
        a.e("buffer_load_dword %s, %s, %s, %s offen" % (v(lr.vd), v(vp), s(SRD_W, 4), s(S_T0)))
        a.e("buffer_load_dword %s, %s, %s, %s offen offset:128" % (v(lr.vd), v(vp), s(SRD_W, 4), s(S_T0)))

def w1_epi(a, c, r, L, names):
    vl, vt, vt2 = r.vl, r.vt, r.vt2
    def acc(j, tt): return r.acc + (j * c.TM + tt) * 4
    R = Regs(r.free0, 255)
    if M.detail: tstamp(a, c.name + ".e0", names, True)
    a.e("s_lshl_b32 %s, %s, 8" % (s(S_T5), s(S_WM))); a.e("s_add_u32 %s, %s, %d" % (s(S_T5), s(S_T5), L_STAT))
    R = Regs(r.free0, 255)
    mT = R.get(4); cT = R.get(4); iT = R.get(4); cs = R.get(28, 4); tmp = R.get(8, 4); pkd = R.get(16, 4); va = R.get(); vb = R.get(); vo = R.get(); vh = R.get()
    a.e("v_and_b32 %s, 15, %s" % (v(va), v(vl)))
    a.e("v_lshlrev_b32 %s, 2, %s" % (v(va), v(va)))
    a.e("v_add_u32 %s, %s, %s" % (v(va), s(S_T5), v(va)))
    for tt in range(4):
        a.e("ds_read_b32 %s, %s offset:%d" % (v(mT + tt), v(va), 64 * tt))
        a.e("ds_read_b32 %s, %s offset:%d" % (v(cT + tt), v(va), 512 + 64 * tt))
        a.e("ds_read_b32 %s, %s offset:%d" % (v(iT + tt), v(va), 1024 + 64 * tt))
    a.e("v_lshrrev_b32 %s, 4, %s" % (v(vb), v(vl)))
    a.e("v_lshlrev_b32 %s, 4, %s" % (v(vb), v(vb)))
    a.e("v_add_u32 %s, %d, %s" % (v(vb), L_CS, v(vb)))
    a.e("s_lshl_b32 %s, %s, 6" % (s(S_T0), s(S_WN)))
    a.e("v_add_u32 %s, %s, %s" % (v(vh), s(S_T0), v(vb)))
    a.e("s_lshl_b32 %s, %s, 7" % (s(S_T0), s(S_WN)))
    a.e("v_add_u32 %s, %s, %s" % (v(vb), s(S_T0), v(vb)))
    a.e("s_waitcnt lgkmcnt(0)")
    for j, (si, ai) in enumerate(c.ct):
        if c.segs[si] == 'full': a.e("ds_read_b128 %s, %s offset:%d" % (v(cs + 4 * j, 4), v(vb), 256 * si + 64 * ai))
        else: a.e("ds_read_b128 %s, %s offset:%d" % (v(cs + 4 * j, 4), v(vh), 768))
    mk_srd(a, SRD_O, ('ws', WS_H[L], 2048 * G.HP))
    wcol_base(a, c, S_T2, S_HALFOFF)
    lane_col_off(a, vo, vl, vt)
    a.e("v_and_b32 %s, 15, %s" % (v(vt), v(vl)))
    a.e("v_mul_u32_u24 %s, %d, %s" % (v(vt), G.HP, v(vt)))
    a.e("v_add_u32 %s, %s, %s" % (v(vo), v(vo), v(vt)))
    a.e("s_lshl_b32 %s, %s, 6" % (s(S_T0), s(S_WN)))
    a.e("v_add_u32 %s, %s, %s" % (v(vo), s(S_T0), v(vo)))
    a.e("v_lshrrev_b32 %s, 4, %s" % (v(vh), v(vl)))
    a.e("v_lshl_add_u32 %s, %s, 3, %s" % (v(vh), v(vh), v(vt)))
    a.e("s_lshl_b32 %s, %s, 5" % (s(S_T0), s(S_WN)))
    a.e("s_add_u32 %s, %s, %s" % (s(S_T0), s(S_T0), s(S_HALFOFF)))
    a.e("s_add_u32 %s, %s, %s" % (s(S_T0), s(S_T0), s(S_T2)))
    a.e("v_add_u32 %s, %s, %s" % (v(vh), s(S_T0), v(vh)))
    a.e("v_add_u32 %s, %s, %s" % (v(vo), s(S_T2), v(vo)))
    a.e("s_lshl_b32 %s, %s, 7" % (s(S_T0), s(S_MT)))
    a.e("s_lshl_b32 %s, %s, 6" % (s(S_T1), s(S_WM)))
    a.e("s_add_u32 %s, %s, %s" % (s(S_T0), s(S_T0), s(S_T1)))
    a.e("s_mul_i32 %s, %s, %d" % (s(S_T0), s(S_T0), G.HP))
    a.e("s_waitcnt lgkmcnt(0)")
    def silu_n(items):
        for n, (x, j, tt) in enumerate(items):
            for i in range(4): a.e("v_fmac_f32 %s, %s, %s" % (v(x + i), v(mT + tt), v(cs + 4 * j + i)))
        for n, (x, j, tt) in enumerate(items):
            for i in range(4): a.e("v_mul_f32 %s, %s, %s" % (v(tmp + 4 * n + i), v(x + i), v(cT + tt)))
        for n, (x, j, tt) in enumerate(items):
            for i in range(4): a.e("v_exp_f32 %s, %s" % (v(tmp + 4 * n + i), v(tmp + 4 * n + i)))
        for n, (x, j, tt) in enumerate(items):
            for i in range(4): a.e("v_fma_f32 %s, %s, %s, %s" % (v(tmp + 4 * n + i), v(tmp + 4 * n + i), v(iT + tt), v(iT + tt)))
        for n, (x, j, tt) in enumerate(items):
            for i in range(4): a.e("v_rcp_f32 %s, %s" % (v(tmp + 4 * n + i), v(tmp + 4 * n + i)))
        for n, (x, j, tt) in enumerate(items):
            for i in range(4): a.e("v_mul_f32 %s, %s, %s" % (v(x + i), v(x + i), v(tmp + 4 * n + i)))
    h7 = R.get(8, 4); g7 = R.get(4, 4); vx = R.get()
    for tt in range(4):
        x = acc(6, tt)
        silu_n([(x, 6, tt)])
        for p in range(2):
            a.e("v_cvt_pk_bf16_f32 %s, %s, %s" % (v(h7 + 2 * tt + p), v(x + 2 * p), v(x + 2 * p + 1)))
    a.e("v_lshlrev_b32 %s, 4, %s" % (v(vx), v(vl)))
    a.e("s_lshl_b32 %s, %s, 10" % (s(S_T1), s(S_WAVE)))
    a.e("s_add_u32 %s, %s, %d" % (s(S_T1), s(S_T1), L_X7))
    a.e("v_add_u32 %s, %s, %s" % (v(vx), s(S_T1), v(vx)))
    l_a = a.newlab("g7a"); l_b = a.newlab("g7b")
    a.e("s_cmp_eq_u32 %s, 0" % s(S_WN)); a.e("s_cbranch_scc0 %s" % l_a)
    a.e("ds_write_b128 %s, %s" % (v(vx), v(h7 + 4, 4)))
    a.e("s_branch %s" % l_b)
    a.lab(l_a)
    a.e("ds_write_b128 %s, %s" % (v(vx), v(h7, 4)))
    a.lab(l_b)
    k = 0
    for tt in range(4):
        a.e("s_add_u32 %s, %s, %d" % (s(S_T1), s(S_T0), tt * 16 * G.HP))
        for si in range(3):
            b = pkd + 4 * (k & 3); k += 1
            silu_n([(acc(2 * si + ai, tt), 2 * si + ai, tt) for ai in range(2)])
            for ai in range(2):
                x = acc(2 * si + ai, tt)
                for p in range(2):
                    a.e("v_cvt_pk_bf16_f32 %s, %s, %s" % (v(b + 2 * ai + p), v(x + 2 * p), v(x + 2 * p + 1)))
            for p in range(2):
                a.e("v_permlane16_swap_b32 %s, %s" % (v(b + p), v(b + 2 + p)))
            a.e("buffer_store_dwordx4 %s, %s, %s, %s offen offset:%d sc1" % (v(b, 4), v(vo), s(SRD_O, 4), s(S_T1), 128 * si))
        if M.detail: tstamp(a, c.name + ".tt%d" % tt, names, True)
    a.e("s_waitcnt lgkmcnt(0)")
    a.e("s_barrier")
    a.e("v_xor_b32 %s, 1024, %s" % (v(vx), v(vx)))
    a.e("ds_read_b128 %s, %s" % (v(g7, 4), v(vx)))
    lane_col_off(a, vh, vl, vt)
    a.e("v_and_b32 %s, 15, %s" % (v(vt), v(vl)))
    a.e("v_mul_u32_u24 %s, %d, %s" % (v(vt), G.HP, v(vt)))
    a.e("v_add_u32 %s, %s, %s" % (v(vh), v(vh), v(vt)))
    a.e("s_add_u32 %s, %s, %s" % (s(S_T1), s(S_HALFOFF), s(S_T2)))
    a.e("v_add_u32 %s, %s, %s" % (v(vh), s(S_T1), v(vh)))
    l_c = a.newlab("g7c"); l_d = a.newlab("g7d")
    a.e("s_waitcnt lgkmcnt(0)")
    a.e("s_cmp_eq_u32 %s, 0" % s(S_WN)); a.e("s_cbranch_scc0 %s" % l_c)
    for i in range(2):
        b = pkd + 4 * i
        for p in range(2):
            a.e("v_mov_b32 %s, %s" % (v(b + p), v(h7 + 2 * i + p))); a.e("v_mov_b32 %s, %s" % (v(b + 2 + p), v(g7 + 2 * i + p)))
    a.e("s_mov_b32 %s, 0" % s(S_T4))
    a.e("s_branch %s" % l_d)
    a.lab(l_c)
    for i in range(2):
        b = pkd + 4 * i
        for p in range(2):
            a.e("v_mov_b32 %s, %s" % (v(b + p), v(g7 + 2 * i + p))); a.e("v_mov_b32 %s, %s" % (v(b + 2 + p), v(h7 + 4 + 2 * i + p)))
    a.e("s_mov_b32 %s, %d" % (s(S_T4), 2 * 16 * G.HP))
    a.lab(l_d)
    a.e("s_add_u32 %s, %s, %s" % (s(S_T4), s(S_T4), s(S_T0)))
    for i in range(2):
        b = pkd + 4 * i
        for p in range(2):
            a.e("v_permlane16_swap_b32 %s, %s" % (v(b + p), v(b + 2 + p)))
        a.e("s_add_u32 %s, %s, %d" % (s(S_T1), s(S_T4), i * 16 * G.HP))
        a.e("buffer_store_dwordx4 %s, %s, %s, %s offen sc1" % (v(b, 4), v(vh), s(SRD_O, 4), s(S_T1)))
    if M.detail:
        a.e("s_waitcnt vmcnt(0)")
        tstamp(a, c.name + ".drained", names, True)
    out_flag(a, F_H, L, vt)
    tstamp(a, c.name + ".pub", names)

def tail_stats(a): a.e("s_lshl_b32 %s, %s, 10" % (s(S_T0), s(S_MT)))
def tail_resid(a): a.e("s_lshl_b32 %s, %s, 7" % (s(S_T0), s(S_NT)))
def tail_dsk(a):
    a.e("s_lshl_b32 %s, %s, 8" % (s(S_T0), s(S_NT)))
    a.e("s_lshr_b32 %s, %s, 1" % (s(S_T1), s(S_WAVE))); a.e("s_lshl_b32 %s, %s, 7" % (s(S_T1), s(S_T1)))
    a.e("s_add_u32 %s, %s, %s" % (s(S_T0), s(S_T0), s(S_T1)))

def phases(opt):
    XP = G.XP; HP = G.HP; AB = 2048 * XP
    X0 = ('x', 0, ACT); X1 = ('ws', WS_X1, AB); X2 = ('ws', WS_X2, AB); X3 = ('ws', WS_X3, AB); OUT = ('out', 0, ACT)
    P = []
    com = dict(wflags='', xflags=' sc1')
    for L in range(2):
        xin = X0 if L == 0 else X2; xmid = X1 if L == 0 else X3; xout = X2 if L == 0 else OUT
        pin = 2048 if L == 0 else XP; pout = XP if L == 0 else 2048
        q = Cfg(name='q%d' % L, K=1024, xbuf=xin, x_pitch=pin, wbuf=('wqkv', 0, 1024 * 6144), w_pitch=6144, segs=['full'] * 3,
                w_seg_bytes=[0, 2048, 4096], w_ntile_bytes=128, NS=3, WM=2, WN=2, map=map_8x4, orient='TTNNNN',
                tailbuf=stbuf(2 * L), tail_pitch=0, tail_soff=tail_stats, inflag=None if L == 0 else (F_X, 1), kind='q', L=L, **{**com, **opt.get('q', {})})
        w = Cfg(name='o%d' % L, K=1024, xbuf=('ws', WS_O[L], AB), x_pitch=XP, wbuf=('wo', 0, 1024 * 2048), w_pitch=2048, segs=['full'],
                w_seg_bytes=[0], w_ntile_bytes=128, NS=5, WM=4, WN=1, SUBS=2, map=map_4x8, orient='TTTT',
                tailbuf=xin, tail_pitch=pin, tail_soff=tail_resid, obuf=xmid, o_pitch=XP, ostat=stbuf(2 * L + 1), inflag=(F_O, L), outflag=(F_X1, L), kind='r', L=L, **{**com, **opt.get('o', {})})
        u = Cfg(name='u%d' % L, K=1024, xbuf=xmid, x_pitch=XP, wbuf=('w1', 0, 1024 * 7168), w_pitch=7168, segs=['full'] * 3 + ['half'],
                w_seg_bytes=[0, 128, 256], w_ntile_bytes=448, NS=3, WM=2, WN=2, map=map_8x4, orient='T' * 7,
                tailbuf=stbuf(2 * L + 1), tail_pitch=0, tail_soff=tail_stats, inflag=(F_X1, L), kind='u', L=L, **{**com, **opt.get('u', {})})
        d = Cfg(name='d%d' % L, K=3584, xbuf=('ws', WS_H[L], 2048 * HP), x_pitch=HP, wbuf=('w2', 0, 3584 * 2048), w_pitch=2048, segs=['full'],
                w_seg_bytes=[0], w_ntile_bytes=128, NS=5, WM=4, WN=1, SUBS=2, map=map_4x8, orient='TTTT',
                tailbuf=xmid, tail_pitch=XP, tail_soff=tail_resid, obuf=xout, o_pitch=pout, ostat=stbuf(2) if L == 0 else None, inflag=(F_H, L),
                outflag=(F_X, 1) if L == 0 else None, kind='r', L=L, **{**com, **opt.get('d', {})})
        if opt.get('dsk', True):
            d = Cfg(name='d%d' % L, K=1792, xbuf=('ws', WS_H[L], 2048 * HP), x_pitch=HP, wbuf=('w2', 0, 3584 * 2048), w_pitch=2048, segs=['full', 'full'],
                    w_seg_bytes=[0, 128], w_ntile_bytes=256, NS=opt.get('dNS', 3), WM=2, WN=2, map=map_dsk2 if opt.get('same', False) else map_dsk, pxor=8 if opt.get('same', False) else 1, orient='TTTT', splitk=True,
                    tailbuf=xmid, tail_pitch=XP, tail_soff=tail_dsk, obuf=xout, o_pitch=pout, ostat=stbuf(2) if L == 0 else None, inflag=(F_H, L),
                    outflag=(F_X, 1) if L == 0 else None, kind='k', L=L, **{**com, **opt.get('d', {})})
        for c in (q, w, u, d):
            c.jobs_pre = []; c.jobs_at = {}; c.win = None; c.win_lead = 3
            c.rot = False; c.cs = False; c.lazy = None; c.extra = False; c.nopre = c.inflag is None
        q.rot = u.rot = True; q.cs = u.cs = True
        if L == 0:
            q.extra = u.extra = True
            q.jobs_pre = [JobZero()]
            q.lazy = JobLazy('init'); u.lazy = JobLazy('csu')
        pf = opt.get('pf', 'm')
        if 'x' in pf:
            w.win = JobXW()
            if d.kind != 'k': d.win = JobXW()
        if 'b' in pf and d.kind == 'k': d.jobs_pre.append(JobWbulkD())
        if 'w' in pf:
            q.jobs_pre.append(JobWbulk()); u.jobs_pre.append(JobWbulk())
        if 'm' in pf and L == 0:
            wa = opt.get('wa', 5); wb = opt.get('wb', 3)
            ja = [JobWarm(('wo', 0, 1024 * 2048), 16, 2), JobWarm(('w1', 0, 1024 * 7168), 56, 0)]
            jb = [JobWarm(('w2', 0, 3584 * 2048), 56, 0)]
            for g in range(8):
                q.jobs_at.setdefault(wa + g, []).append(JobCond(ja, g))
                u.jobs_at.setdefault(wb + g, []).append(JobCond(jb, g))
        if 'n' in pf and L == 0:
            q.jobs_at = {6: [JobWarm(('wo', 0, 1024 * 2048), 16, 2), JobWarm(('w1', 0, 1024 * 7168), 56, 0)]}
            u.jobs_at = {5: [JobWarm(('w2', 0, 3584 * 2048), 56, 0)]}
        if L == 0:
            q.jobs_at.setdefault(4, []).append(JobArrive('init')); q.jobs_at.setdefault(10, []).append(q.lazy)
            u.jobs_at.setdefault(4, []).append(JobArrive('csu')); u.jobs_at.setdefault(10, []).append(u.lazy)
        P += [q, w, u, d]
    return P

def mega_kernel(a, name, opt, nph=8):
    P = phases(opt)[:nph]
    kernel_header(a, name)
    l_end = a.newlab("end"); l_load = a.newlab("loader")
    a.e("s_cmp_ge_u32 s2, 256"); a.e("s_cbranch_scc1 %s" % l_end)
    load_kernargs(a)
    a.e("v_lshrrev_b32 v1, 6, v0")
    a.e("s_nop 0")
    a.e("v_readfirstlane_b32 %s, v1" % s(S_WAVE))
    if M.stamps: a.e("v_mov_b32 v255, 0")
    a.e("s_waitcnt lgkmcnt(0)")
    mk_srd(a, SRD_F, ('ws', WS_FLAG, FLAG_B))
    a.e("s_cmp_ge_u32 %s, 4" % s(S_WAVE))
    a.e("s_cbranch_scc1 %s" % l_load)
    cn = []; ln = []
    tstamp(a, "start", cn)
    a.e("v_mov_b32 v1, %d" % L_CNT); a.e("v_mov_b32 v2, 0")
    a.e("ds_write_b32 v1, v2")
    for c in P:
        r = compute_main(a, c, cn)
        if c.kind == 'q': qkv_epi(a, c, r, c.L, cn)
        elif c.kind == 'r': resid_epi(a, c, r, cn)
        elif c.kind == 'k': dsk_epi(a, c, r, cn)
        else: w1_epi(a, c, r, c.L, cn)
    flush_stamps(a, 0)
    a.e("s_endpgm")
    a.lab(l_load)
    a.e("s_sub_u32 %s, %s, 4" % (s(S_WAVE), s(S_WAVE)))
    lr = LRegs(); R = Regs(1, 128)
    lr.vl = R.get(); lr.vt = R.get(); lr.vt2 = R.get(); lr.vx = R.get(4); lr.vw = R.get(7); lr.vr = R.get(4); lr.vp = R.get(2); lr.vpf = R.get(); lr.vd = R.get(); lr.vlz = R.get(); lr.vcs = R.get(); lr.vc16 = R.get(16, 4); lr.vs16 = R.get(16, 4); lr.vca = R.get()
    a.e("v_and_b32 %s, 63, v0" % v(lr.vl))
    tstamp(a, "start", ln)
    loader_pre(a, P[0], lr)
    for i, c in enumerate(P):
        loader_main(a, c, lr, ln)
        tstamp(a, c.name + ".fin", ln)
        if G.bst and c.kind in 'rk': a.e("s_barrier")
        if i + 1 < len(P): loader_pre(a, P[i + 1], lr)
        if c.kind == 'u':
            a.e("s_barrier")
        if c.kind == 'q':
            a.e("s_barrier")
            skip = a.newlab("np")
            a.e("s_cmp_lg_u32 %s, 0" % s(S_WAVE)); a.e("s_cbranch_scc1 %s" % skip)
            def off(c=c):
                a.e("s_bfe_u32 %s, s2, 0x20001" % s(S_T5)); a.e("s_lshl_b32 %s, %s, 2" % (s(S_T5), s(S_T5)))
                a.e("s_lshr_b32 %s, s2, 6" % s(S_T3)); a.e("s_add_u32 %s, %s, %s" % (s(S_T5), s(S_T5), s(S_T3)))
                flag_off(a, F_K, c.L, S_T5)
            poll(a, off, 32, lr.vl, lr.vp, 0x200 + c.L)
            a.lab(skip)
            tstamp(a, c.name + ".kpolled", ln)
            a.e("s_barrier")
            a.e("s_barrier")
    flush_stamps(a, 1)
    a.lab(l_end)
    a.e("s_endpgm")
    M.cn = cn; M.ln = ln

def p0_zero_flags(a):
    mk_srd(a, SRD_P, ('ws', WS_FLAG, FLAG_B))
    a.e("v_mov_b32 v110, 0")
    a.e("v_and_b32 v111, 63, v0"); a.e("v_lshlrev_b32 v111, 2, v111")
    a.e("s_lshl_b32 %s, s2, 8" % s(S_T0))
    a.e("buffer_store_dword v110, v111, %s, %s offen" % (s(SRD_P, 4), s(S_T0)))

def build(path, stamps=False, header="", opt=None, nph=8, filt=None, detail=False):
    opt = opt or {}
    M.stamps = stamps; M.filt = filt; M.detail = detail; M.itphase = opt.get('itphase')
    G.HP = opt.get('HP', 7168); G.XP = opt.get('XP', 2048); G.bst = opt.get('bst', True); G.stprio = opt.get('stprio', 1)
    global WS_X3
    reuse = opt.get('reuse', True)
    WS_H[1] = WS_H[0] if reuse else 82 * MB
    WS_O[1] = WS_O[0] if reuse else 20 * MB
    WS_XCH[1] = WS_XCH[0] if reuse else 110 * MB
    WS_X3 = WS_X1 if reuse else 10 * MB
    a = Asm()
    a.raw('.amdgcn_target "amdgcn-amd-amdhsa--gfx950"'); a.raw(".text")
    KN = "interleave_layers__linear_attn_block__dense_activation_silu__prompt_kernel"
    mega_kernel(a, KN, opt, nph)
    a.raw('.section .rodata,"a"')
    a.raw(kernel_desc(KN, 256, 102))
    launches = [(KN, 256, 512, LDS_TOTAL)]
    head = header + "; @launch grid=(256,1,1) block=(512,1,1) lds=%d\n" % LDS_TOTAL
    open(path, 'w').write(head + a.text())
    return launches

if __name__ == '__main__':
    ref = open('interleave_layers__linear_attn_block__dense_activation_silu__prompt.s.ref').read().split('\n')
    hdr = "\n".join(l for l in ref[:10] if l.startswith(';') and '@launch' not in l and 'Override' not in l and 'grid=ceil' not in l) + "\n"
    out = sys.argv[1] if len(sys.argv) > 1 else 'interleave_layers__linear_attn_block__dense_activation_silu__prompt.s'
    print(build(out, header=hdr))
```

```python
import re

TRANS = ("v_exp_f32", "v_log_f32", "v_rcp_f32", "v_rsq_f32", "v_sqrt_f32", "v_sin_f32", "v_cos_f32", "v_rcp_iflag_f32")
REG = re.compile(r"^(-?)(abs\()?([vsa])(\d+)\)?$|^(-?)([vsa])\[(\d+):(\d+)\]$")

def regs_of(tok):
    tok = tok.strip()
    tok = tok.lstrip('-')
    if tok.startswith("abs(") or tok.startswith("|"):
        tok = tok.replace("abs(", "").replace(")", "").replace("|", "")
    m = re.match(r"^([vsa])(\d+)$", tok)
    if m: return [(m.group(1), int(m.group(2)))]
    m = re.match(r"^([vsa])\[(\d+):(\d+)\]$", tok)
    if m: return [(m.group(1), i) for i in range(int(m.group(2)), int(m.group(3)) + 1)]
    if tok == "vcc": return [("s", 106), ("s", 107)]
    if tok == "vcc_lo": return [("s", 106)]
    if tok == "vcc_hi": return [("s", 107)]
    if tok == "exec": return [("x", 0)]
    if tok == "m0": return [("m", 0)]
    return []

class I:
    def __init__(self, text):
        self.text = text
        t = text.split(";")[0].strip()
        self.t = t
        p = t.split(None, 1)
        self.op = p[0] if p else ""
        rest = p[1] if len(p) > 1 else ""
        ops = [x.strip() for x in rest.split(",")] if rest else []
        clean = []
        for o in ops:
            clean.append(o.split()[0] if o else o)
        self.ops = clean
        op = self.op
        self.valu = op.startswith("v_") and not op.startswith("v_mfma")
        self.mfma = op.startswith("v_mfma")
        self.vmem = op.startswith(("buffer_", "global_", "flat_"))
        self.ds = op.startswith("ds_")
        self.salu = op.startswith("s_")
        self.dpp = ("dpp" in op) or any(k in t for k in ("row_shr", "row_shl", "row_ror", "quad_perm", "row_bcast", "row_mirror", "row_half_mirror", "wave_"))
        self.perm = op.startswith("v_permlane")
        self.trans = any(op.startswith(x) for x in TRANS)
        self.k = 1
        if op == "s_nop": self.k = int(self.ops[0], 0) + 1
        d = []; u = []
        R = [regs_of(o) for o in clean]
        if op.startswith("v_cmp"):
            d = R[0]; u = sum(R[1:], [])
            if op.startswith("v_cmpx"): d = d + [("x", 0)]
        elif op.startswith(("v_readfirstlane", "v_readlane")):
            d = R[0]; u = sum(R[1:], [])
        elif self.perm and "swap" in op:
            d = R[0] + R[1]; u = R[0] + R[1]
        elif op.startswith(("v_add_co", "v_sub_co", "v_addc_co", "v_subb_co", "v_subrev_co")):
            d = R[0] + R[1]; u = sum(R[2:], [])
        elif op.startswith(("v_fmac", "v_dot2c", "v_pk_fmac")):
            d = R[0]; u = sum(R, [])
        elif self.valu or self.mfma:
            d = R[0] if R else []; u = sum(R[1:], [])
            if op.startswith("v_cndmask") and len(clean) == 3: u += regs_of("vcc")
            if self.dpp: u += R[0]
        elif self.vmem:
            lds = t.endswith(" lds") or " lds " in t
            if "store" in op or ("atomic" in op and " sc0" not in t):
                u = sum(R, [])
            elif lds or op in ("buffer_inv", "buffer_wbl2"):
                u = sum(R, []) + [("m", 0)]
            else:
                d = R[0]; u = sum(R[1:], [])
        elif self.ds:
            if op.startswith(("ds_write", "ds_add", "ds_max", "ds_min")) and "rtn" not in op: u = sum(R, [])
            else: d = R[0]; u = sum(R[1:], [])
        elif self.salu:
            if op.startswith(("s_cmp", "s_cbranch", "s_waitcnt", "s_barrier", "s_nop", "s_branch", "s_setprio", "s_sleep", "s_endpgm")):
                u = sum(R, [])
            else:
                d = R[0] if R else []; u = sum(R[1:], [])
                if "saveexec" in op: d = d + [("x", 0)]
        self.d = set(d); self.u = set(u)
        self.wide_store = self.vmem and "store" in op and ("x3" in op or "x4" in op)
        self.store_data = set(R[0]) if (self.wide_store and op.startswith("buffer")) else (set(R[1]) if self.wide_store and len(R) > 1 else set())
        self.passes = 0
        if self.mfma:
            self.passes = 8 if "32x32" in op else 4

def need(p, c):
    n = 0
    pv = {r for r in p.d if r[0] in "va"}
    ps = {r for r in p.d if r[0] == "s"}
    cu = c.u; cd = c.d
    if p.valu:
        if pv & cu:
            if c.mfma: n = max(n, 2)
            if c.dpp or c.perm: n = max(n, 2)
            if c.op.startswith(("v_readfirstlane", "v_readlane")): n = max(n, 1)
            if p.trans and (c.valu or c.mfma) : n = max(n, 1)
            if p.trans and (c.vmem or c.ds): n = max(n, 1)
        if ps & cu:
            if c.valu or c.mfma: n = max(n, 2)
            if c.op.startswith(("v_readlane", "v_writelane")): n = max(n, 4)
            if c.vmem: n = max(n, 5)
            if c.salu: n = max(n, 1)
        if ("x", 0) in p.d and (c.mfma or c.perm): n = max(n, 4)
        if ("x", 0) in p.d and c.dpp: n = max(n, 5)
    if p.mfma:
        big = 12 if p.passes == 8 else 8
        if c.mfma:
            cC = set(regs_of(c.ops[3])) if len(c.ops) > 3 else set()
            cAB = set(regs_of(c.ops[1])) | set(regs_of(c.ops[2]))
            if pv & cAB: n = max(n, big)
            if pv & cC and cC != pv: n = max(n, 10 if p.passes == 8 else 6)
            if pv & c.d and not (pv & cC): n = max(n, big)
        else:
            if pv & (cu | cd): n = max(n, big)
        pC = set(regs_of(p.ops[3])) if len(p.ops) > 3 else set()
        if c.valu and (pC & cd): n = max(n, 7 if p.passes == 8 else 3)
    if p.salu and ("m", 0) in p.d and ("m", 0) in cu: n = max(n, 1)
    if p.wide_store and (p.store_data & cd) and (c.valu or c.mfma or c.ds or c.vmem): n = max(n, 2)
    return n

LOOK = 14
def fix(lines):
    out = []; hist = []
    added = 0
    for ln in lines:
        st = ln.strip()
        if (not st) or st.startswith((";", ".")) or st.endswith(":"):
            out.append(ln); continue
        c = I(st)
        req = 0; dist = 0
        for p in reversed(hist[-LOOK:]):
            n = need(p, c)
            if n > dist: req = max(req, n - dist)
            dist += p.k
            if dist >= 12: break
        while req > 0:
            k = min(req, 8)
            nop = I("s_nop %d" % (k - 1))
            out.append("    s_nop %d" % (k - 1)); hist.append(nop); req -= k; added += 1
        out.append(ln); hist.append(c)
    return out, added

def check_loops(lines):
    labels = {}
    ins = []
    for ln in lines:
        st = ln.strip()
        if st.endswith(":") and not st.startswith(";"): labels[st[:-1]] = len(ins); continue
        if (not st) or st.startswith((";", ".")): continue
        ins.append(I(st))
    probs = []
    for i, c in enumerate(ins):
        if c.op.startswith(("s_cbranch", "s_branch")) and c.ops and c.ops[0] in labels:
            tgt = labels[c.ops[0]]
            seq = ins[max(0, i - LOOK):i + 1] + ins[tgt:tgt + LOOK]
            base = len(ins[max(0, i - LOOK):i + 1])
            for j in range(base, len(seq)):
                dist = 0
                for p in reversed(seq[:j]):
                    idx = seq.index(p)
                    n = need(p, seq[j])
                    if n > dist and idx < base: probs.append((p.t, seq[j].t, n, dist))
                    dist += p.k
                    if dist >= 12: break
    return probs

def sched(lines, k=2):
    ins = [I(l) for l in lines]
    n = len(ins)
    impl = []
    for c in ins:
        d = set(c.d); u = set(c.u)
        if c.salu and not c.op.startswith(("s_mov", "s_nop")): d.add(("scc", 0))
        if c.op.startswith(("s_cselect", "s_addc", "s_subb")): u.add(("scc", 0))
        if c.valu or c.mfma or c.vmem or c.ds: u.add(("x", 0))
        if c.op == "s_mov_b64" and c.ops and c.ops[0] == "exec": d.add(("x", 0))
        if c.op == "s_mov_b32" and c.ops and c.ops[0] in ("exec_lo", "exec_hi"): d.add(("x", 0))
        impl.append((d, u))
    preds = [set() for _ in range(n)]
    lastmem = None
    for j in range(n):
        dj, uj = impl[j]
        for i in range(j - 1, -1, -1):
            di, ui = impl[i]
            if (di & uj) or (di & dj) or (ui & dj): preds[j].add(i)
        if ins[j].vmem or ins[j].ds:
            if lastmem is not None: preds[j].add(lastmem)
            lastmem = j
        assert not ins[j].op.startswith(("s_waitcnt", "s_barrier", "s_cbranch", "s_branch")), ins[j].t
    done = [False] * n; order = []; since = 99; last_trans = None; recent = []
    while len(order) < n:
        ready = [j for j in range(n) if not done[j] and all(done[p] for p in preds[j])]
        tr = [j for j in ready if ins[j].trans]
        pl = [j for j in ready if not ins[j].trans]
        pl_ind = [j for j in pl if not any(t in preds[j] for t in recent[-2:])]
        if not pl_ind: pl_ind = [j for j in pl if last_trans is None or last_trans not in preds[j]]
        if since < k and pl_ind: pick = pl_ind[0]
        elif tr: pick = tr[0]
        elif pl_ind: pick = pl_ind[0]
        else: pick = pl[0]
        done[pick] = True; order.append(pick)
        if ins[pick].trans: since = 0; last_trans = pick; recent.append(pick)
        else: since += 1
    return [lines[j] for j in order]
```

```python
import sys; sys.path.insert(0, 'gen')
from core import *
import full
from full import pk, lane_col_off, p0_kernel, SC, MB, ACT, HB, KVP_B, ST_B, CS_B, LOG2E, NLOG2E, EPS6, EPS5

WS_X1 = 0; WS_X2 = 5 * MB; WS_X3 = 10 * MB
WS_O = [15 * MB, 20 * MB]; WS_H = [66 * MB, 82 * MB]; WS_KVP = [52 * MB, 56 * MB]
WS_ST = full.WS_ST; WS_CS = full.WS_CS
WS_ST = 60 * MB; WS_CS = 62 * MB; WS_FLAG = 63 * MB; WS_STAMP = 64 * MB
full.WS_ST = WS_ST; full.WS_CS = WS_CS
def stbuf(i): return ('ws', WS_ST + i * ST_B, ST_B)
FLAG_B = 1 << 20
CSQ = ('ws', WS_CS, 16 * 3072 * 4); CSU = ('ws', WS_CS + 262144, 16 * 3584 * 4)
CSQF = ('ws', WS_CS + 524288, 3072 * 4); CSUF = ('ws', WS_CS + 524288 + 16384, 3584 * 4)
F_C = 50
def foffc(): return 10 * 65536
F_K, F_O, F_X1, F_H, F_X = 0, 1, 2, 3, 4
def foff(kind, L): return (L * 5 + kind) * 65536

L_X7 = 131072; L_KVX = 122880; L_AEX = 122880; L_RES = 135168; L_STAT = 151552; L_CS = L_STAT + 3072; L_CNT = 155648; LDS_TOTAL = 155776
SRD_F = 88
SPIN_MAX = 400000

class G:
    pad = 0
    schedk = 2
    stprio = 0
    bst = True
    HP = 7168
    XP = 2048

class M:
    stamps = False
    filt = None
    itphase = None
    detail = False

def tstamp(a, name, names, clk=False):
    if not M.stamps: return
    if M.filt and not M.filt(name): return
    i = len(names); names.append(name)
    assert i < 63
    a.e("s_memrealtime s[96:97]")
    if clk: a.e("s_memtime s[98:99]")
    a.e("s_waitcnt lgkmcnt(0)")
    a.e("v_writelane_b32 v255, s96, %d" % i)
    if clk:
        names.append(name + "#clk")
        a.e("v_writelane_b32 v255, s98, %d" % (i + 1))

def flush_stamps(a, role):
    if not M.stamps: return
    mk_srd(a, SRD_Q, ('ws', WS_STAMP, 256 * 8 * 256))
    a.e("s_lshl_b32 %s, s2, 11" % s(S_T0))
    a.e("s_add_u32 %s, %s, %d" % (s(S_T1), s(S_WAVE), 4 * role))
    a.e("s_lshl_b32 %s, %s, 8" % (s(S_T1), s(S_T1)))
    a.e("s_add_u32 %s, %s, %s" % (s(S_T0), s(S_T0), s(S_T1)))
    a.e("v_and_b32 v1, 63, v0"); a.e("v_lshlrev_b32 v1, 2, v1")
    a.e("buffer_store_dword v255, v1, %s, %s offen" % (s(SRD_Q, 4), s(S_T0)))

def poll(a, off_sreg_setup, nslots, vl, vt, code):
    off_sreg_setup()
    lab = a.newlab("poll"); done = a.newlab("polld")
    a.e("v_and_b32 %s, %d, %s" % (v(vt), nslots - 1, v(vl)))
    a.e("v_lshlrev_b32 %s, 7, %s" % (v(vt), v(vt)))
    a.e("s_mov_b32 %s, %d" % (s(S_T4), SPIN_MAX))
    a.lab(lab)
    a.e("buffer_load_dword %s, %s, %s, %s offen sc1" % (v(vt + 1), v(vt), s(SRD_F, 4), s(S_T3)))
    a.e("s_waitcnt vmcnt(0)")
    a.e("v_cmp_ne_u32 vcc, 0, %s" % v(vt + 1))
    a.e("s_cmp_eq_u64 vcc, -1")
    a.e("s_cbranch_scc1 %s" % done)
    a.e("s_sleep 1")
    a.e("s_sub_u32 %s, %s, 1" % (s(S_T4), s(S_T4)))
    a.e("s_cmp_lg_u32 %s, 0" % s(S_T4))
    a.e("s_cbranch_scc1 %s" % lab)
    a.e("s_mov_b32 %s, %s" % (s(SRD_Q), s(ptr('dbg')))); a.e("s_mov_b32 %s, %s" % (s(SRD_Q + 1), s(ptr('dbg') + 1)))
    a.e("s_mov_b32 %s, 256" % s(SRD_Q + 2)); a.e("s_mov_b32 %s, 0x20000" % s(SRD_Q + 3))
    a.e("v_mov_b32 %s, %d" % (v(vt + 1), code)); a.e("v_mov_b32 %s, 0" % v(vt))
    a.e("buffer_store_dword %s, %s, %s, 0 offen" % (v(vt + 1), v(vt), s(SRD_Q, 4)))
    a.lab(done)

def set_flag(a, off_setup, vt):
    off_setup()
    a.e("s_waitcnt vmcnt(0)")
    a.e("v_mov_b32 %s, 1" % v(vt)); a.e("v_mov_b32 %s, 0" % v(vt + 1))
    a.e("s_mov_b64 exec, 1")
    a.e("buffer_store_dword %s, %s, %s, %s offen sc1" % (v(vt), v(vt + 1), s(SRD_F, 4), s(S_T3)))
    a.e("s_mov_b64 exec, -1")

def set_flag_wg(a, off_setup, vt):
    sk = a.newlab("nf")
    a.e("s_waitcnt vmcnt(0)")
    a.e("v_mov_b32 %s, 1" % v(vt)); a.e("v_mov_b32 %s, %d" % (v(vt + 1), L_CNT))
    a.e("s_mov_b64 exec, 1")
    a.e("ds_add_rtn_u32 %s, %s, %s" % (v(vt + 1), v(vt + 1), v(vt)))
    a.e("s_waitcnt lgkmcnt(0)")
    a.e("v_readfirstlane_b32 %s, %s" % (s(S_T4), v(vt + 1)))
    a.e("s_and_b32 %s, %s, 3" % (s(S_T4), s(S_T4)))
    a.e("s_cmp_eq_u32 %s, 3" % s(S_T4)); a.e("s_cbranch_scc0 %s" % sk)
    off_setup()
    a.e("v_mov_b32 %s, 0" % v(vt + 1))
    a.e("buffer_store_dword %s, %s, %s, %s offen sc1" % (v(vt), v(vt + 1), s(SRD_F, 4), s(S_T3)))
    a.lab(sk)
    a.e("s_mov_b64 exec, -1")

def flag_off(a, kind, L, row_s, slot_expr=None):
    a.e("s_lshl_b32 %s, %s, 12" % (s(S_T3), s(row_s)))
    a.e("s_add_u32 %s, %s, %d" % (s(S_T3), s(S_T3), foff(kind, L)))
    if slot_expr: slot_expr()

class LRegs: pass

def loader_setup(a, c, lr):
    vl, vt, vt2 = lr.vl, lr.vt, lr.vt2
    vx, vw, vr = lr.vx, lr.vw, lr.vr
    c.map(a)
    mk_srd(a, SRD_X, c.xbuf); mk_srd(a, SRD_W, c.wbuf); mk_srd(a, SRD_R, c.tailbuf)
    a.e("s_lshl_b32 %s, %s, 4" % (s(S_T0), s(S_WAVE)))
    a.e("s_mul_i32 %s, %s, %d" % (s(S_T0), s(S_T0), c.w_pitch))
    wcol_base(a, c, S_T1, S_HALFOFF)
    a.e("s_add_u32 %s, %s, %s" % (s(S_T0), s(S_T0), s(S_T1)))
    a.e("v_lshrrev_b32 %s, 3, %s" % (v(vt), v(vl)))
    a.e("v_mul_u32_u24 %s, %d, %s" % (v(vt), c.w_pitch, v(vt)))
    a.e("v_add_u32 %s, %s, %s" % (v(vt), s(S_T0), v(vt)))
    for jj in range(2):
        a.e("v_lshrrev_b32 %s, 3, %s" % (v(vt2), v(vl)))
        a.e("v_and_b32 %s, 2, %s" % (v(vt2), v(vt2)))
        if jj: a.e("v_add_u32 %s, 4, %s" % (v(vt2), v(vt2)))
        a.e("v_xor_b32 %s, %s, %s" % (v(vt2), v(vl), v(vt2)))
        a.e("v_and_b32 %s, 7, %s" % (v(vt2), v(vt2)))
        for si in range(c.nfull):
            r = vw + 2 * si + jj
            a.e("v_lshl_add_u32 %s, %s, 4, %s" % (v(r), v(vt2), v(vt)))
            off = c.w_seg_bytes[si] + jj * (8 * c.w_pitch - 1024)
            if off: a.e("v_add_u32 %s, 0x%x, %s" % (v(r), off, v(r)))
    if c.nhalf:
        r = vw + 2 * c.nfull
        a.e("v_lshrrev_b32 %s, 2, %s" % (v(vt), v(vl)))
        a.e("v_mul_u32_u24 %s, %d, %s" % (v(vt), c.w_pitch, v(vt)))
        a.e("v_add_u32 %s, %s, %s" % (v(vt), s(S_T0), v(vt)))
        a.e("v_lshrrev_b32 %s, 4, %s" % (v(vt2), v(vl)))
        a.e("v_and_b32 %s, 2, %s" % (v(vt2), v(vt2)))
        a.e("v_xor_b32 %s, %s, %s" % (v(vt2), v(vl), v(vt2)))
        a.e("v_and_b32 %s, 3, %s" % (v(vt2), v(vt2)))
        a.e("v_lshl_add_u32 %s, %s, 4, %s" % (v(r), v(vt2), v(vt)))
        a.e("v_add_u32 %s, %s, %s" % (v(r), s(S_HALFOFF), v(r)))
    a.e("s_lshl_b32 %s, %s, 12" % (s(S_MX), s(S_WAVE)))
    for si in range(c.nfull):
        a.e("s_lshl_b32 %s, %s, 11" % (s(S_MS + si), s(S_WAVE)))
        a.e("s_add_u32 %s, %s, %d" % (s(S_MS + si), s(S_MS + si), c.XB + 8192 * si))
    if c.nhalf:
        a.e("s_lshl_b32 %s, %s, 10" % (s(S_MS + c.nfull), s(S_WAVE)))
        a.e("s_add_u32 %s, %s, %d" % (s(S_MS + c.nfull), s(S_MS + c.nfull), c.XB + 8192 * c.nfull))
    if c.rot:
        a.e("s_add_u32 %s, %s, %s" % (s(S_T0), s(S_MT), s(S_NT)))
        a.e("s_and_b32 %s, %s, 15" % (s(S_T0), s(S_T0)))
        a.e("s_lshl_b32 %s, %s, 7" % (s(S_XOFF), s(S_T0)))
        a.e("s_mul_i32 %s, %s, %d" % (s(S_WOFF), s(S_T0), 64 * c.w_pitch))
    elif getattr(c, 'splitk', False):
        a.e("s_mul_i32 %s, %s, %d" % (s(S_XOFF), s(S_KH), c.K * 2))
        a.e("s_mul_i32 %s, %s, %d" % (s(S_WOFF), s(S_KH), c.K * c.w_pitch))
    else:
        a.e("s_mov_b32 %s, 0" % s(S_XOFF)); a.e("s_mov_b32 %s, 0" % s(S_WOFF))

def issueW(a, c, lr, slot):
    def m0(sreg):
        if slot is None: a.e("s_add_u32 m0, %s, %s" % (s(S_SLOT), s(sreg)))
        else: a.e("s_add_u32 m0, %s, %d" % (s(sreg), slot * c.STG))
        a.e("s_nop 0")
    for si in range(c.nfull):
        m0(S_MS + si)
        for jj in range(2):
            a.e("buffer_load_dwordx4 %s, %s, %s offen offset:%d%s lds" % (v(lr.vw + 2 * si + jj), s(SRD_W, 4), s(S_WOFF), 1024 * jj, c.wflags))
    if c.nhalf:
        m0(S_MS + c.nfull)
        a.e("buffer_load_dwordx4 %s, %s, %s offen%s lds" % (v(lr.vw + 2 * c.nfull), s(SRD_W, 4), s(S_WOFF), c.wflags))
    a.e("s_add_u32 %s, %s, %d" % (s(S_WOFF), s(S_WOFF), 64 * c.w_pitch))
    if c.rot:
        a.e("s_cmp_eq_u32 %s, %d" % (s(S_WOFF), c.K * c.w_pitch))
        a.e("s_cselect_b32 %s, 0, %s" % (s(S_WOFF), s(S_WOFF)))

def issueX(a, c, lr, slot):
    if slot is None: a.e("s_add_u32 m0, %s, %s" % (s(S_SLOT), s(S_MX)))
    else: a.e("s_add_u32 m0, %s, %d" % (s(S_MX), slot * c.STG))
    a.e("s_nop 0")
    for j in range(4):
        a.e("buffer_load_dwordx4 %s, %s, %s offen offset:%d%s lds" % (v(lr.vx + j), s(SRD_X, 4), s(S_XOFF), 1024 * j, c.xflags))
    a.e("s_add_u32 %s, %s, 128" % (s(S_XOFF), s(S_XOFF)))
    if c.rot:
        a.e("s_cmp_eq_u32 %s, %d" % (s(S_XOFF), c.K * 2))
        a.e("s_cselect_b32 %s, 0, %s" % (s(S_XOFF), s(S_XOFF)))

class Job:
    nops = 1
    def setup(self, a, c, lr): pass
    def emit(self, a, c, lr): pass

class JobXW(Job):
    def setup(self, a, c, lr):
        vp = lr.vpf; vt = lr.vt; vl = lr.vl
        lx = a.newlab("jx"); le = a.newlab("je")
        a.e("s_cmp_ge_u32 %s, 2" % s(S_WAVE)); a.e("s_cbranch_scc0 %s" % lx)
        for i in range(4): a.e("s_mov_b32 %s, %s" % (s(SRD_P + i), s(SRD_W + i)))
        a.e("s_bfe_u32 %s, s2, 0x20003" % s(S_T0))
        a.e("s_lshl_b32 %s, %s, 4" % (s(S_T0), s(S_T0)))
        a.e("s_sub_u32 %s, %s, 2" % (s(S_T1), s(S_WAVE)))
        a.e("s_lshl_b32 %s, %s, 8" % (s(S_T1), s(S_T1)))
        a.e("s_add_u32 %s, %s, %s" % (s(S_T0), s(S_T0), s(S_T1)))
        a.e("s_add_u32 %s, %s, %d" % (s(S_T0), s(S_T0), c.NS * 64))
        a.e("v_lshrrev_b32 %s, 4, %s" % (v(vt), v(vl)))
        a.e("v_lshlrev_b32 %s, 6, %s" % (v(vt), v(vt)))
        a.e("v_and_b32 %s, 15, %s" % (v(vp), v(vl)))
        a.e("v_add_u32 %s, %s, %s" % (v(vp), v(vp), v(vt)))
        a.e("v_add_u32 %s, %s, %s" % (v(vp), s(S_T0), v(vp)))
        a.e("v_mul_u32_u24 %s, %d, %s" % (v(vp), c.w_pitch, v(vp)))
        a.e("s_lshl_b32 %s, %s, 7" % (s(S_T0), s(S_NT)))
        a.e("v_add_u32 %s, %s, %s" % (v(vp), s(S_T0), v(vp)))
        a.e("s_mov_b32 %s, %d" % (s(S_PFINC), 8 * 64 * c.w_pitch))
        a.e("s_branch %s" % le)
        a.lab(lx)
        for i in range(4): a.e("s_mov_b32 %s, %s" % (s(SRD_P + i), s(SRD_X + i)))
        a.e("s_lshr_b32 %s, s2, 5" % s(S_T0))
        a.e("s_lshl_b32 %s, %s, 4" % (s(S_T0), s(S_T0)))
        a.e("s_lshl_b32 %s, %s, 7" % (s(S_T1), s(S_MT)))
        a.e("s_add_u32 %s, %s, %s" % (s(S_T0), s(S_T0), s(S_T1)))
        a.e("v_and_b32 %s, 15, %s" % (v(vp), v(vl)))
        a.e("v_add_u32 %s, %s, %s" % (v(vp), s(S_T0), v(vp)))
        a.e("v_mul_u32_u24 %s, %d, %s" % (v(vp), c.x_pitch, v(vp)))
        a.e("v_lshrrev_b32 %s, 4, %s" % (v(vt), v(vl)))
        a.e("s_lshl_b32 %s, %s, 2" % (s(S_T0), s(S_WAVE)))
        a.e("v_add_u32 %s, %s, %s" % (v(vt), s(S_T0), v(vt)))
        a.e("v_lshl_add_u32 %s, %s, 7, %s" % (v(vp), v(vt), v(vp)))
        a.e("s_mov_b32 %s, %d" % (s(S_PFINC), 8 * 128))
        a.lab(le)
        a.e("s_mov_b32 %s, 0" % s(S_PFOFF))
    def emit(self, a, c, lr):
        a.e("buffer_load_dword %s, %s, %s, %s offen sc1" % (v(lr.vd), v(lr.vpf), s(SRD_P, 4), s(S_PFOFF)))
        a.e("s_add_u32 %s, %s, %s" % (s(S_PFOFF), s(S_PFOFF), s(S_PFINC)))

class JobWbulk(Job):
    nops = 2
    def setup(self, a, c, lr): pass
    def emit(self, a, c, lr):
        vp = lr.vpf; vt = lr.vt; vl = lr.vl
        a.e("s_bfe_u32 %s, s2, 0x30003" % s(S_T0))
        a.e("s_lshl_b32 %s, %s, 7" % (s(S_T0), s(S_T0)))
        a.e("s_lshl_b32 %s, %s, 5" % (s(S_T1), s(S_WAVE)))
        a.e("s_add_u32 %s, %s, %s" % (s(S_T0), s(S_T0), s(S_T1)))
        a.e("v_and_b32 %s, 31, %s" % (v(vp), v(vl)))
        a.e("v_add_u32 %s, %s, %s" % (v(vp), s(S_T0), v(vp)))
        a.e("v_mul_u32_u24 %s, %d, %s" % (v(vp), c.w_pitch, v(vp)))
        wcol_base(a, c, S_T0, S_HALFOFF)
        a.e("v_add_u32 %s, %s, %s" % (v(vp), s(S_T0), v(vp)))
        step = c.w_seg_bytes[1]
        a.e("v_lshrrev_b32 %s, 5, %s" % (v(vt), v(vl)))
        a.e("v_mul_u32_u24 %s, %d, %s" % (v(vt), step, v(vt)))
        a.e("v_add_u32 %s, %s, %s" % (v(vt), v(vt), v(vp)))
        a.e("buffer_load_dword %s, %s, %s, 0 offen" % (v(lr.vd), v(vt), s(SRD_W, 4)))
        if c.nhalf:
            a.e("v_lshrrev_b32 %s, 5, %s" % (v(vt), v(vl)))
            a.e("s_sub_u32 %s, %s, %d" % (s(S_T0), s(S_HALFOFF), 2 * step))
            a.e("v_mul_lo_u32 %s, %s, %s" % (v(vt), v(vt), s(S_T0)))
            a.e("v_add_u32 %s, %s, %s" % (v(vt), v(vt), v(vp)))
            a.e("v_add_u32 %s, %d, %s" % (v(vt), 2 * step, v(vt)))
        else:
            a.e("v_add_u32 %s, %d, %s" % (v(vt), 2 * step, v(vp)))
        a.e("buffer_load_dword %s, %s, %s, 0 offen" % (v(lr.vd), v(vt), s(SRD_W, 4)))

class JobWbulkO(Job):
    def emit(self, a, c, lr):
        vp = lr.vpf
        a.e("s_bfe_u32 %s, s2, 0x20003" % s(S_T0)); a.e("s_lshl_b32 %s, %s, 8" % (s(S_T0), s(S_T0)))
        a.e("s_lshl_b32 %s, %s, 6" % (s(S_T1), s(S_WAVE))); a.e("s_add_u32 %s, %s, %s" % (s(S_T0), s(S_T0), s(S_T1)))
        a.e("v_add_u32 %s, %s, %s" % (v(vp), s(S_T0), v(lr.vl)))
        a.e("v_lshlrev_b32 %s, 11, %s" % (v(vp), v(vp)))
        a.e("s_lshl_b32 %s, %s, 7" % (s(S_T0), s(S_NT)))
        a.e("buffer_load_dword %s, %s, %s, %s offen" % (v(lr.vd), v(vp), s(SRD_W, 4), s(S_T0)))

class JobWarm(Job):
    def __init__(self, buf, per_wave, shift): self.buf = buf; self.pw = per_wave; self.shift = shift
    def emit(self, a, c, lr):
        vt = lr.vt; vl = lr.vl
        mk_srd(a, SRD_P, self.buf)
        a.e("s_lshl_b32 %s, s2, 2" % s(S_T0)); a.e("s_add_u32 %s, %s, %s" % (s(S_T0), s(S_T0), s(S_WAVE)))
        a.e("s_mul_i32 %s, %s, %d" % (s(S_T0), s(S_T0), self.pw * 128))
        a.e("v_lshrrev_b32 %s, %d, %s" % (v(vt), self.shift, v(vl)))
        a.e("v_min_u32 %s, %d, %s" % (v(vt), self.pw - 1, v(vt)))
        a.e("v_lshlrev_b32 %s, 7, %s" % (v(vt), v(vt)))
        a.e("buffer_load_dword %s, %s, %s, %s offen" % (v(lr.vd), v(vt), s(SRD_P, 4), s(S_T0)))

class JobCond(Job):
    nops = 0
    def __init__(self, jobs, g): self.jobs = jobs; self.g = g
    def __eq__(self, o): return self is o
    def __hash__(self): return id(self)
    def emit(self, a, c, lr):
        sk = a.newlab("jc")
        a.e("s_bfe_u32 %s, s2, 0x30003" % s(S_T0)); a.e("s_cmp_lg_u32 %s, %d" % (s(S_T0), self.g)); a.e("s_cbranch_scc1 %s" % sk)
        for j in self.jobs: j.emit(a, c, lr)
        a.lab(sk)

def dbg_srd(a):
    a.e("s_mov_b32 %s, %s" % (s(SRD_Q), s(ptr('dbg')))); a.e("s_mov_b32 %s, %s" % (s(SRD_Q + 1), s(ptr('dbg') + 1)))
    a.e("s_mov_b32 %s, 256" % s(SRD_Q + 2)); a.e("s_mov_b32 %s, 0x20000" % s(SRD_Q + 3))

class JobCode(Job):
    NL = 5
    def emit(self, a, c, lr):
        lab = a.newlab("pc")
        a.e("s_getpc_b64 s[96:97]")
        a.lab(lab)
        a.e("s_sub_u32 s96, s96, %s-%s" % (lab, G.kname)); a.e("s_subb_u32 s97, s97, 0")
        a.e("s_lshr_b32 %s, s2, 3" % s(S_T0)); a.e("s_lshl_b32 %s, %s, 2" % (s(S_T0), s(S_T0)))
        a.e("s_add_u32 %s, %s, %s" % (s(S_T0), s(S_T0), s(S_WAVE))); a.e("s_mul_i32 %s, %s, %d" % (s(S_T0), s(S_T0), self.NL))
        a.e("v_min_u32 %s, %d, %s" % (v(lr.vt), self.NL - 1, v(lr.vl)))
        a.e("v_add_u32 %s, %s, %s" % (v(lr.vt), s(S_T0), v(lr.vt)))
        a.e("v_lshlrev_b32 %s, 7, %s" % (v(lr.vt), v(lr.vt)))
        a.e("v_min_u32 %s, %s-%s-4, %s" % (v(lr.vt), G.kend, G.kname, v(lr.vt)))
        a.e("v_mov_b32 %s, s97" % v(lr.vpa + 1))
        a.e("v_add_co_u32 %s, vcc, s96, %s" % (v(lr.vpa), v(lr.vt)))
        a.e("v_addc_co_u32 %s, vcc, 0, %s, vcc" % (v(lr.vpa + 1), v(lr.vpa + 1)))
        a.e("s_mov_b64 exec, 0x%x" % ((1 << self.NL) - 1))
        a.e("global_load_dword %s, %s, off" % (v(lr.vd), v(lr.vpa, 2)))
        a.e("s_mov_b64 exec, -1")

class JobZero(Job):
    def emit(self, a, c, lr):
        z = lr.vc16
        for i in range(4): a.e("v_mov_b32 %s, 0" % v(z + i))
        a.e("v_lshlrev_b32 %s, 4, %s" % (v(lr.vt), v(lr.vl)))
        a.e("s_lshl_b32 %s, s2, 2" % s(S_T0)); a.e("s_add_u32 %s, %s, %s" % (s(S_T0), s(S_T0), s(S_WAVE)))
        a.e("s_lshl_b32 %s, %s, 10" % (s(S_T0), s(S_T0)))
        a.e("buffer_store_dwordx4 %s, %s, %s, %s offen sc1" % (v(z, 4), v(lr.vt), s(SRD_F, 4), s(S_T0)))

class JobArrive(Job):
    def __init__(self, kind): self.kind = kind
    def emit(self, a, c, lr):
        l0 = a.newlab("ar0"); l1 = a.newlab("ar1")
        a.e("s_cmp_eq_u32 %s, 0" % s(S_WAVE)); a.e("s_cbranch_scc1 %s" % l0)
        a.e("v_mov_b32 %s, 0" % v(lr.vt))
        a.e("buffer_load_dword %s, %s, %s, 0 offen sc1" % (v(lr.vd), v(lr.vt), s(SRD_F, 4)))
        a.e("s_branch %s" % l1)
        a.lab(l0)
        a.e("v_mov_b32 %s, 1" % v(lr.vt2))
        if self.kind == 'init':
            dbg_srd(a)
            a.e("s_and_b32 %s, s2, 31" % s(S_T0)); a.e("s_lshl_b32 %s, %s, 2" % (s(S_T0), s(S_T0)))
            a.e("v_mov_b32 %s, 0" % v(lr.vt))
            a.e("s_mov_b64 exec, 1")
            a.e("buffer_atomic_add %s, %s, %s, %s offen sc1" % (v(lr.vt2), v(lr.vt), s(SRD_Q, 4), s(S_T0)))
        else:
            a.e("s_lshl_b32 %s, %s, 8" % (s(S_T0), s(S_NT))); a.e("s_lshl_b32 %s, %s, 2" % (s(S_T1), s(S_MT)))
            a.e("s_add_u32 %s, %s, %s" % (s(S_T0), s(S_T0), s(S_T1))); a.e("s_add_u32 %s, %s, %d" % (s(S_T0), s(S_T0), foffc()))
            a.e("v_mov_b32 %s, 0" % v(lr.vt))
            a.e("s_mov_b64 exec, 1")
            a.e("buffer_store_dword %s, %s, %s, %s offen sc1" % (v(lr.vt2), v(lr.vt), s(SRD_F, 4), s(S_T0)))
        a.e("s_mov_b64 exec, -1")
        a.lab(l1)

class JobLazy(Job):
    def __init__(self, kind): self.kind = kind
    def addr(self, a, c, lr):
        if self.kind == 'init':
            dbg_srd(a)
            a.e("v_and_b32 %s, 31, %s" % (v(lr.vt), v(lr.vl))); a.e("v_lshlrev_b32 %s, 2, %s" % (v(lr.vt), v(lr.vt)))
            a.e("s_mov_b32 %s, 0" % s(S_T3))
            return SRD_Q
        a.e("v_and_b32 %s, 15, %s" % (v(lr.vt), v(lr.vl))); a.e("v_lshlrev_b32 %s, 2, %s" % (v(lr.vt), v(lr.vt)))
        a.e("s_lshl_b32 %s, %s, 8" % (s(S_T3), s(S_NT))); a.e("s_add_u32 %s, %s, %d" % (s(S_T3), s(S_T3), foffc()))
        return SRD_F
    def emit(self, a, c, lr):
        srd = self.addr(a, c, lr)
        a.e("buffer_load_dword %s, %s, %s, %s offen sc1" % (v(lr.vlz), v(lr.vt), s(srd, 4), s(S_T3)))
    def ok_cmp(self, a, lr, reg):
        if self.kind == 'init': a.e("v_cmp_le_u32 vcc, 8, %s" % v(reg))
        else: a.e("v_cmp_ne_u32 vcc, 0, %s" % v(reg))
    def check(self, a, c, lr):
        done = a.newlab("lzd"); lab = a.newlab("lzs")
        self.ok_cmp(a, lr, lr.vlz)
        a.e("s_cmp_eq_u64 vcc, -1"); a.e("s_cbranch_scc1 %s" % done)
        srd = self.addr(a, c, lr)
        a.e("s_mov_b32 %s, %d" % (s(S_T4), SPIN_MAX))
        a.lab(lab)
        a.e("buffer_load_dword %s, %s, %s, %s offen sc1" % (v(lr.vlz), v(lr.vt), s(srd, 4), s(S_T3)))
        a.e("s_waitcnt vmcnt(0)")
        self.ok_cmp(a, lr, lr.vlz)
        a.e("s_cmp_eq_u64 vcc, -1"); a.e("s_cbranch_scc1 %s" % done)
        a.e("s_sleep 1")
        a.e("s_sub_u32 %s, %s, 1" % (s(S_T4), s(S_T4))); a.e("s_cmp_lg_u32 %s, 0" % s(S_T4)); a.e("s_cbranch_scc1 %s" % lab)
        dbg_srd(a)
        a.e("v_mov_b32 %s, 0x300" % v(lr.vlz)); a.e("v_mov_b32 %s, 252" % v(lr.vt))
        a.e("buffer_store_dword %s, %s, %s, 0 offen" % (v(lr.vlz), v(lr.vt), s(SRD_Q, 4)))
        a.lab(done)

def cs_loads(a, c, lr):
    t = lr.vt; u = lr.vt2; vl = lr.vl
    mk_srd(a, SRD_P, ((CSU if c.nhalf else CSQ) if c.L == 0 else (CSUF if c.nhalf else CSQF)))
    a.e("v_and_b32 %s, 0xff, v0" % v(lr.vcs))
    if c.nhalf == 0:
        a.e("v_lshrrev_b32 %s, 6, %s" % (v(t), v(lr.vcs)))
        a.e("v_lshlrev_b32 %s, 10, %s" % (v(t), v(t)))
        a.e("v_and_b32 %s, 63, %s" % (v(u), v(lr.vcs)))
        a.e("v_add_u32 %s, %s, %s" % (v(t), v(t), v(u)))
        a.e("s_lshl_b32 %s, %s, 6" % (s(S_T0), s(S_NT)))
        a.e("v_add_u32 %s, %s, %s" % (v(t), s(S_T0), v(t)))
        a.e("v_lshlrev_b32 %s, 2, %s" % (v(t), v(t)))
        a.e("v_min_u32 %s, %d, %s" % (v(t), 3071 * 4, v(t)))
        stride = 3072 * 4
    else:
        wcol_base(a, c, S_T0, S_HALFOFF)
        a.e("s_add_u32 %s, %s, %s" % (s(S_T1), s(S_T0), s(S_HALFOFF)))
        a.e("s_sub_u32 %s, %s, 384" % (s(S_T1), s(S_T1)))
        a.e("v_mov_b32 %s, %s" % (v(t), s(S_T0)))
        a.e("v_mov_b32 %s, %s" % (v(u), s(S_T1)))
        a.e("v_cmp_le_u32 vcc, 192, %s" % v(lr.vcs))
        a.e("v_cndmask_b32 %s, %s, %s, vcc" % (v(t), v(t), v(u)))
        a.e("v_lshl_add_u32 %s, %s, 1, %s" % (v(t), v(lr.vcs), v(t)))
        a.e("v_lshlrev_b32 %s, 1, %s" % (v(t), v(t)))
        a.e("v_min_u32 %s, %d, %s" % (v(t), 3583 * 4, v(t)))
        stride = 3584 * 4
    a.e("v_mov_b32 %s, %s" % (v(lr.vca), v(t)))
    if c.L == 1:
        a.e("buffer_load_dword %s, %s, %s, 0 offen sc1" % (v(lr.vc16), v(t), s(SRD_P, 4)))
        return
    a.e("s_mov_b32 %s, 0" % s(S_T0))
    for i in range(16):
        a.e("buffer_load_dword %s, %s, %s, %s offen sc1" % (v(lr.vc16 + i), v(t), s(SRD_P, 4), s(S_T0)))
        if i < 15: a.e("s_add_u32 %s, %s, %d" % (s(S_T0), s(S_T0), stride))

def st_loads(a, c, lr):
    mk_srd(a, SRD_R, c.tailbuf)
    t = lr.vt; u = lr.vt2
    a.e("v_and_b32 %s, 0xff, v0" % v(u))
    a.e("v_lshrrev_b32 %s, 1, %s" % (v(t), v(u)))
    a.e("v_lshlrev_b32 %s, 3, %s" % (v(t), v(t)))
    a.e("v_and_b32 %s, 1, %s" % (v(u), v(u)))
    a.e("v_lshl_add_u32 %s, %s, 17, %s" % (v(t), v(u), v(t)))
    a.e("s_lshl_b32 %s, %s, 10" % (s(S_T0), s(S_MT)))
    for i in range(8):
        a.e("buffer_load_dwordx2 %s, %s, %s, %s offen sc1" % (v(lr.vs16 + 2 * i, 2), v(t), s(SRD_R, 4), s(S_T0)))
        if i < 7: a.e("s_add_u32 %s, %s, 16384" % (s(S_T0), s(S_T0)))

def st_finish(a, c, lr):
    D = lr.vs16; S = lr.vs16 + 4; t = lr.vt
    for st in (4, 2, 1):
        for i in range(st):
            a.e("v_add_f32 %s, %s, %s" % (v(D + 2 * i), v(D + 2 * i), v(D + 2 * (i + st))))
            a.e("v_add_f32 %s, %s, %s" % (v(D + 2 * i + 1), v(D + 2 * i + 1), v(D + 2 * (i + st) + 1)))
    for i in range(2):
        a.e("v_add_f32_dpp %s, %s, %s quad_perm:[1,0,3,2] row_mask:0xf bank_mask:0xf" % (v(D + i), v(D + i), v(D + i)))
    a.e("v_mul_f32 %s, 0xba800000, %s" % (v(S), v(D)))
    a.e("v_mul_f32 %s, 0x3a800000, %s" % (v(S + 1), v(D + 1)))
    a.e("v_fma_f32 %s, -%s, %s, %s" % (v(S + 1), v(S), v(S), v(S + 1)))
    a.e("v_max_f32 %s, 0, %s" % (v(S + 1), v(S + 1)))
    a.e("v_add_f32 %s, 0x%x, %s" % (v(S + 1), EPS5, v(S + 1)))
    a.e("v_rsq_f32 %s, %s" % (v(S + 2), v(S + 1)))
    a.e("v_and_b32 %s, 0xfe, v0" % v(t))
    a.e("v_lshlrev_b32 %s, 1, %s" % (v(t), v(t)))
    a.e("v_add_u32 %s, %d, %s" % (v(t), L_STAT, v(t)))
    a.e("ds_write_b32 %s, %s" % (v(t), v(S)))
    if c.kind == 'q':
        a.e("ds_write_b32 %s, %s offset:512" % (v(t), v(S + 2)))
    else:
        a.e("v_sqrt_f32 %s, %s" % (v(S + 3), v(S + 1)))
        a.e("v_mul_f32 %s, 0x%x, %s" % (v(S + 2), NLOG2E, v(S + 2)))
        a.e("ds_write_b32 %s, %s offset:512" % (v(t), v(S + 2)))
        a.e("ds_write_b32 %s, %s offset:1024" % (v(t), v(S + 3)))

def cs_finish(a, c, lr):
    if c.L == 0:
        for st in (8, 4, 2, 1):
            for i in range(st): a.e("v_add_f32 %s, %s, %s" % (v(lr.vc16 + i), v(lr.vc16 + i), v(lr.vc16 + i + st)))
    a.e("v_lshlrev_b32 %s, 2, %s" % (v(lr.vt), v(lr.vcs)))
    a.e("v_add_u32 %s, %d, %s" % (v(lr.vt), L_CS, v(lr.vt)))
    a.e("ds_write_b32 %s, %s" % (v(lr.vt), v(lr.vc16)))
    if c.L == 0:
        sk = a.newlab("csf")
        a.e("s_cmp_lg_u32 %s, 0" % s(S_MT)); a.e("s_cbranch_scc1 %s" % sk)
        mk_srd(a, SRD_P, CSUF if c.nhalf else CSQF)
        n = 224 if c.nhalf else 192
        a.e("v_cmp_gt_u32 vcc, %d, %s" % (n, v(lr.vcs)))
        a.e("s_and_saveexec_b64 s[96:97], vcc")
        ske = a.newlab("csz")
        a.e("s_cbranch_execz %s" % ske)
        a.e("buffer_store_dword %s, %s, %s, 0 offen sc1" % (v(lr.vc16), v(lr.vca), s(SRD_P, 4)))
        a.lab(ske)
        a.e("s_mov_b64 exec, -1")
        a.lab(sk)

S_PFOFF = 100; S_PFINC = 101

def loader_pre(a, c, lr):
    loader_setup(a, c, lr)
    if not c.nopre:
        for st in range(c.NS): issueW(a, c, lr, st)
    for jb in c.jobs_pre: jb.emit(a, c, lr)
    x_voffsets(a, c, lr.vl, lr.vt, lr.vt2, lr.vx, c.x_pitch)
    if getattr(c, 'splitk', False):
        def rb(a):
            a.e("s_lshl_b32 %s, %s, 7" % (s(S_T0), s(S_MT)))
            a.e("s_and_b32 %s, %s, 1" % (s(S_T1), s(S_WAVE))); a.e("s_lshl_b32 %s, %s, 6" % (s(S_T1), s(S_T1)))
            a.e("s_add_u32 %s, %s, %s" % (s(S_T0), s(S_T0), s(S_T1)))
            a.e("s_lshl_b32 %s, %s, 5" % (s(S_T1), s(S_KH))); a.e("s_add_u32 %s, %s, %s" % (s(S_T0), s(S_T0), s(S_T1)))
        x_voffsets(a, c, lr.vl, lr.vt, lr.vt2, lr.vr, c.tail_pitch, rowbase=rb)
    elif c.tail_pitch:
        x_voffsets(a, c, lr.vl, lr.vt, lr.vt2, lr.vr, c.tail_pitch)
    elif not c.cs:
        a.e("s_lshl_b32 %s, %s, 16" % (s(S_T0), s(S_WAVE)))
        a.e("v_lshlrev_b32 %s, 4, %s" % (v(lr.vt), v(lr.vl)))
        a.e("v_add_u32 %s, %s, %s" % (v(lr.vt), s(S_T0), v(lr.vt)))
        for j in range(4):
            a.e("v_add_u32 %s, %d, %s" % (v(lr.vr + j), j * (16384 - 1024), v(lr.vt)))
    if c.win: c.win.setup(a, c, lr)

def loader_main(a, c, lr, names):
    NS = c.NS; nst = c.nst; nW = c.ndma - 4
    if c.inflag is not None:
        kind, L = c.inflag
        skip = a.newlab("np")
        a.e("s_cmp_lg_u32 %s, 0" % s(S_WAVE)); a.e("s_cbranch_scc1 %s" % skip)
        poll(a, lambda: flag_off(a, kind, L, S_MT), 16, lr.vl, lr.vp, 0x100 + kind + 16 * L)
        a.lab(skip)
    tstamp(a, c.name + ".polled", names)
    a.e("s_barrier")
    ops = []
    if not c.nopre:
        for st in range(NS): ops += [('W', st)] * nW
    for jb in c.jobs_pre: ops += [('P', 0)] * jb.nops
    if c.win:
        ops += [('P', 0)]; c.win.emit(a, c, lr)
    issued = 0; plan = []; tail_done = False; cs_done = False
    for j in range(nst):
        allowed = min(nst - 1, NS - 1 if j == 0 else max(NS - 1, (j - 1) - 1 + NS))
        k = max(0, min(c.ramp, allowed + 1 - issued))
        units = []
        for q in range(k):
            if issued < NS and c.nopre: ops += [('X', issued)] * 4 + [('W', issued)] * nW; units.append(('S', issued))
            elif issued < NS: ops += [('X', issued)] * 4; units.append(('X', issued))
            else: ops += [('X', issued)] * 4 + [('W', issued)] * nW; units.append(('F', None))
            if c.win and (issued + c.win_lead) % 8 == 0 and issued + c.win_lead < nst:
                ops += [('P', 0)]; units.append(('P', c.win))
            issued += 1
        for jb in c.jobs_at.get(j, []):
            ops += [('P', 0)] * jb.nops; units.append(('P', jb))
        t = 0
        if c.cs:
            jst = nst - 3 if (c.lazy and c.kind == 'q') else nst - 5
            ncs = 16 if c.L == 0 else 1
            t = []
            if j == nst - 3 and c.lazy: t.append('chk')
            if j == jst: ops += [('T', 0)] * 8; t.append('st')
            if j == nst - 3: ops += [('T', 0)] * ncs; t.append('cs')
            if j == nst - 1:
                lastT = max(i for i, o in enumerate(ops) if o[0] == 'T')
                t.append(('fin', len(ops) - 1 - lastT))
            t = tuple(t) if t else 0
        elif issued == nst and not tail_done:
            ops += [('T', 0)] * 4; t = 1; tail_done = True
        last = max(i for i, o in enumerate(ops) if o[0] in 'XW' and o[1] == j)
        w = len(ops) - 1 - last
        assert w <= 63
        plan.append((tuple(units), w, t))
    a.e("s_mov_b32 %s, 0" % s(S_SLOT))
    def emit_units(units):
        for kind, st in units:
            if kind == 'X': issueX(a, c, lr, st)
            elif kind == 'S': issueX(a, c, lr, st); issueW(a, c, lr, st)
            elif kind == 'P': st.emit(a, c, lr)
            else:
                issueX(a, c, lr, None); issueW(a, c, lr, None)
                a.e("s_add_u32 %s, %s, %d" % (s(S_SLOT), s(S_SLOT), c.STG))
                a.e("s_cmp_eq_u32 %s, %d" % (s(S_SLOT), c.NS * c.STG))
                a.e("s_cselect_b32 %s, 0, %s" % (s(S_SLOT), s(S_SLOT)))
    def tail():
        c.tail_soff(a)
        a.e("s_lshl_b32 %s, %s, 12" % (s(S_T1), s(S_WAVE)))
        a.e("s_add_u32 m0, %s, %d" % (s(S_T1), L_RES))
        a.e("s_nop 0")
        for j in range(4):
            a.e("buffer_load_dwordx4 %s, %s, %s offen offset:%d sc1 lds" % (v(lr.vr + j), s(SRD_R, 4), s(S_T0), 1024 * j))
    def one(e):
        units, w, t = e
        emit_units(units)
        if t == 1: tail()
        if isinstance(t, tuple):
            for x in t:
                if x == 'chk': c.lazy.check(a, c, lr)
                elif x == 'st': st_loads(a, c, lr)
                elif x == 'cs': cs_loads(a, c, lr)
                else:
                    a.e("s_waitcnt vmcnt(%d)" % x[1])
                    if G.stprio: a.e("s_setprio %d" % G.stprio)
                    st_finish(a, c, lr); cs_finish(a, c, lr)
                    if G.stprio: a.e("s_setprio 0")
                    a.e("s_waitcnt lgkmcnt(0)")
        a.e("s_waitcnt vmcnt(%d)" % w)
        a.e("s_barrier")
    j = 0
    while j < nst:
        done = False
        for p in (1, 8):
            n = 1
            while j + (n + 1) * p <= nst and plan[j + n * p:j + (n + 1) * p] == plan[j:j + p] and not any(e[2] for e in plan[j:j + p]): n += 1
            if (p == 1 and n >= 3 and not (c.win and j + n < nst - 12 and n < 8)) or (p == 8 and n >= 2):
                if p == 1 and c.win and n < 8 and j + 16 <= nst: continue
                a.e("s_mov_b32 %s, %d" % (s(S_CNT), n))
                lab = a.newlab("ld"); a.lab(lab)
                for e in plan[j:j + p]: one(e)
                a.e("s_sub_u32 %s, %s, 1" % (s(S_CNT), s(S_CNT)))
                a.e("s_cmp_lg_u32 %s, 0" % s(S_CNT))
                a.e("s_cbranch_scc1 %s" % lab)
                j += n * p; done = True; break
        if not done:
            one(plan[j]); j += 1
    a.e("s_waitcnt vmcnt(0) lgkmcnt(0)")
    a.e("s_barrier")

def cs_stage(a, c, r):
    mk_srd(a, SRD_R, ('ws', WS_CS, CS_B))
    t = r.free0 + 8
    a.e("v_and_b32 %s, 0xff, v0" % v(t))
    if c.nhalf == 0:
        a.e("v_lshrrev_b32 %s, 6, %s" % (v(t + 1), v(t)))
        a.e("v_lshlrev_b32 %s, 10, %s" % (v(t + 1), v(t + 1)))
        a.e("v_and_b32 %s, 63, %s" % (v(t + 2), v(t)))
        a.e("v_add_u32 %s, %s, %s" % (v(t + 1), v(t + 1), v(t + 2)))
        a.e("s_lshl_b32 %s, %s, 6" % (s(S_T0), s(S_NT)))
        a.e("v_add_u32 %s, %s, %s" % (v(t + 1), s(S_T0), v(t + 1)))
        a.e("v_lshlrev_b32 %s, 2, %s" % (v(t + 1), v(t + 1)))
    else:
        wcol_base(a, c, S_T0, S_HALFOFF)
        a.e("s_add_u32 %s, %s, %s" % (s(S_T1), s(S_T0), s(S_HALFOFF)))
        a.e("s_sub_u32 %s, %s, 384" % (s(S_T1), s(S_T1)))
        a.e("v_mov_b32 %s, %s" % (v(t + 1), s(S_T0)))
        a.e("v_mov_b32 %s, %s" % (v(t + 2), s(S_T1)))
        a.e("v_cmp_le_u32 vcc, 192, %s" % v(t))
        a.e("v_cndmask_b32 %s, %s, %s, vcc" % (v(t + 1), v(t + 1), v(t + 2)))
        a.e("v_lshl_add_u32 %s, %s, 1, %s" % (v(t + 1), v(t), v(t + 1)))
        a.e("v_lshlrev_b32 %s, 1, %s" % (v(t + 1), v(t + 1)))
        a.e("v_add_u32 %s, %d, %s" % (v(t + 1), 3072 * 4, v(t + 1)))
    a.e("buffer_load_dword %s, %s, %s, 0 offen" % (v(t + 3), v(t + 1), s(SRD_R, 4)))
    a.e("s_mov_b32 %s, %d" % (s(S_T0), 6656 * 4))
    a.e("buffer_load_dword %s, %s, %s, %s offen" % (v(t + 4), v(t + 1), s(SRD_R, 4), s(S_T0)))
    r.cs_t = t

def cs_stage3(a, c, r):
    t = r.cs_t
    a.e("s_waitcnt vmcnt(0)")
    a.e("v_add_f32 %s, %s, %s" % (v(t + 3), v(t + 3), v(t + 4)))
    a.e("v_lshlrev_b32 %s, 2, %s" % (v(t + 1), v(t)))
    a.e("v_add_u32 %s, %d, %s" % (v(t + 1), L_CS, v(t + 1)))
    a.e("ds_write_b32 %s, %s" % (v(t + 1), v(t + 3)))

class EX: pass
def extra_setup(a, c, r):
    ex = EX(); R = r.R
    ex.ones = R.get(4, 4); ex.cs = R.get(4 * c.TN, 4)
    ex.st = (c.kind == 'q')
    if ex.st: ex.s1 = R.get(16, 4); ex.s2 = R.get(16, 4)
    for i in range(4): a.e("v_mov_b32 %s, 0x3f803f80" % v(ex.ones + i))
    return ex

def extra_mfmas(c, r, ex, st):
    out = []
    for j in range(c.TN):
        d = v(ex.cs + 4 * j, 4)
        out.append("v_mfma_f32_16x16x32_bf16 %s, %s, %s, %s" % (d, v(ex.ones, 4), v(r.wf[st] + 4 * j, 4), "0" if st == 0 else d))
    if ex.st:
        for tt in range(4):
            x = v(r.xf[st] + 4 * tt, 4)
            d = v(ex.s1 + 4 * tt, 4); out.append("v_mfma_f32_16x16x32_bf16 %s, %s, %s, %s" % (d, x, v(ex.ones, 4), "0" if st == 0 else d))
            d = v(ex.s2 + 4 * tt, 4); out.append("v_mfma_f32_16x16x32_bf16 %s, %s, %s, %s" % (d, x, x, "0" if st == 0 else d))
    return out

def extra_publish(a, c, r, ex):
    vl, vt, vt2 = r.vl, r.vt, r.vt2
    a.e("s_add_u32 %s, %s, %s" % (s(S_T5), s(S_MT), s(S_NT))); a.e("s_and_b32 %s, %s, 15" % (s(S_T5), s(S_T5)))
    l_nocs = a.newlab("nocs")
    a.e("s_cmp_lg_u32 %s, 0" % s(S_WM)); a.e("s_cbranch_scc1 %s" % l_nocs)
    mk_srd(a, SRD_O, CSU if c.nhalf else CSQ)
    ncol = 3584 if c.nhalf else 3072
    a.e("s_mul_i32 %s, %s, %d" % (s(S_T0), s(S_T5), ncol * 4))
    if c.nhalf:
        wcol_base(a, c, S_T2, S_HALFOFF)
        a.e("s_lshl_b32 %s, %s, 1" % (s(S_T1), s(S_T2)))
    else:
        a.e("s_lshl_b32 %s, %s, 8" % (s(S_T1), s(S_NT)))
    a.e("s_add_u32 %s, %s, %s" % (s(S_T0), s(S_T0), s(S_T1)))
    a.e("s_lshl_b32 %s, %s, 7" % (s(S_T1), s(S_WN)))
    a.e("s_add_u32 %s, %s, %s" % (s(S_T4), s(S_T0), s(S_T1)))
    a.e("v_lshlrev_b32 %s, 2, %s" % (v(vt), v(vl)))
    a.e("v_cmp_le_u32 vcc, 16, %s" % v(vl))
    nseg = c.nfull
    for si in range(nseg):
        a.e("v_cndmask_b32 %s, %s, %s, vcc" % (v(ex.cs + 8 * si), v(ex.cs + 8 * si), v(ex.cs + 8 * si + 4)))
    a.e("s_mov_b32 exec_hi, 0")
    for si in range(nseg):
        segb = c.w_seg_bytes[si] * 2
        a.e("s_add_u32 %s, %s, %d" % (s(S_T1), s(S_T4), segb))
        a.e("buffer_store_dword %s, %s, %s, %s offen sc1" % (v(ex.cs + 8 * si), v(vt), s(SRD_O, 4), s(S_T1)))
    if c.nhalf:
        a.e("s_lshl_b32 %s, %s, 1" % (s(S_T1), s(S_HALFOFF)))
        a.e("s_add_u32 %s, %s, %s" % (s(S_T1), s(S_T1), s(S_T0)))
        a.e("s_lshl_b32 %s, %s, 6" % (s(S_T3), s(S_WN)))
        a.e("s_add_u32 %s, %s, %s" % (s(S_T1), s(S_T1), s(S_T3)))
        a.e("s_mov_b32 exec_lo, 0xffff")
        a.e("buffer_store_dword %s, %s, %s, %s offen sc1" % (v(ex.cs + 24), v(vt), s(SRD_O, 4), s(S_T1)))
    a.e("s_mov_b64 exec, -1")
    a.lab(l_nocs)
    if ex.st:
        l_nost = a.newlab("nost")
        a.e("s_cmp_lg_u32 %s, 0" % s(S_WN)); a.e("s_cbranch_scc1 %s" % l_nost)
        mk_srd(a, SRD_S, c.tailbuf)
        for bit, (x, y) in ((1, (0, 1)), (1, (2, 3)), (2, (0, 2))):
            a.e("v_and_b32 %s, %d, %s" % (v(vt), bit, v(vl)))
            a.e("v_cmp_ne_u32 vcc, 0, %s" % v(vt))
            for tt in range(4):
                for base in (ex.s1, ex.s2):
                    a.e("v_cndmask_b32 %s, %s, %s, vcc" % (v(base + 4 * tt + x), v(base + 4 * tt + x), v(base + 4 * tt + y)))
        for tt in range(4):
            a.e("v_mov_b32 %s, %s" % (v(ex.s1 + 4 * tt + 1), v(ex.s2 + 4 * tt)))
        a.e("v_and_b32 %s, 15, %s" % (v(vt), v(vl))); a.e("v_lshlrev_b32 %s, 3, %s" % (v(vt), v(vt)))
        a.e("s_lshl_b32 %s, %s, 14" % (s(S_T0), s(S_T5)))
        a.e("s_lshl_b32 %s, %s, 10" % (s(S_T1), s(S_MT))); a.e("s_add_u32 %s, %s, %s" % (s(S_T0), s(S_T0), s(S_T1)))
        a.e("s_lshl_b32 %s, %s, 9" % (s(S_T1), s(S_WM))); a.e("s_add_u32 %s, %s, %s" % (s(S_T0), s(S_T0), s(S_T1)))
        a.e("s_mov_b32 exec_lo, 0x00f0000f"); a.e("s_mov_b32 exec_hi, 0xf0000f00")
        for tt in range(4):
            a.e("buffer_store_dwordx2 %s, %s, %s, %s offen offset:%d sc1" % (v(ex.s1 + 4 * tt, 2), v(vt), s(SRD_S, 4), s(S_T0), 128 * tt))
        a.e("s_mov_b64 exec, -1")
        a.lab(l_nost)

def compute_main(a, c, names):
    c.map(a)
    r = compute_setup(a, c)
    tstamp(a, c.name + ".setup", names)
    a.e("s_waitcnt lgkmcnt(0)")
    a.e("s_barrier")
    tstamp(a, c.name + ".Bpre", names)
    def addr_update():
        u = ["s_add_u32 %s, %s, %d" % (s(S_SLOT), s(S_SLOT), c.STG),
             "s_cmp_eq_u32 %s, %d" % (s(S_SLOT), c.NS * c.STG),
             "s_cselect_b32 %s, %s, %s" % (s(S_INC), s(S_NEG), s(S_POS)),
             "s_cselect_b32 %s, 0, %s" % (s(S_SLOT), s(S_SLOT))]
        for i in range(r.nxa): u.append("v_add_u32 %s, %s, %s" % (v(r.xa + i), s(S_INC), v(r.xa + i)))
        for i in range(c.nwa): u.append("v_add_u32 %s, %s, %s" % (v(r.wa + i), s(S_INC), v(r.wa + i)))
        return u
    a.e("s_mov_b32 %s, 0" % s(S_SLOT))
    a.e("s_mov_b32 %s, %d" % (s(S_NEG), -(c.NS - 1) * c.STG))
    a.e("s_mov_b32 %s, %d" % (s(S_POS), c.STG))
    if c.prio: a.e("s_setprio %d" % c.prio)
    a.e("s_barrier")
    tstamp(a, c.name + ".B0", names)
    lab = a.newlab("cl")
    if c.SUBS == 1:
        for i in reads(c, r, 0, 0): a.e(i)
        cnt = c.nst - 1
        if c.extra:
            ex = extra_setup(a, c, r)
            a.e("s_waitcnt lgkmcnt(0)")
            for i in interleave(mfmas(c, r, 0) + extra_mfmas(c, r, ex, 0), reads(c, r, 1, 1) + addr_update()): a.e(i)
            a.e("s_waitcnt lgkmcnt(0)")
            a.e("s_barrier")
            for i in interleave(mfmas(c, r, 1) + extra_mfmas(c, r, ex, 1), reads(c, r, 0, 0)): a.e(i)
            extra_publish(a, c, r, ex)
            cnt -= 1
        a.e("s_mov_b32 %s, %d" % (s(S_CNT), cnt))
        a.e("s_waitcnt lgkmcnt(0)")
        a.raw(".p2align 6")
        a.lab(lab)
        if c.extra:
            sk = a.newlab("vm")
            a.e("s_cmp_lg_u32 %s, %d" % (s(S_CNT), cnt - 1)); a.e("s_cbranch_scc1 %s" % sk)
            a.e("s_waitcnt vmcnt(0)")
            a.lab(sk)
        for i in interleave(mfmas(c, r, 0), reads(c, r, 1, 1) + addr_update()): a.e(i)
        for _ in range(G.pad): a.e("s_nop 7")
        a.e("s_waitcnt lgkmcnt(0)")
        a.e("s_barrier")
        if M.stamps and M.itphase == c.name:
            a.e("s_memrealtime s[96:97]"); a.e("s_waitcnt lgkmcnt(0)")
            a.e("s_add_u32 m0, %s, 40" % s(S_CNT)); a.e("s_nop 3")
            a.e("v_writelane_b32 v255, s96, m0")
        for i in interleave(mfmas(c, r, 1), reads(c, r, 0, 0)): a.e(i)
        a.e("s_sub_u32 %s, %s, 1" % (s(S_CNT), s(S_CNT)))
        a.e("s_cmp_lg_u32 %s, 0" % s(S_CNT))
        a.e("s_waitcnt lgkmcnt(0)")
        a.e("s_cbranch_scc1 %s" % lab)
        for i in interleave(mfmas(c, r, 0), reads(c, r, 1, 1)): a.e(i)
        a.e("s_waitcnt lgkmcnt(0)")
        a.e("s_barrier")
        for i in mfmas(c, r, 1): a.e(i)
    else:
        def rd(st): return reads(c, r, st, 0, 0) + reads(c, r, st, 1, 1)
        def mm(st): return mfmas(c, r, st, 0) + mfmas(c, r, st, 1)
        def step(st):
            m = mm(st); fill = rd(1 - st) + addr_update()
            for i in interleave(m, fill, per=c.rper): a.e(i)
        for i in rd(0) + addr_update(): a.e(i)
        a.e("s_waitcnt lgkmcnt(0)")
        a.e("s_barrier")
        a.e("s_mov_b32 %s, %d" % (s(S_CNT), c.nst // 2 - 1))
        a.raw(".p2align 6")
        a.lab(lab)
        step(0)
        a.e("s_waitcnt lgkmcnt(0)")
        a.e("s_barrier")
        step(1)
        a.e("s_sub_u32 %s, %s, 1" % (s(S_CNT), s(S_CNT)))
        a.e("s_cmp_lg_u32 %s, 0" % s(S_CNT))
        a.e("s_waitcnt lgkmcnt(0)")
        a.e("s_barrier")
        a.e("s_cbranch_scc1 %s" % lab)
        m = mm(0)
        for i in interleave(m, rd(1), per=c.rper): a.e(i)
        a.e("s_waitcnt lgkmcnt(0)")
        a.e("s_barrier")
        for i in mm(1): a.e(i)
    a.e("s_setprio 0")
    tstamp(a, c.name + ".loopend", names)
    return r

def row_stats(a, c, r, R, want):
    vl = r.vl
    b = R.get(); t = R.get(2); D = R.get(32, 4); S = R.get(4, 2)
    a.e("s_lshl_b32 %s, %s, 9" % (s(S_T0), s(S_WM)))
    a.e("s_add_u32 %s, %s, %d" % (s(S_T0), s(S_T0), L_RES))
    a.e("v_lshlrev_b32 %s, 3, %s" % (v(b), v(vl)))
    a.e("v_add_u32 %s, %s, %s" % (v(b), s(S_T0), v(b)))
    for i in range(16):
        a.e("ds_read_b64 %s, %s offset:%d" % (v(D + 2 * i, 2), v(b), 1024 * i))
        if i == 11: a.e("s_waitcnt lgkmcnt(6)")
    a.e("s_waitcnt lgkmcnt(0)")
    for st in (8, 4, 2, 1):
        for i in range(st):
            a.e("v_add_f32 %s, %s, %s" % (v(D + 2 * i), v(D + 2 * i), v(D + 2 * (i + st))))
            a.e("v_add_f32 %s, %s, %s" % (v(D + 2 * i + 1), v(D + 2 * i + 1), v(D + 2 * (i + st) + 1)))
    a.e("v_mul_f32 %s, 0xba800000, %s" % (v(S), v(D)))
    a.e("v_mul_f32 %s, 0x3a800000, %s" % (v(S + 1), v(D + 1)))
    a.e("v_fma_f32 %s, -%s, %s, %s" % (v(S + 1), v(S), v(S), v(S + 1)))
    a.e("v_max_f32 %s, 0, %s" % (v(S + 1), v(S + 1)))
    a.e("v_add_f32 %s, 0x%x, %s" % (v(S + 1), EPS5, v(S + 1)))
    a.e("v_rsq_f32 %s, %s" % (v(S + 2), v(S + 1)))
    a.e("s_mul_i32 %s, %s, 768" % (s(S_T0), s(S_WAVE)))
    a.e("s_add_u32 %s, %s, %d" % (s(S_T0), s(S_T0), L_STAT))
    a.e("v_lshlrev_b32 %s, 2, %s" % (v(t), v(vl)))
    a.e("v_add_u32 %s, %s, %s" % (v(t), s(S_T0), v(t)))
    a.e("ds_write_b32 %s, %s" % (v(t), v(S)))
    if want == 'qkv':
        a.e("ds_write_b32 %s, %s offset:256" % (v(t), v(S + 2)))
    else:
        a.e("v_sqrt_f32 %s, %s" % (v(S + 3), v(S + 1)))
        a.e("v_mul_f32 %s, 0x%x, %s" % (v(S + 2), NLOG2E, v(S + 2)))
        a.e("ds_write_b32 %s, %s offset:256" % (v(t), v(S + 2)))
        a.e("ds_write_b32 %s, %s offset:512" % (v(t), v(S + 3)))
    a.e("s_waitcnt lgkmcnt(0)")
    a.e("s_mov_b32 %s, %s" % (s(S_T5), s(S_T0)))

class Blk:
    def __init__(self, a, k=None): self.a = a; self.k = k if k is not None else G.schedk
    def __enter__(self): self.n = len(self.a.L)
    def __exit__(self, *x):
        blk = self.a.L[self.n:]; del self.a.L[self.n:]
        if self.k:
            import hazard
            txt = [l.strip() for l in blk]
            self.a.L += ["    " + l for l in hazard.sched(txt, self.k)]
        else: self.a.L += blk

def phi4(a, x, nm, cs, rs, tmp, C_L, C_E):
    for i in range(4): a.e("v_fmac_f32 %s, %s, %s" % (v(x + i), nm(i), cs(i)))
    for i in range(4): a.e("v_fmaak_f32 %s, %s, %s, 0x%x" % (v(x + i), v(x + i), rs(i), EPS6))
    for i in range(4): a.e("v_mul_f32 %s, %s, %s" % (v(tmp + i), s(C_L), v(x + i)))
    for i in range(4): a.e("v_exp_f32 %s, %s clamp" % (v(tmp + i), v(tmp + i)))
    for i in range(4): a.e("v_max_f32 %s, %s, %s" % (v(x + i), s(C_E), v(x + i)))
    for i in range(4): a.e("v_add_f32 %s, %s, %s" % (v(x + i), v(x + i), v(tmp + i)))

def qkv_epi(a, c, r, L, names):
    vl, vt, vt2 = r.vl, r.vt, r.vt2
    C_L = S_C0; C_E = S_C0 + 2
    a.e("s_mov_b32 %s, 0x%x" % (s(C_L), LOG2E)); a.e("s_mov_b32 %s, 0x%x" % (s(C_E), EPS6))
    def acc(j, tt): return r.acc + (j * c.TM + tt) * 4
    a.e("s_lshl_b32 %s, %s, 8" % (s(S_T5), s(S_WM))); a.e("s_add_u32 %s, %s, %d" % (s(S_T5), s(S_T5), L_STAT))
    R = Regs(r.free0, 255)
    mN = R.get(16, 4); rN = R.get(16, 4); csN = R.get(4, 2)
    va = R.get(); vb = R.get()
    a.e("v_lshrrev_b32 %s, 4, %s" % (v(va), v(vl)))
    a.e("v_lshlrev_b32 %s, 4, %s" % (v(va), v(va)))
    a.e("v_add_u32 %s, %s, %s" % (v(va), s(S_T5), v(va)))
    for tt in range(4):
        a.e("ds_read_b128 %s, %s offset:%d" % (v(mN + 4 * tt, 4), v(va), 64 * tt))
        a.e("ds_read_b128 %s, %s offset:%d" % (v(rN + 4 * tt, 4), v(va), 512 + 64 * tt))
    a.e("v_and_b32 %s, 15, %s" % (v(vb), v(vl)))
    a.e("v_lshlrev_b32 %s, 2, %s" % (v(vb), v(vb)))
    a.e("s_lshl_b32 %s, %s, 7" % (s(S_T0), s(S_WN)))
    a.e("s_add_u32 %s, %s, %d" % (s(S_T0), s(S_T0), L_CS))
    a.e("v_add_u32 %s, %s, %s" % (v(vb), s(S_T0), v(vb)))
    for j in range(2, 6):
        a.e("ds_read_b32 %s, %s offset:%d" % (v(csN + j - 2), v(vb), (j >> 1) * 256 + (j & 1) * 64))
    tmp = R.get(4, 4)
    kf = R.get(16, 4); vf = R.get(16, 4)
    a.e("s_waitcnt lgkmcnt(0)")
    tmpb = R.get(4, 4)
    with Blk(a):
        for tt in range(4):
            for jj in range(2):
                j = 2 + jj
                x = acc(j, tt)
                phi4(a, x, lambda i: v(mN + 4 * tt + i), lambda i: v(csN + jj), lambda i: v(rN + 4 * tt + i), tmp if jj else tmpb, C_L, C_E)
                d = kf + 8 * jj + 4 * (tt >> 1) + 2 * (tt & 1)
                for p in range(2):
                    a.e("v_cvt_pk_bf16_f32 %s, %s, %s" % (v(d + p), v(x + 2 * p), v(x + 2 * p + 1)))
                j = 4 + jj
                x = acc(j, tt)
                for i in range(4): a.e("v_fmac_f32 %s, %s, %s" % (v(x + i), v(mN + 4 * tt + i), v(csN + 2 + jj)))
                for i in range(4): a.e("v_mul_f32 %s, %s, %s" % (v(x + i), v(x + i), v(rN + 4 * tt + i)))
                d = vf + 8 * jj + 4 * (tt >> 1) + 2 * (tt & 1)
                for p in range(2):
                    a.e("v_cvt_pk_bf16_f32 %s, %s, %s" % (v(d + p), v(x + 2 * p), v(x + 2 * p + 1)))
    ones = R.get(4, 4)
    for i in range(4): a.e("v_mov_b32 %s, 0x3f803f80" % v(ones + i))
    KV = acc(2, 0)
    def kvt(dt, et): return KV + (dt * 3 + et) * 4
    for p in range(2):
        for dt in range(2):
            for et in range(3):
                b = v(vf + 8 * et + 4 * p, 4) if et < 2 else v(ones, 4)
                cin = "0" if p == 0 else v(kvt(dt, et), 4)
                a.e("v_mfma_f32_16x16x32_bf16 %s, %s, %s, %s" % (v(kvt(dt, et), 4), v(kf + 8 * dt + 4 * p, 4), b, cin))
    l_w1 = a.newlab("wm1"); l_q = a.newlab("q")
    vx = R.get()
    a.e("v_lshlrev_b32 %s, 4, %s" % (v(vx), v(vl)))
    a.e("s_mul_i32 %s, %s, 6144" % (s(S_T0), s(S_WN)))
    a.e("s_add_u32 %s, %s, %d" % (s(S_T0), s(S_T0), L_KVX))
    a.e("v_add_u32 %s, %s, %s" % (v(vx), s(S_T0), v(vx)))
    a.e("s_cmp_eq_u32 %s, 0" % s(S_WM))
    a.e("s_cbranch_scc1 %s" % l_w1)
    for i in range(6): a.e("ds_write_b128 %s, %s offset:%d" % (v(vx), v(KV + 4 * i, 4), 1024 * i))
    a.e("s_waitcnt lgkmcnt(0)")
    a.lab(l_w1)
    a.e("s_barrier")
    a.e("s_cmp_eq_u32 %s, 0" % s(S_WM))
    a.e("s_cbranch_scc0 %s" % l_q)
    ex = R.get(24, 4)
    for i in range(6): a.e("ds_read_b128 %s, %s offset:%d" % (v(ex + 4 * i, 4), v(vx), 1024 * i))
    mk_srd(a, SRD_O, ('ws', WS_KVP[L], 4 * MB))
    a.e("s_lshl_b32 %s, %s, 5" % (s(S_T0), s(S_MT)))
    a.e("s_lshl_b32 %s, %s, 1" % (s(S_T1), s(S_NT)))
    a.e("s_add_u32 %s, %s, %s" % (s(S_T1), s(S_T1), s(S_WN)))
    a.e("s_add_u32 %s, %s, %s" % (s(S_T0), s(S_T0), s(S_T1)))
    a.e("s_lshl_b32 %s, %s, 11" % (s(S_T0), s(S_T0)))
    a.e("s_lshl_b32 %s, %s, 4" % (s(S_T1), s(S_T1))); a.e("s_add_u32 %s, %s, %s" % (s(S_T1), s(S_T1), s(S_MT)))
    a.e("s_lshl_b32 %s, %s, 7" % (s(S_T1), s(S_T1))); a.e("s_add_u32 %s, %s, %d" % (s(S_T2), s(S_T1), 2 * MB))
    vz = R.get(); pb = R.get(8, 4)
    lane_col_off(a, vz, vl, vt)
    a.e("v_and_b32 %s, 15, %s" % (v(vt), v(vl)))
    a.e("v_lshl_add_u32 %s, %s, 6, %s" % (v(vt), v(vt), v(vz)))
    a.e("v_lshrrev_b32 %s, 4, %s" % (v(vt2), v(vl)))
    a.e("v_lshlrev_b32 %s, 4, %s" % (v(vt2), v(vt2)))
    a.e("s_waitcnt lgkmcnt(0)")
    for i in range(24):
        a.e("v_add_f32 %s, %s, %s" % (v(KV + i), v(KV + i), v(ex + i)))
    for et in range(2):
        for dt in range(2):
            for p in range(2):
                a.e("v_cvt_pk_bf16_f32 %s, %s, %s" % (v(pb + 4 * et + 2 * dt + p), v(kvt(dt, et) + 2 * p), v(kvt(dt, et) + 2 * p + 1)))
        for p in range(2):
            a.e("v_permlane16_swap_b32 %s, %s" % (v(pb + 4 * et + p), v(pb + 4 * et + 2 + p)))
        a.e("buffer_store_dwordx4 %s, %s, %s, %s offen offset:%d sc1" % (v(pb + 4 * et, 4), v(vt), s(SRD_O, 4), s(S_T0), et * 1024))
    a.e("s_mov_b32 exec_lo, 0x00010001"); a.e("s_mov_b32 exec_hi, 0x00010001")
    for dt in range(2):
        a.e("buffer_store_dwordx4 %s, %s, %s, %s offen offset:%d sc1" % (v(kvt(dt, 2), 4), v(vt2), s(SRD_O, 4), s(S_T2), dt * 64))
    a.e("s_mov_b64 exec, -1")
    def slot():
        a.e("s_lshl_b32 %s, %s, 1" % (s(S_T4), s(S_MT)))
        a.e("s_add_u32 %s, %s, %s" % (s(S_T4), s(S_T4), s(S_WN)))
        a.e("s_lshl_b32 %s, %s, 7" % (s(S_T4), s(S_T4)))
        a.e("s_add_u32 %s, %s, %s" % (s(S_T3), s(S_T3), s(S_T4)))
    set_flag(a, lambda: flag_off(a, F_K, L, S_NT, slot), vt)
    a.lab(l_q)
    tstamp(a, c.name + ".kvpub", names)
    R2 = Regs(r.free0, 255)
    mT = R2.get(4); rT = R2.get(4); csT = R2.get(8, 4); tmp = R2.get(4, 4); pq = R2.get(16, 4); va = R2.get(); vb = R2.get()
    a.e("v_and_b32 %s, 15, %s" % (v(va), v(vl)))
    a.e("v_lshlrev_b32 %s, 2, %s" % (v(va), v(va)))
    a.e("v_add_u32 %s, %s, %s" % (v(va), s(S_T5), v(va)))
    for tt in range(4):
        a.e("ds_read_b32 %s, %s offset:%d" % (v(mT + tt), v(va), 64 * tt))
        a.e("ds_read_b32 %s, %s offset:%d" % (v(rT + tt), v(va), 512 + 64 * tt))
    a.e("v_lshrrev_b32 %s, 4, %s" % (v(vb), v(vl)))
    a.e("v_lshlrev_b32 %s, 4, %s" % (v(vb), v(vb)))
    a.e("s_lshl_b32 %s, %s, 7" % (s(S_T0), s(S_WN)))
    a.e("s_add_u32 %s, %s, %d" % (s(S_T0), s(S_T0), L_CS))
    a.e("v_add_u32 %s, %s, %s" % (v(vb), s(S_T0), v(vb)))
    for j in range(2):
        a.e("ds_read_b128 %s, %s offset:%d" % (v(csT + 4 * j, 4), v(vb), 64 * j))
    a.e("s_waitcnt lgkmcnt(0)")
    tmpq = R2.get(4, 4)
    with Blk(a):
        for tt in range(4):
            for j in range(2):
                x = acc(j, tt)
                phi4(a, x, lambda i: v(mT + tt), lambda i: v(csT + 4 * j + i), lambda i: v(rT + tt), tmp if j else tmpq, C_L, C_E)
                for p in range(2):
                    a.e("v_cvt_pk_bf16_f32 %s, %s, %s" % (v(pq + 4 * tt + 2 * j + p), v(x + 2 * p), v(x + 2 * p + 1)))
    tstamp(a, c.name + ".qdone", names)
    a.e("s_barrier")
    tstamp(a, c.name + ".kvready", names)
    mk_srd(a, SRD_S, ('ws', WS_KVP[L], 4 * MB))
    P = r.acc
    a.e("v_lshlrev_b32 %s, 4, %s" % (v(vt), v(vl)))
    a.e("s_lshl_b32 %s, %s, 1" % (s(S_T1), s(S_NT))); a.e("s_add_u32 %s, %s, %s" % (s(S_T1), s(S_T1), s(S_WN)))
    a.e("s_lshl_b32 %s, %s, 8" % (s(S_T0), s(S_WM))); a.e("s_add_u32 %s, %s, %s" % (s(S_T0), s(S_T0), s(S_T1)))
    a.e("s_lshl_b32 %s, %s, 11" % (s(S_T0), s(S_T0)))
    a.e("s_lshl_b32 %s, %s, 4" % (s(S_T1), s(S_T1))); a.e("s_lshl_b32 %s, %s, 3" % (s(S_T2), s(S_WM))); a.e("s_add_u32 %s, %s, %s" % (s(S_T1), s(S_T1), s(S_T2)))
    a.e("s_lshl_b32 %s, %s, 7" % (s(S_T1), s(S_T1))); a.e("s_add_u32 %s, %s, %d" % (s(S_T1), s(S_T1), 2 * MB))
    ZP = P + 64
    a.e("buffer_load_dwordx4 %s, %s, %s, %s offen sc1" % (v(ZP, 4), v(vt), s(SRD_S, 4), s(S_T1)))
    for m in range(8):
        for et in range(2):
            a.e("buffer_load_dwordx4 %s, %s, %s, %s offen offset:%d sc1" % (v(P + 8 * m + 4 * et, 4), v(vt), s(SRD_S, 4), s(S_T0), 1024 * et))
        if m < 7: a.e("s_add_u32 %s, %s, %d" % (s(S_T0), s(S_T0), 32 * 2048))
    ACC = R2.get(16, 4); ua = R2.get(4, 2); msk = R2.get()
    a.e("v_mov_b32 %s, 0xffff0000" % v(msk))
    a.e("s_waitcnt vmcnt(16)")
    for i in range(4):
        a.e("v_add_f32_dpp %s, %s, %s row_ror:8 row_mask:0xf bank_mask:0xf" % (v(ZP + i), v(ZP + i), v(ZP + i)))
    for sw in ("v_permlane16_swap_b32", "v_permlane32_swap_b32"):
        for i in range(4): a.e("v_mov_b32 %s, %s" % (v(ua + i), v(ZP + i)))
        for i in range(4): a.e("%s %s, %s" % (sw, v(ua + i), v(ZP + i)))
        for i in range(4): a.e("v_add_f32 %s, %s, %s" % (v(ZP + i), v(ZP + i), v(ua + i)))
    for m in range(8):
        a.e("s_waitcnt vmcnt(%d)" % (2 * (7 - m)))
        for et in range(2):
            for i in range(4):
                src = P + 8 * m + 4 * et + i; d = ACC + 8 * et + 2 * i
                if m == 0:
                    a.e("v_lshlrev_b32 %s, 16, %s" % (v(d), v(src))); a.e("v_and_b32 %s, %s, %s" % (v(d + 1), v(msk), v(src)))
                else:
                    t0 = ua + 2 * (i & 1)
                    a.e("v_lshlrev_b32 %s, 16, %s" % (v(t0), v(src))); a.e("v_and_b32 %s, %s, %s" % (v(t0 + 1), v(msk), v(src)))
                    a.e("v_add_f32 %s, %s, %s" % (v(d), v(d), v(t0))); a.e("v_add_f32 %s, %s, %s" % (v(d + 1), v(d + 1), v(t0 + 1)))
    a.e("v_lshrrev_b32 %s, 2, %s" % (v(vt), v(vl))); a.e("v_lshlrev_b32 %s, 7, %s" % (v(vt), v(vt)))
    a.e("v_and_b32 %s, 3, %s" % (v(vt2), v(vl))); a.e("v_lshl_add_u32 %s, %s, 5, %s" % (v(vt), v(vt2), v(vt)))
    a.e("s_mul_i32 %s, %s, 5120" % (s(S_T0), s(S_WAVE)))
    a.e("s_add_u32 %s, %s, %d" % (s(S_T0), s(S_T0), L_AEX))
    a.e("v_add_u32 %s, %s, %s" % (v(vt), s(S_T0), v(vt)))
    for et in range(2):
        for hh in range(2):
            a.e("ds_write_b128 %s, %s offset:%d" % (v(vt), v(ACC + 8 * et + 4 * hh, 4), 2048 * et + 16 * hh))
    a.e("v_and_b32 %s, 7, %s" % (v(vt2), v(vl))); a.e("v_lshlrev_b32 %s, 4, %s" % (v(vt2), v(vt2)))
    a.e("v_add_u32 %s, %s, %s" % (v(vt2), s(S_T0), v(vt2)))
    a.e("ds_write_b128 %s, %s offset:4096" % (v(vt2), v(ZP, 4)))
    a.e("s_waitcnt lgkmcnt(0)")
    a.e("s_barrier")
    a.e("v_and_b32 %s, 15, %s" % (v(vt), v(vl)))
    a.e("v_lshlrev_b32 %s, 7, %s" % (v(vt), v(vt)))
    a.e("v_lshrrev_b32 %s, 4, %s" % (v(vt2), v(vl)))
    a.e("v_lshl_add_u32 %s, %s, 4, %s" % (v(vt), v(vt2), v(vt)))
    a.e("v_lshlrev_b32 %s, 4, %s" % (v(vt2), v(vt2)))
    a.e("s_mul_i32 %s, %s, 5120" % (s(S_T0), s(S_WN)))
    a.e("s_add_u32 %s, %s, %d" % (s(S_T0), s(S_T0), L_AEX))
    a.e("v_add_u32 %s, %s, %s" % (v(vt), s(S_T0), v(vt)))
    a.e("v_add_u32 %s, %s, %s" % (v(vt2), s(S_T0), v(vt2)))
    Z = P
    for w in range(2):
        for et in range(2):
            for hh in range(2):
                a.e("ds_read_b128 %s, %s offset:%d" % (v(Z + 24 * w + 8 * et + 4 * hh, 4), v(vt), w * 10240 + et * 2048 + hh * 64))
        for hh in range(2):
            a.e("ds_read_b128 %s, %s offset:%d" % (v(Z + 24 * w + 16 + 4 * hh, 4), v(vt2), w * 10240 + 4096 + hh * 64))
    a.e("s_waitcnt lgkmcnt(0)")
    for i in range(24): a.e("v_add_f32 %s, %s, %s" % (v(Z + i), v(Z + i), v(Z + 24 + i)))
    F = Z + 48
    for t in range(3):
        for i in range(4):
            a.e("v_cvt_pk_bf16_f32 %s, %s, %s" % (v(F + 4 * t + i), v(Z + 8 * t + 2 * i), v(Z + 8 * t + 2 * i + 1)))
    N = Z
    for tt in range(4):
        for t in range(3):
            a.e("v_mfma_f32_16x16x32_bf16 %s, %s, %s, 0" % (v(N + 12 * tt + 4 * t, 4), v(F + 4 * t, 4), v(pq + 4 * tt, 4)))
    mk_srd(a, SRD_O, ('ws', WS_O[L], 2048 * G.XP))
    vo = R2.get(); O = R2.get(16, 4)
    lane_col_off(a, vo, vl, vt)
    a.e("v_and_b32 %s, 15, %s" % (v(vt), v(vl)))
    a.e("v_mad_u32_u24 %s, %s, %s, %s" % (v(vo), v(vt), s(xp_reg(a, G.XP)), v(vo)))
    a.e("s_lshl_b32 %s, %s, 7" % (s(S_T0), s(S_MT)))
    a.e("s_lshl_b32 %s, %s, 6" % (s(S_T1), s(S_WM)))
    a.e("s_add_u32 %s, %s, %s" % (s(S_T0), s(S_T0), s(S_T1)))
    a.e("s_mul_i32 %s, %s, %d" % (s(S_T0), s(S_T0), G.XP))
    a.e("s_lshl_b32 %s, %s, 7" % (s(S_T1), s(S_NT)))
    a.e("s_add_u32 %s, %s, %s" % (s(S_T0), s(S_T0), s(S_T1)))
    a.e("s_lshl_b32 %s, %s, 6" % (s(S_T1), s(S_WN)))
    a.e("s_add_u32 %s, %s, %s" % (s(S_T0), s(S_T0), s(S_T1)))
    for tt in range(4):
        n = N + 12 * tt
        a.e("v_add_f32 %s, 0x%x, %s" % (v(n + 8), EPS6, v(n + 8)))
        a.e("v_rcp_f32 %s, %s" % (v(n + 8), v(n + 8)))
        for p in range(8): a.e("v_mul_f32 %s, %s, %s" % (v(n + p), v(n + p), v(n + 8)))
        for p in range(4):
            a.e("v_cvt_pk_bf16_f32 %s, %s, %s" % (v(O + 4 * tt + p), v(n + 2 * p), v(n + 2 * p + 1)))
        for p in range(2):
            a.e("v_permlane16_swap_b32 %s, %s" % (v(O + 4 * tt + p), v(O + 4 * tt + 2 + p)))
        a.e("s_add_u32 %s, %s, %d" % (s(S_T1), s(S_T0), tt * 16 * G.XP))
        a.e("buffer_store_dwordx4 %s, %s, %s, %s offen sc1" % (v(O + 4 * tt, 4), v(vo), s(SRD_O, 4), s(S_T1)))
    out_flag(a, F_O, L, vt)
    tstamp(a, c.name + ".opub", names)

def xp_reg(a, val):
    a.e("s_mov_b32 %s, %d" % (s(S_T4), val))
    return S_T4

def out_flag(a, kind, L, vt):
    def slot():
        a.e("s_lshl_b32 %s, %s, 7" % (s(S_T4), s(S_NT)))
        a.e("s_add_u32 %s, %s, %s" % (s(S_T3), s(S_T3), s(S_T4)))
    set_flag_wg(a, lambda: flag_off(a, kind, L, S_MT, slot), vt)

def resid_epi(a, c, r, names):
    R = Regs(r.free0, 255)
    vl, vt, vt2 = r.vl, r.vt, r.vt2
    def acc(j, tt): return r.acc + (j * c.TM + tt) * 4
    rs = R.get(16, 4); va = R.get(4); vo = R.get(); vs = R.get(); S = R.get(4, 2); t2 = R.get(4, 2); u = R.get(4, 4); pkd = R.get(16, 4); msk = R.get()
    a.e("v_and_b32 %s, 15, %s" % (v(vt), v(vl)))
    a.e("v_lshrrev_b32 %s, 1, %s" % (v(vt2), v(vt)))
    a.e("v_lshlrev_b32 %s, 7, %s" % (v(vt), v(vt)))
    a.e("s_lshl_b32 %s, %s, 12" % (s(S_T0), s(S_WM)))
    a.e("s_add_u32 %s, %s, %d" % (s(S_T0), s(S_T0), L_RES))
    a.e("v_add_u32 %s, %s, %s" % (v(vt), s(S_T0), v(vt)))
    a.e("v_bfe_u32 %s, %s, 4, 1" % (v(vo), v(vl)))
    a.e("v_lshl_add_u32 %s, %s, 3, %s" % (v(vt), v(vo), v(vt)))
    a.e("v_bfe_u32 %s, %s, 5, 1" % (v(vo), v(vl)))
    for t in range(4):
        a.e("v_add_u32 %s, %d, %s" % (v(vs), 2 * t, v(vo)))
        a.e("v_xor_b32 %s, %s, %s" % (v(vs), v(vs), v(vt2)))
        a.e("v_lshl_add_u32 %s, %s, 4, %s" % (v(va + t), v(vs), v(vt)))
    for tt in range(2):
        for t in range(4):
            a.e("ds_read_b64 %s, %s offset:%d" % (v(rs + 8 * tt + 2 * t, 2), v(va + t), 2048 * tt))
    mk_srd(a, SRD_O, c.obuf)
    if c.ostat: mk_srd(a, SRD_S, c.ostat)
    lane_col_off(a, vo, vl, vt)
    a.e("v_and_b32 %s, 15, %s" % (v(vt), v(vl)))
    a.e("v_mad_u32_u24 %s, %s, %s, %s" % (v(vo), v(vt), s(xp_reg(a, c.o_pitch)), v(vo)))
    a.e("s_lshl_b32 %s, %s, 7" % (s(S_T0), s(S_MT)))
    a.e("s_lshl_b32 %s, %s, 5" % (s(S_T1), s(S_WM)))
    a.e("s_add_u32 %s, %s, %s" % (s(S_T5), s(S_T0), s(S_T1)))
    a.e("s_mul_i32 %s, %s, %d" % (s(S_T0), s(S_T5), c.o_pitch))
    a.e("s_lshl_b32 %s, %s, 7" % (s(S_T1), s(S_NT)))
    a.e("s_add_u32 %s, %s, %s" % (s(S_T0), s(S_T0), s(S_T1)))
    a.e("v_mov_b32 %s, 0xffff0000" % v(msk))
    sc = " sc1" if c.outflag is not None else ""
    a.e("s_waitcnt lgkmcnt(0)")
    for tt in range(2):
        for t in range(4):
            x = acc(t, tt)
            for p in range(2):
                a.e("v_lshlrev_b32 %s, 16, %s" % (v(u + 2 * p), v(rs + 8 * tt + 2 * t + p)))
                a.e("v_and_b32 %s, %s, %s" % (v(u + 2 * p + 1), v(msk), v(rs + 8 * tt + 2 * t + p)))
            for i in range(4): a.e("v_add_f32 %s, %s, %s" % (v(x + i), v(x + i), v(u + i)))
            for p in range(2):
                a.e("v_cvt_pk_bf16_f32 %s, %s, %s" % (v(pkd + 8 * tt + 2 * t + p), v(x + 2 * p), v(x + 2 * p + 1)))
            if c.ostat:
                for i in range(4):
                    if t == 0 and i < 2:
                        a.e("v_mov_b32 %s, %s" % (v(t2 + i), v(x + i))); a.e("v_mul_f32 %s, %s, %s" % (v(t2 + 2 + i), v(x + i), v(x + i)))
                    else:
                        a.e("v_add_f32 %s, %s, %s" % (v(t2 + (i & 1)), v(t2 + (i & 1)), v(x + i)))
                        a.e("v_fmac_f32 %s, %s, %s" % (v(t2 + 2 + (i & 1)), v(x + i), v(x + i)))
        if c.ostat:
            a.e("v_add_f32 %s, %s, %s" % (v(S + 2 * tt), v(t2), v(t2 + 1)))
            a.e("v_add_f32 %s, %s, %s" % (v(S + 2 * tt + 1), v(t2 + 2), v(t2 + 3)))
        for h in range(2):
            b = pkd + 8 * tt + 4 * h
            for p in range(2):
                a.e("v_permlane16_swap_b32 %s, %s" % (v(b + p), v(b + 2 + p)))
            a.e("s_add_u32 %s, %s, %d" % (s(S_T1), s(S_T0), tt * 16 * c.o_pitch))
            a.e("buffer_store_dwordx4 %s, %s, %s, %s offen offset:%d%s" % (v(b, 4), v(vo), s(SRD_O, 4), s(S_T1), 64 * h, sc))
    if c.ostat:
        for sw in ("v_permlane16_swap_b32", "v_permlane32_swap_b32"):
            for i in range(4): a.e("v_mov_b32 %s, %s" % (v(u + i), v(S + i)))
            for i in range(4): a.e("%s %s, %s" % (sw, v(u + i), v(S + i)))
            for i in range(4): a.e("v_add_f32 %s, %s, %s" % (v(S + i), v(S + i), v(u + i)))
        a.e("v_cmp_le_u32 vcc, 16, %s" % v(vl))
        a.e("v_cndmask_b32 %s, %s, %s, vcc" % (v(S), v(S), v(S + 2)))
        a.e("v_cndmask_b32 %s, %s, %s, vcc" % (v(S + 1), v(S + 1), v(S + 3)))
        a.e("v_lshlrev_b32 %s, 3, %s" % (v(vt), v(vl)))
        a.e("s_lshl_b32 %s, %s, 3" % (s(S_T0), s(S_T5)))
        a.e("s_lshl_b32 %s, %s, 14" % (s(S_T1), s(S_NT)))
        a.e("s_add_u32 %s, %s, %s" % (s(S_T0), s(S_T0), s(S_T1)))
        a.e("s_mov_b32 exec_hi, 0")
        a.e("buffer_store_dwordx2 %s, %s, %s, %s offen sc1" % (v(S, 2), v(vt), s(SRD_S, 4), s(S_T0)))
        a.e("s_mov_b64 exec, -1")
    if G.bst: a.e("s_barrier")
    if c.outflag is not None:
        out_flag(a, c.outflag[0], c.outflag[1], vt)
    tstamp(a, c.name + ".pub", names)

WS_XCH = [100 * MB, 110 * MB]
def foffp(L): return 11 * 65536 + L * 131072

def dsk_epi(a, c, r, names):
    L = c.L
    R = Regs(r.free0, 255)
    vl, vt, vt2 = r.vl, r.vt, r.vt2
    def acc(j, sl): return r.acc + (j * c.TM + sl) * 4
    mk_srd(a, SRD_S, ('ws', WS_XCH[L], 8 * MB))
    vx = R.get()
    a.e("v_lshlrev_b32 %s, 4, %s" % (v(vx), v(vl)))
    a.e("s_lshl_b32 %s, s2, 2" % s(S_T0)); a.e("s_add_u32 %s, %s, %s" % (s(S_T0), s(S_T0), s(S_WAVE)))
    a.e("s_lshl_b32 %s, %s, 13" % (s(S_T0), s(S_T0)))
    for j in range(4):
        for i in range(2):
            k = 2 * j + i
            if k == 4 or k == 0:
                a.e("s_add_u32 %s, %s, %d" % (s(S_T1), s(S_T0), 4096 * (k // 4)))
            a.e("buffer_store_dwordx4 %s, %s, %s, %s offen offset:%d sc1" % (v(acc(j, 2 + i), 4), v(vx), s(SRD_S, 4), s(S_T1), 1024 * (k % 4)))
    if G.bst: a.e("s_barrier")
    def fo():
        a.e("s_lshl_b32 %s, s2, 2" % s(S_T3)); a.e("s_add_u32 %s, %s, %s" % (s(S_T3), s(S_T3), s(S_WAVE)))
        a.e("s_lshl_b32 %s, %s, 7" % (s(S_T3), s(S_T3))); a.e("s_add_u32 %s, %s, %d" % (s(S_T3), s(S_T3), foffp(L)))
    rs = R.get(16, 4); va = R.get(4); vo = R.get(); vs = R.get(); S = R.get(4, 2); t2 = R.get(4, 2); u = R.get(4, 4); pkd = R.get(16, 4); msk = R.get()
    P = R.get(32, 4)
    a.e("v_and_b32 %s, 15, %s" % (v(vt), v(vl)))
    a.e("v_lshrrev_b32 %s, 1, %s" % (v(vt2), v(vt)))
    a.e("v_lshlrev_b32 %s, 7, %s" % (v(vt), v(vt)))
    a.e("s_lshl_b32 %s, %s, 12" % (s(S_T1), s(S_WM)))
    a.e("s_add_u32 %s, %s, %d" % (s(S_T1), s(S_T1), L_RES))
    a.e("v_add_u32 %s, %s, %s" % (v(vt), s(S_T1), v(vt)))
    a.e("v_bfe_u32 %s, %s, 4, 1" % (v(vo), v(vl)))
    a.e("v_lshl_add_u32 %s, %s, 3, %s" % (v(vt), v(vo), v(vt)))
    a.e("v_bfe_u32 %s, %s, 5, 1" % (v(vo), v(vl)))
    a.e("s_lshl_b32 %s, %s, 2" % (s(S_T1), s(S_WN)))
    a.e("v_add_u32 %s, %s, %s" % (v(vo), s(S_T1), v(vo)))
    for jj in range(2):
        a.e("v_add_u32 %s, %d, %s" % (v(vs), 2 * jj, v(vo)))
        a.e("v_xor_b32 %s, %s, %s" % (v(vs), v(vs), v(vt2)))
        a.e("v_lshl_add_u32 %s, %s, 4, %s" % (v(va + jj), v(vs), v(vt)))
    for i in range(2):
        for j in range(4):
            a.e("ds_read_b64 %s, %s offset:%d" % (v(rs + 8 * i + 2 * j, 2), v(va + (j & 1)), 8192 * (j >> 1) + 2048 * i))
    set_flag(a, fo, vt)
    tstamp(a, c.name + ".sent", names)
    def po():
        a.e("s_xor_b32 %s, s2, %d" % (s(S_T3), c.pxor)); a.e("s_lshl_b32 %s, %s, 2" % (s(S_T3), s(S_T3))); a.e("s_add_u32 %s, %s, %s" % (s(S_T3), s(S_T3), s(S_WAVE)))
        a.e("s_lshl_b32 %s, %s, 7" % (s(S_T3), s(S_T3))); a.e("s_add_u32 %s, %s, %d" % (s(S_T3), s(S_T3), foffp(L)))
    poll(a, po, 1, vl, vs - 0 if False else u, 0x400 + L)
    tstamp(a, c.name + ".got", names)
    a.e("s_xor_b32 %s, s2, %d" % (s(S_T0), c.pxor)); a.e("s_lshl_b32 %s, %s, 2" % (s(S_T0), s(S_T0))); a.e("s_add_u32 %s, %s, %s" % (s(S_T0), s(S_T0), s(S_WAVE)))
    a.e("s_lshl_b32 %s, %s, 13" % (s(S_T0), s(S_T0)))
    for j in range(4):
        for i in range(2):
            k = 2 * j + i
            if k == 4 or k == 0:
                a.e("s_add_u32 %s, %s, %d" % (s(S_T1), s(S_T0), 4096 * (k // 4)))
            a.e("buffer_load_dwordx4 %s, %s, %s, %s offen offset:%d sc1" % (v(P + 4 * k, 4), v(vx), s(SRD_S, 4), s(S_T1), 1024 * (k % 4)))
    mk_srd(a, SRD_O, c.obuf)
    lane_col_off(a, vo, vl, vt)
    a.e("v_and_b32 %s, 15, %s" % (v(vt), v(vl)))
    a.e("v_mad_u32_u24 %s, %s, %s, %s" % (v(vo), v(vt), s(xp_reg(a, c.o_pitch)), v(vo)))
    a.e("s_lshl_b32 %s, %s, 7" % (s(S_T0), s(S_MT)))
    a.e("s_lshl_b32 %s, %s, 6" % (s(S_T1), s(S_WM))); a.e("s_add_u32 %s, %s, %s" % (s(S_T0), s(S_T0), s(S_T1)))
    a.e("s_lshl_b32 %s, %s, 5" % (s(S_T1), s(S_KH))); a.e("s_add_u32 %s, %s, %s" % (s(S_T5), s(S_T0), s(S_T1)))
    a.e("s_mul_i32 %s, %s, %d" % (s(S_T0), s(S_T5), c.o_pitch))
    a.e("s_lshl_b32 %s, %s, 8" % (s(S_T1), s(S_NT))); a.e("s_add_u32 %s, %s, %s" % (s(S_T0), s(S_T0), s(S_T1)))
    a.e("s_lshl_b32 %s, %s, 6" % (s(S_T1), s(S_WN))); a.e("s_add_u32 %s, %s, %s" % (s(S_T0), s(S_T0), s(S_T1)))
    a.e("v_mov_b32 %s, 0xffff0000" % v(msk))
    sc = " sc1" if c.outflag is not None else ""
    a.e("s_waitcnt lgkmcnt(0)")
    for i in range(2):
        for j in range(4):
            x = acc(j, i); k = 2 * j + i
            for p in range(2):
                a.e("v_lshlrev_b32 %s, 16, %s" % (v(u + 2 * p), v(rs + 8 * i + 2 * j + p)))
                a.e("v_and_b32 %s, %s, %s" % (v(u + 2 * p + 1), v(msk), v(rs + 8 * i + 2 * j + p)))
            for e in range(4): a.e("v_add_f32 %s, %s, %s" % (v(x + e), v(x + e), v(u + e)))
    a.e("s_waitcnt vmcnt(0)")
    for i in range(2):
        for j in range(4):
            x = acc(j, i); k = 2 * j + i
            for e in range(4): a.e("v_add_f32 %s, %s, %s" % (v(x + e), v(x + e), v(P + 4 * k + e)))
            for p in range(2):
                a.e("v_cvt_pk_bf16_f32 %s, %s, %s" % (v(pkd + 8 * i + 2 * j + p), v(x + 2 * p), v(x + 2 * p + 1)))
            if c.ostat:
                for e in range(4):
                    if j == 0 and e < 2:
                        a.e("v_mov_b32 %s, %s" % (v(t2 + e), v(x + e))); a.e("v_mul_f32 %s, %s, %s" % (v(t2 + 2 + e), v(x + e), v(x + e)))
                    else:
                        a.e("v_add_f32 %s, %s, %s" % (v(t2 + (e & 1)), v(t2 + (e & 1)), v(x + e)))
                        a.e("v_fmac_f32 %s, %s, %s" % (v(t2 + 2 + (e & 1)), v(x + e), v(x + e)))
        if c.ostat:
            a.e("v_add_f32 %s, %s, %s" % (v(S + 2 * i), v(t2), v(t2 + 1)))
            a.e("v_add_f32 %s, %s, %s" % (v(S + 2 * i + 1), v(t2 + 2), v(t2 + 3)))
        for h in range(2):
            b = pkd + 8 * i + 4 * h
            for p in range(2):
                a.e("v_permlane16_swap_b32 %s, %s" % (v(b + p), v(b + 2 + p)))
            a.e("s_add_u32 %s, %s, %d" % (s(S_T1), s(S_T0), i * 16 * c.o_pitch))
            a.e("buffer_store_dwordx4 %s, %s, %s, %s offen offset:%d%s" % (v(b, 4), v(vo), s(SRD_O, 4), s(S_T1), 128 * h, sc))
    if c.ostat:
        mk_srd(a, SRD_S, c.ostat)
        for sw in ("v_permlane16_swap_b32", "v_permlane32_swap_b32"):
            for i in range(4): a.e("v_mov_b32 %s, %s" % (v(u + i), v(S + i)))
            for i in range(4): a.e("%s %s, %s" % (sw, v(u + i), v(S + i)))
            for i in range(4): a.e("v_add_f32 %s, %s, %s" % (v(S + i), v(S + i), v(u + i)))
        a.e("v_cmp_le_u32 vcc, 16, %s" % v(vl))
        a.e("v_cndmask_b32 %s, %s, %s, vcc" % (v(S), v(S), v(S + 2)))
        a.e("v_cndmask_b32 %s, %s, %s, vcc" % (v(S + 1), v(S + 1), v(S + 3)))
        a.e("v_lshlrev_b32 %s, 3, %s" % (v(vt), v(vl)))
        a.e("s_lshl_b32 %s, %s, 3" % (s(S_T0), s(S_T5)))
        a.e("s_lshl_b32 %s, %s, 1" % (s(S_T1), s(S_NT))); a.e("s_add_u32 %s, %s, %s" % (s(S_T1), s(S_T1), s(S_WN)))
        a.e("s_lshl_b32 %s, %s, 14" % (s(S_T1), s(S_T1)))
        a.e("s_add_u32 %s, %s, %s" % (s(S_T0), s(S_T0), s(S_T1)))
        a.e("s_mov_b32 exec_hi, 0")
        a.e("buffer_store_dwordx2 %s, %s, %s, %s offen sc1" % (v(S, 2), v(vt), s(SRD_S, 4), s(S_T0)))
        a.e("s_mov_b64 exec, -1")
    if c.outflag is not None:
        def slot():
            a.e("s_lshl_b32 %s, %s, 1" % (s(S_T4), s(S_NT))); a.e("s_add_u32 %s, %s, %s" % (s(S_T4), s(S_T4), s(S_KH)))
            a.e("s_lshl_b32 %s, %s, 7" % (s(S_T4), s(S_T4))); a.e("s_add_u32 %s, %s, %s" % (s(S_T3), s(S_T3), s(S_T4)))
        set_flag_wg(a, lambda: flag_off(a, c.outflag[0], c.outflag[1], S_MT, slot), vt)
    tstamp(a, c.name + ".pub", names)

class JobWbulkD(Job):
    nops = 2
    def emit(self, a, c, lr):
        vp = lr.vpf; vl = lr.vl
        a.e("s_bfe_u32 %s, s2, 0x30003" % s(S_T0)); a.e("s_mul_i32 %s, %s, 224" % (s(S_T0), s(S_T0)))
        a.e("s_mul_i32 %s, %s, 56" % (s(S_T1), s(S_WAVE))); a.e("s_add_u32 %s, %s, %s" % (s(S_T0), s(S_T0), s(S_T1)))
        a.e("s_mul_i32 %s, %s, %d" % (s(S_T1), s(S_KH), c.K)); a.e("s_add_u32 %s, %s, %s" % (s(S_T0), s(S_T0), s(S_T1)))
        a.e("v_min_u32 %s, 55, %s" % (v(vp), v(vl)))
        a.e("v_add_u32 %s, %s, %s" % (v(vp), s(S_T0), v(vp)))
        a.e("v_mul_u32_u24 %s, %d, %s" % (v(vp), c.w_pitch, v(vp)))
        a.e("s_lshl_b32 %s, %s, 8" % (s(S_T0), s(S_NT)))
        a.e("buffer_load_dword %s, %s, %s, %s offen" % (v(lr.vd), v(vp), s(SRD_W, 4), s(S_T0)))
        a.e("buffer_load_dword %s, %s, %s, %s offen offset:128" % (v(lr.vd), v(vp), s(SRD_W, 4), s(S_T0)))

def w1_epi(a, c, r, L, names):
    vl, vt, vt2 = r.vl, r.vt, r.vt2
    def acc(j, tt): return r.acc + (j * c.TM + tt) * 4
    R = Regs(r.free0, 255)
    if M.detail: tstamp(a, c.name + ".e0", names, True)
    a.e("s_lshl_b32 %s, %s, 8" % (s(S_T5), s(S_WM))); a.e("s_add_u32 %s, %s, %d" % (s(S_T5), s(S_T5), L_STAT))
    R = Regs(r.free0, 255)
    mT = R.get(4); cT = R.get(4); iT = R.get(4); cs = R.get(28, 4); tmp = R.get(8, 4); pkd = R.get(16, 4); va = R.get(); vb = R.get(); vo = R.get(); vh = R.get()
    a.e("v_and_b32 %s, 15, %s" % (v(va), v(vl)))
    a.e("v_lshlrev_b32 %s, 2, %s" % (v(va), v(va)))
    a.e("v_add_u32 %s, %s, %s" % (v(va), s(S_T5), v(va)))
    for tt in range(4):
        a.e("ds_read_b32 %s, %s offset:%d" % (v(mT + tt), v(va), 64 * tt))
        a.e("ds_read_b32 %s, %s offset:%d" % (v(cT + tt), v(va), 512 + 64 * tt))
        a.e("ds_read_b32 %s, %s offset:%d" % (v(iT + tt), v(va), 1024 + 64 * tt))
    a.e("v_lshrrev_b32 %s, 4, %s" % (v(vb), v(vl)))
    a.e("v_lshlrev_b32 %s, 4, %s" % (v(vb), v(vb)))
    a.e("v_add_u32 %s, %d, %s" % (v(vb), L_CS, v(vb)))
    a.e("s_lshl_b32 %s, %s, 6" % (s(S_T0), s(S_WN)))
    a.e("v_add_u32 %s, %s, %s" % (v(vh), s(S_T0), v(vb)))
    a.e("s_lshl_b32 %s, %s, 7" % (s(S_T0), s(S_WN)))
    a.e("v_add_u32 %s, %s, %s" % (v(vb), s(S_T0), v(vb)))
    a.e("s_waitcnt lgkmcnt(0)")
    for j, (si, ai) in enumerate(c.ct):
        if c.segs[si] == 'full': a.e("ds_read_b128 %s, %s offset:%d" % (v(cs + 4 * j, 4), v(vb), 256 * si + 64 * ai))
        else: a.e("ds_read_b128 %s, %s offset:%d" % (v(cs + 4 * j, 4), v(vh), 768))
    mk_srd(a, SRD_O, ('ws', WS_H[L], 2048 * G.HP))
    wcol_base(a, c, S_T2, S_HALFOFF)
    lane_col_off(a, vo, vl, vt)
    a.e("v_and_b32 %s, 15, %s" % (v(vt), v(vl)))
    a.e("v_mul_u32_u24 %s, %d, %s" % (v(vt), G.HP, v(vt)))
    a.e("v_add_u32 %s, %s, %s" % (v(vo), v(vo), v(vt)))
    a.e("s_lshl_b32 %s, %s, 6" % (s(S_T0), s(S_WN)))
    a.e("v_add_u32 %s, %s, %s" % (v(vo), s(S_T0), v(vo)))
    a.e("v_lshrrev_b32 %s, 4, %s" % (v(vh), v(vl)))
    a.e("v_lshl_add_u32 %s, %s, 3, %s" % (v(vh), v(vh), v(vt)))
    a.e("s_lshl_b32 %s, %s, 5" % (s(S_T0), s(S_WN)))
    a.e("s_add_u32 %s, %s, %s" % (s(S_T0), s(S_T0), s(S_HALFOFF)))
    a.e("s_add_u32 %s, %s, %s" % (s(S_T0), s(S_T0), s(S_T2)))
    a.e("v_add_u32 %s, %s, %s" % (v(vh), s(S_T0), v(vh)))
    a.e("v_add_u32 %s, %s, %s" % (v(vo), s(S_T2), v(vo)))
    a.e("s_lshl_b32 %s, %s, 7" % (s(S_T0), s(S_MT)))
    a.e("s_lshl_b32 %s, %s, 6" % (s(S_T1), s(S_WM)))
    a.e("s_add_u32 %s, %s, %s" % (s(S_T0), s(S_T0), s(S_T1)))
    a.e("s_mul_i32 %s, %s, %d" % (s(S_T0), s(S_T0), G.HP))
    a.e("s_waitcnt lgkmcnt(0)")
    def silu_n(items, tmp=tmp):
        for n, (x, j, tt) in enumerate(items):
            for i in range(4): a.e("v_fmac_f32 %s, %s, %s" % (v(x + i), v(mT + tt), v(cs + 4 * j + i)))
        for n, (x, j, tt) in enumerate(items):
            for i in range(4): a.e("v_mul_f32 %s, %s, %s" % (v(tmp + 4 * n + i), v(x + i), v(cT + tt)))
        for n, (x, j, tt) in enumerate(items):
            for i in range(4): a.e("v_exp_f32 %s, %s" % (v(tmp + 4 * n + i), v(tmp + 4 * n + i)))
        for n, (x, j, tt) in enumerate(items):
            for i in range(4): a.e("v_fma_f32 %s, %s, %s, %s" % (v(tmp + 4 * n + i), v(tmp + 4 * n + i), v(iT + tt), v(iT + tt)))
        for n, (x, j, tt) in enumerate(items):
            for i in range(4): a.e("v_rcp_f32 %s, %s" % (v(tmp + 4 * n + i), v(tmp + 4 * n + i)))
        for n, (x, j, tt) in enumerate(items):
            for i in range(4): a.e("v_mul_f32 %s, %s, %s" % (v(x + i), v(x + i), v(tmp + 4 * n + i)))
    h7 = R.get(8, 4); g7 = R.get(4, 4); vx = R.get(); tmp7 = R.get(4, 4)
    with Blk(a):
        for tt in range(4):
            x = acc(6, tt)
            silu_n([(x, 6, tt)], [tmp, tmp + 4, tmp7, tmp][tt])
            for p in range(2):
                a.e("v_cvt_pk_bf16_f32 %s, %s, %s" % (v(h7 + 2 * tt + p), v(x + 2 * p), v(x + 2 * p + 1)))
    a.e("v_lshlrev_b32 %s, 4, %s" % (v(vx), v(vl)))
    a.e("s_lshl_b32 %s, %s, 10" % (s(S_T1), s(S_WAVE)))
    a.e("s_add_u32 %s, %s, %d" % (s(S_T1), s(S_T1), L_X7))
    a.e("v_add_u32 %s, %s, %s" % (v(vx), s(S_T1), v(vx)))
    l_a = a.newlab("g7a"); l_b = a.newlab("g7b")
    a.e("s_cmp_eq_u32 %s, 0" % s(S_WN)); a.e("s_cbranch_scc0 %s" % l_a)
    a.e("ds_write_b128 %s, %s" % (v(vx), v(h7 + 4, 4)))
    a.e("s_branch %s" % l_b)
    a.lab(l_a)
    a.e("ds_write_b128 %s, %s" % (v(vx), v(h7, 4)))
    a.lab(l_b)
    k = 0
    tmp2 = R.get(8, 4)
    with Blk(a):
        for tt in range(4):
            for si in range(3):
                b = pkd + 4 * (k & 3); k += 1
                silu_n([(acc(2 * si + ai, tt), 2 * si + ai, tt) for ai in range(2)], tmp if k & 1 else tmp2)
                for ai in range(2):
                    x = acc(2 * si + ai, tt)
                    for p in range(2):
                        a.e("v_cvt_pk_bf16_f32 %s, %s, %s" % (v(b + 2 * ai + p), v(x + 2 * p), v(x + 2 * p + 1)))
                for p in range(2):
                    a.e("v_permlane16_swap_b32 %s, %s" % (v(b + p), v(b + 2 + p)))
                if si == 0: a.e("s_add_u32 %s, %s, %d" % (s(S_T1), s(S_T0), tt * 16 * G.HP))
                a.e("buffer_store_dwordx4 %s, %s, %s, %s offen offset:%d sc1" % (v(b, 4), v(vo), s(SRD_O, 4), s(S_T1), 128 * si))
    a.e("s_waitcnt lgkmcnt(0)")
    a.e("s_barrier")
    a.e("v_xor_b32 %s, 1024, %s" % (v(vx), v(vx)))
    a.e("ds_read_b128 %s, %s" % (v(g7, 4), v(vx)))
    lane_col_off(a, vh, vl, vt)
    a.e("v_and_b32 %s, 15, %s" % (v(vt), v(vl)))
    a.e("v_mul_u32_u24 %s, %d, %s" % (v(vt), G.HP, v(vt)))
    a.e("v_add_u32 %s, %s, %s" % (v(vh), v(vh), v(vt)))
    a.e("s_add_u32 %s, %s, %s" % (s(S_T1), s(S_HALFOFF), s(S_T2)))
    a.e("v_add_u32 %s, %s, %s" % (v(vh), s(S_T1), v(vh)))
    l_c = a.newlab("g7c"); l_d = a.newlab("g7d")
    a.e("s_waitcnt lgkmcnt(0)")
    a.e("s_cmp_eq_u32 %s, 0" % s(S_WN)); a.e("s_cbranch_scc0 %s" % l_c)
    for i in range(2):
        b = pkd + 4 * i
        for p in range(2):
            a.e("v_mov_b32 %s, %s" % (v(b + p), v(h7 + 2 * i + p))); a.e("v_mov_b32 %s, %s" % (v(b + 2 + p), v(g7 + 2 * i + p)))
    a.e("s_mov_b32 %s, 0" % s(S_T4))
    a.e("s_branch %s" % l_d)
    a.lab(l_c)
    for i in range(2):
        b = pkd + 4 * i
        for p in range(2):
            a.e("v_mov_b32 %s, %s" % (v(b + p), v(g7 + 2 * i + p))); a.e("v_mov_b32 %s, %s" % (v(b + 2 + p), v(h7 + 4 + 2 * i + p)))
    a.e("s_mov_b32 %s, %d" % (s(S_T4), 2 * 16 * G.HP))
    a.lab(l_d)
    a.e("s_add_u32 %s, %s, %s" % (s(S_T4), s(S_T4), s(S_T0)))
    for i in range(2):
        b = pkd + 4 * i
        for p in range(2):
            a.e("v_permlane16_swap_b32 %s, %s" % (v(b + p), v(b + 2 + p)))
        a.e("s_add_u32 %s, %s, %d" % (s(S_T1), s(S_T4), i * 16 * G.HP))
        a.e("buffer_store_dwordx4 %s, %s, %s, %s offen sc1" % (v(b, 4), v(vh), s(SRD_O, 4), s(S_T1)))
    if M.detail:
        a.e("s_waitcnt vmcnt(0)")
        tstamp(a, c.name + ".drained", names, True)
    out_flag(a, F_H, L, vt)
    tstamp(a, c.name + ".pub", names)

def tail_stats(a): a.e("s_lshl_b32 %s, %s, 10" % (s(S_T0), s(S_MT)))
def tail_resid(a): a.e("s_lshl_b32 %s, %s, 7" % (s(S_T0), s(S_NT)))
def tail_dsk(a):
    a.e("s_lshl_b32 %s, %s, 8" % (s(S_T0), s(S_NT)))
    a.e("s_lshr_b32 %s, %s, 1" % (s(S_T1), s(S_WAVE))); a.e("s_lshl_b32 %s, %s, 7" % (s(S_T1), s(S_T1)))
    a.e("s_add_u32 %s, %s, %s" % (s(S_T0), s(S_T0), s(S_T1)))

def phases(opt):
    XP = G.XP; HP = G.HP; AB = 2048 * XP
    X0 = ('x', 0, ACT); X1 = ('ws', WS_X1, AB); X2 = ('ws', WS_X2, AB); X3 = ('ws', WS_X3, AB); OUT = ('out', 0, ACT)
    P = []
    com = dict(wflags='', xflags=' sc1')
    for L in range(2):
        xin = X0 if L == 0 else X2; xmid = X1 if L == 0 else X3; xout = X2 if L == 0 else OUT
        pin = 2048 if L == 0 else XP; pout = XP if L == 0 else 2048
        q = Cfg(name='q%d' % L, K=1024, xbuf=xin, x_pitch=pin, wbuf=('wqkv', 0, 1024 * 6144), w_pitch=6144, segs=['full'] * 3,
                w_seg_bytes=[0, 2048, 4096], w_ntile_bytes=128, NS=3, WM=2, WN=2, map=map_8x4, orient='TTNNNN',
                tailbuf=stbuf(2 * L), tail_pitch=0, tail_soff=tail_stats, inflag=None if L == 0 else (F_X, 1), kind='q', L=L, **{**com, **opt.get('q', {})})
        w = Cfg(name='o%d' % L, K=1024, xbuf=('ws', WS_O[L], AB), x_pitch=XP, wbuf=('wo', 0, 1024 * 2048), w_pitch=2048, segs=['full'],
                w_seg_bytes=[0], w_ntile_bytes=128, NS=5, WM=4, WN=1, SUBS=2, map=map_4x8, orient='TTTT',
                tailbuf=xin, tail_pitch=pin, tail_soff=tail_resid, obuf=xmid, o_pitch=XP, ostat=stbuf(2 * L + 1), inflag=(F_O, L), outflag=(F_X1, L), kind='r', L=L, **{**com, **opt.get('o', {})})
        u = Cfg(name='u%d' % L, K=1024, xbuf=xmid, x_pitch=XP, wbuf=('w1', 0, 1024 * 7168), w_pitch=7168, segs=['full'] * 3 + ['half'],
                w_seg_bytes=[0, 128, 256], w_ntile_bytes=448, NS=3, WM=2, WN=2, map=map_8x4, orient='T' * 7,
                tailbuf=stbuf(2 * L + 1), tail_pitch=0, tail_soff=tail_stats, inflag=(F_X1, L), kind='u', L=L, **{**com, **opt.get('u', {})})
        d = Cfg(name='d%d' % L, K=3584, xbuf=('ws', WS_H[L], 2048 * HP), x_pitch=HP, wbuf=('w2', 0, 3584 * 2048), w_pitch=2048, segs=['full'],
                w_seg_bytes=[0], w_ntile_bytes=128, NS=5, WM=4, WN=1, SUBS=2, map=map_4x8, orient='TTTT',
                tailbuf=xmid, tail_pitch=XP, tail_soff=tail_resid, obuf=xout, o_pitch=pout, ostat=stbuf(2) if L == 0 else None, inflag=(F_H, L),
                outflag=(F_X, 1) if L == 0 else None, kind='r', L=L, **{**com, **opt.get('d', {})})
        if opt.get('dsk', True):
            d = Cfg(name='d%d' % L, K=1792, xbuf=('ws', WS_H[L], 2048 * HP), x_pitch=HP, wbuf=('w2', 0, 3584 * 2048), w_pitch=2048, segs=['full', 'full'],
                    w_seg_bytes=[0, 128], w_ntile_bytes=256, NS=opt.get('dNS', 3), WM=2, WN=2, map=map_dsk2 if opt.get('same', False) else map_dsk, pxor=8 if opt.get('same', False) else 1, orient='TTTT', splitk=True,
                    tailbuf=xmid, tail_pitch=XP, tail_soff=tail_dsk, obuf=xout, o_pitch=pout, ostat=stbuf(2) if L == 0 else None, inflag=(F_H, L),
                    outflag=(F_X, 1) if L == 0 else None, kind='k', L=L, **{**com, **opt.get('d', {})})
        for c in (q, w, u, d):
            c.jobs_pre = []; c.jobs_at = {}; c.win = None; c.win_lead = 3
            c.rot = False; c.cs = False; c.lazy = None; c.extra = False; c.nopre = c.inflag is None
        q.rot = u.rot = (L == 0 or opt.get('rot1', False)); q.cs = u.cs = True
        if L == 0:
            q.extra = u.extra = True
            q.jobs_pre = [JobZero()] + ([JobCode()] if opt.get('code', True) else [])
            q.lazy = JobLazy('init'); u.lazy = JobLazy('csu')
        pf = opt.get('pf', 'mo')
        if 'x' in pf:
            w.win = JobXW()
            if d.kind != 'k': d.win = JobXW()
        if 'b' in pf and d.kind == 'k': d.jobs_pre.append(JobWbulkD())
        if 'o' in pf: w.jobs_pre.append(JobWbulkO())
        if 'w' in pf:
            q.jobs_pre.append(JobWbulk()); u.jobs_pre.append(JobWbulk())
        if 'm' in pf and L == 0:
            wa = opt.get('wa', 5); wb = opt.get('wb', 3)
            ja = [JobWarm(('wo', 0, 1024 * 2048), 16, 2), JobWarm(('w1', 0, 1024 * 7168), 56, 0)]
            jb = [JobWarm(('w2', 0, 3584 * 2048), 56, 0)]
            for g in range(8):
                q.jobs_at.setdefault(wa + g, []).append(JobCond(ja, g))
                u.jobs_at.setdefault(wb + g, []).append(JobCond(jb, g))
        if opt.get('q0nt') and L == 0:
            q.wflags = ' nt' if 'w' in opt['q0nt'] else ''
            q.xflags = ' nt' if 'x' in opt['q0nt'] else q.xflags
            if 'w' in opt['q0nt']:
                jq = [JobWarm(('wqkv', 0, 1024 * 6144), 48, 0)]
                for g in range(8): d.jobs_at.setdefault(4 + g, []).append(JobCond(jq, g))
        if 'n' in pf and L == 0:
            q.jobs_at = {6: [JobWarm(('wo', 0, 1024 * 2048), 16, 2), JobWarm(('w1', 0, 1024 * 7168), 56, 0)]}
            u.jobs_at = {5: [JobWarm(('w2', 0, 3584 * 2048), 56, 0)]}
        if L == 0:
            q.jobs_at.setdefault(4, []).append(JobArrive('init')); q.jobs_at.setdefault(10, []).append(q.lazy)
            u.jobs_at.setdefault(4, []).append(JobArrive('csu')); u.jobs_at.setdefault(10, []).append(u.lazy)
        P += [q, w, u, d]
    return P

def mega_kernel(a, name, opt, nph=8):
    P = phases(opt)[:nph]
    G.kname = name; G.kend = "L_kernel_end"
    kernel_header(a, name)
    l_end = a.newlab("end"); l_load = a.newlab("loader")
    a.e("s_cmp_ge_u32 s2, 256"); a.e("s_cbranch_scc1 %s" % l_end)
    load_kernargs(a)
    a.e("v_lshrrev_b32 v1, 6, v0")
    a.e("s_nop 0")
    a.e("v_readfirstlane_b32 %s, v1" % s(S_WAVE))
    if M.stamps: a.e("v_mov_b32 v255, 0")
    a.e("s_waitcnt lgkmcnt(0)")
    mk_srd(a, SRD_F, ('ws', WS_FLAG, FLAG_B))
    a.e("s_cmp_ge_u32 %s, 4" % s(S_WAVE))
    a.e("s_cbranch_scc1 %s" % l_load)
    cn = []; ln = []
    tstamp(a, "start", cn)
    if opt.get('early', True):
        map_8x4(a)
        a.e("s_add_u32 %s, %s, %s" % (s(S_T2), s(S_MT), s(S_NT))); a.e("s_and_b32 %s, %s, 15" % (s(S_T2), s(S_T2)))
        a.e("v_and_b32 v1, 63, v0")
        mk_srd(a, SRD_X, ('x', 0, ACT)); mk_srd(a, SRD_W, ('wqkv', 0, 1024 * 6144))
        lw = a.newlab("ew"); le = a.newlab("ee")
        a.e("s_cmp_ge_u32 %s, 2" % s(S_WAVE)); a.e("s_cbranch_scc1 %s" % lw)
        a.e("s_lshl_b32 %s, %s, 7" % (s(S_T0), s(S_MT))); a.e("s_lshl_b32 %s, %s, 6" % (s(S_T1), s(S_WAVE))); a.e("s_add_u32 %s, %s, %s" % (s(S_T0), s(S_T0), s(S_T1)))
        a.e("v_add_u32 v2, %s, v1" % s(S_T0)); a.e("v_lshlrev_b32 v2, 11, v2")
        a.e("s_lshl_b32 %s, %s, 7" % (s(S_T1), s(S_T2)))
        a.e("buffer_load_dword v253, v2, %s, %s offen sc1" % (s(SRD_X, 4), s(S_T1)))
        a.e("s_branch %s" % le)
        a.lab(lw)
        a.e("s_lshl_b32 %s, %s, 6" % (s(S_T0), s(S_T2)))
        a.e("v_add_u32 v2, %s, v1" % s(S_T0)); a.e("v_mul_u32_u24 v2, 6144, v2")
        a.e("s_sub_u32 %s, %s, 2" % (s(S_T1), s(S_WAVE))); a.e("s_lshl_b32 %s, %s, 11" % (s(S_T1), s(S_T1)))
        a.e("s_lshl_b32 %s, %s, 7" % (s(S_T0), s(S_NT))); a.e("s_add_u32 %s, %s, %s" % (s(S_T1), s(S_T1), s(S_T0)))
        a.e("buffer_load_dword v253, v2, %s, %s offen" % (s(SRD_W, 4), s(S_T1)))
        a.lab(le)
        a.e("s_lshl_b32 %s, %s, 6" % (s(S_T0), s(S_T2))); a.e("s_lshl_b32 %s, %s, 4" % (s(S_T1), s(S_WAVE))); a.e("s_add_u32 %s, %s, %s" % (s(S_T0), s(S_T0), s(S_T1)))
        a.e("v_lshrrev_b32 v2, 2, v1"); a.e("v_add_u32 v2, %s, v2" % s(S_T0)); a.e("v_mul_u32_u24 v2, 6144, v2")
        a.e("s_lshl_b32 %s, %s, 7" % (s(S_T1), s(S_NT))); a.e("s_add_u32 %s, %s, 4096" % (s(S_T1), s(S_T1)))
        a.e("buffer_load_dword v253, v2, %s, %s offen" % (s(SRD_W, 4), s(S_T1)))
    a.e("v_mov_b32 v1, %d" % L_CNT); a.e("v_mov_b32 v2, 0")
    a.e("ds_write_b32 v1, v2")
    for c in P:
        r = compute_main(a, c, cn)
        if c.kind == 'q': qkv_epi(a, c, r, c.L, cn)
        elif c.kind == 'r': resid_epi(a, c, r, cn)
        elif c.kind == 'k': dsk_epi(a, c, r, cn)
        else: w1_epi(a, c, r, c.L, cn)
    flush_stamps(a, 0)
    a.e("s_endpgm")
    a.lab(l_load)
    a.e("s_sub_u32 %s, %s, 4" % (s(S_WAVE), s(S_WAVE)))
    lr = LRegs(); R = Regs(1, 128)
    lr.vl = R.get(); lr.vt = R.get(); lr.vt2 = R.get(); lr.vx = R.get(4); lr.vw = R.get(7); lr.vr = R.get(4); lr.vp = R.get(2); lr.vpf = R.get(); lr.vd = R.get(); lr.vlz = R.get(); lr.vcs = R.get(); lr.vc16 = R.get(16, 4); lr.vs16 = R.get(16, 4); lr.vca = R.get(); lr.vpa = R.get(2, 2)
    a.e("v_and_b32 %s, 63, v0" % v(lr.vl))
    tstamp(a, "start", ln)
    loader_pre(a, P[0], lr)
    for i, c in enumerate(P):
        loader_main(a, c, lr, ln)
        tstamp(a, c.name + ".fin", ln)
        if G.bst and c.kind in 'rk': a.e("s_barrier")
        if i + 1 < len(P): loader_pre(a, P[i + 1], lr)
        if c.kind == 'u':
            a.e("s_barrier")
        if c.kind == 'q':
            a.e("s_barrier")
            skip = a.newlab("np")
            a.e("s_cmp_lg_u32 %s, 0" % s(S_WAVE)); a.e("s_cbranch_scc1 %s" % skip)
            def off(c=c):
                a.e("s_bfe_u32 %s, s2, 0x20001" % s(S_T5)); a.e("s_lshl_b32 %s, %s, 2" % (s(S_T5), s(S_T5)))
                a.e("s_lshr_b32 %s, s2, 6" % s(S_T3)); a.e("s_add_u32 %s, %s, %s" % (s(S_T5), s(S_T5), s(S_T3)))
                flag_off(a, F_K, c.L, S_T5)
            poll(a, off, 32, lr.vl, lr.vp, 0x200 + c.L)
            a.lab(skip)
            tstamp(a, c.name + ".kpolled", ln)
            a.e("s_barrier")
            a.e("s_barrier")
    flush_stamps(a, 1)
    a.lab(l_end)
    a.e("s_endpgm")
    a.lab("L_kernel_end")
    M.cn = cn; M.ln = ln

def p0_zero_flags(a):
    mk_srd(a, SRD_P, ('ws', WS_FLAG, FLAG_B))
    a.e("v_mov_b32 v110, 0")
    a.e("v_and_b32 v111, 63, v0"); a.e("v_lshlrev_b32 v111, 2, v111")
    a.e("s_lshl_b32 %s, s2, 8" % s(S_T0))
    a.e("buffer_store_dword v110, v111, %s, %s offen" % (s(SRD_P, 4), s(S_T0)))

def build(path, stamps=False, header="", opt=None, nph=8, filt=None, detail=False):
    opt = opt or {}
    M.stamps = stamps; M.filt = filt; M.detail = detail; M.itphase = opt.get('itphase')
    G.HP = opt.get('HP', 7168); G.XP = opt.get('XP', 2048); G.bst = opt.get('bst', True); G.stprio = opt.get('stprio', 1); G.schedk = opt.get('schedk', 0); G.pad = opt.get('pad', 0)
    global WS_X3
    reuse = opt.get('reuse', True)
    WS_H[1] = WS_H[0] if reuse else 82 * MB
    WS_O[1] = WS_O[0] if reuse else 20 * MB
    WS_XCH[1] = WS_XCH[0] if reuse else 110 * MB
    WS_X3 = WS_X1 if reuse else 10 * MB
    a = Asm()
    a.raw('.amdgcn_target "amdgcn-amd-amdhsa--gfx950"'); a.raw(".text")
    KN = "interleave_layers__linear_attn_block__dense_activation_silu__prompt_kernel"
    mega_kernel(a, KN, opt, nph)
    a.raw('.section .rodata,"a"')
    a.raw(kernel_desc(KN, 256, 102))
    launches = [(KN, 256, 512, LDS_TOTAL)]
    head = header + "; @launch grid=(256,1,1) block=(512,1,1) lds=%d\n" % LDS_TOTAL
    open(path, 'w').write(head + a.text())
    return launches

if __name__ == '__main__':
    ref = open('interleave_layers__linear_attn_block__dense_activation_silu__prompt.s.ref').read().split('\n')
    hdr = "\n".join(l for l in ref[:10] if l.startswith(';') and '@launch' not in l and 'Override' not in l and 'grid=ceil' not in l) + "\n"
    out = sys.argv[1] if len(sys.argv) > 1 else 'interleave_layers__linear_attn_block__dense_activation_silu__prompt.s'
    print(build(out, header=hdr))
```

```python
import sys; sys.path.insert(0, 'gen')
from core import *
import full
from full import pk, lane_col_off, p0_kernel, SC, MB, ACT, HB, KVP_B, ST_B, CS_B, LOG2E, NLOG2E, EPS6, EPS5

WS_X1 = 0; WS_X2 = 5 * MB; WS_X3 = 10 * MB
WS_O = [15 * MB, 20 * MB]; WS_H = [66 * MB, 82 * MB]; WS_KVP = [52 * MB, 56 * MB]
WS_ST = full.WS_ST; WS_CS = full.WS_CS
WS_ST = 60 * MB; WS_CS = 62 * MB; WS_FLAG = 63 * MB; WS_STAMP = 64 * MB
full.WS_ST = WS_ST; full.WS_CS = WS_CS
def stbuf(i): return ('ws', WS_ST + i * ST_B, ST_B)
FLAG_B = 1 << 20
CSQ = ('ws', WS_CS, 16 * 3072 * 4); CSU = ('ws', WS_CS + 262144, 16 * 3584 * 4)
CSQF = ('ws', WS_CS + 524288, 3072 * 4); CSUF = ('ws', WS_CS + 524288 + 16384, 3584 * 4)
F_C = 50
def foffc(): return 10 * 65536
F_K, F_O, F_X1, F_H, F_X = 0, 1, 2, 3, 4
def foff(kind, L): return (L * 5 + kind) * 65536

L_X7 = 131072; L_KVX = 122880; L_AEX = 122880; L_RES = 135168; L_STAT = 151552; L_CS = L_STAT + 3072; L_CNT = 155648; L_ORD = 155776; LDS_TOTAL = 155904
SRD_F = 88
SPIN_MAX = 400000

class G:
    d8 = True
    pad = 0
    schedk = 2
    stprio = 0
    bst = True
    HP = 7168
    XP = 2048

class M:
    stamps = False
    filt = None
    itphase = None
    dbgout = False
    dbgwg = 0
    detail = False

def tstamp(a, name, names, clk=False):
    if not M.stamps: return
    if M.filt and not M.filt(name): return
    i = len(names); names.append(name)
    assert i < 63
    a.e("s_memrealtime s[96:97]")
    if clk: a.e("s_memtime s[98:99]")
    a.e("s_waitcnt lgkmcnt(0)")
    a.e("v_writelane_b32 v255, s96, %d" % i)
    if clk:
        names.append(name + "#clk")
        a.e("v_writelane_b32 v255, s98, %d" % (i + 1))

def flush_stamps(a, role):
    if not M.stamps: return
    if M.dbgout:
        if role == 1: return
        sk = a.newlab("dbo")
        a.e("s_cmp_lg_u32 s2, %d" % M.dbgwg); a.e("s_cbranch_scc1 %s" % sk)
        a.e("s_cmp_lg_u32 %s, 0" % s(S_WAVE)); a.e("s_cbranch_scc1 %s" % sk)
        dbg_srd(a)
        a.e("v_readlane_b32 s96, v255, 0"); a.e("s_nop 3")
        a.e("v_subrev_u32 v255, s96, v255")
        a.e("v_and_b32 v1, 63, v0"); a.e("v_lshlrev_b32 v1, 2, v1")
        a.e("s_mov_b64 exec, 0xffff")
        a.e("buffer_store_dword v255, v1, %s, 0 offen" % s(SRD_Q, 4))
        a.e("s_mov_b64 exec, -1")
        a.lab(sk)
        return
    mk_srd(a, SRD_Q, ('ws', WS_STAMP, 256 * 8 * 256))
    a.e("s_lshl_b32 %s, s2, 11" % s(S_T0))
    a.e("s_add_u32 %s, %s, %d" % (s(S_T1), s(S_WAVE), 4 * role))
    a.e("s_lshl_b32 %s, %s, 8" % (s(S_T1), s(S_T1)))
    a.e("s_add_u32 %s, %s, %s" % (s(S_T0), s(S_T0), s(S_T1)))
    a.e("v_and_b32 v1, 63, v0"); a.e("v_lshlrev_b32 v1, 2, v1")
    a.e("buffer_store_dword v255, v1, %s, %s offen" % (s(SRD_Q, 4), s(S_T0)))

def poll(a, off_sreg_setup, nslots, vl, vt, code):
    off_sreg_setup()
    lab = a.newlab("poll"); done = a.newlab("polld")
    a.e("v_and_b32 %s, %d, %s" % (v(vt), nslots - 1, v(vl)))
    a.e("v_lshlrev_b32 %s, 7, %s" % (v(vt), v(vt)))
    a.e("s_mov_b32 %s, %d" % (s(S_T4), SPIN_MAX))
    a.lab(lab)
    a.e("buffer_load_dword %s, %s, %s, %s offen sc1" % (v(vt + 1), v(vt), s(SRD_F, 4), s(S_T3)))
    a.e("s_waitcnt vmcnt(0)")
    a.e("v_cmp_ne_u32 vcc, 0, %s" % v(vt + 1))
    a.e("s_cmp_eq_u64 vcc, -1")
    a.e("s_cbranch_scc1 %s" % done)
    a.e("s_sleep 1")
    a.e("s_sub_u32 %s, %s, 1" % (s(S_T4), s(S_T4)))
    a.e("s_cmp_lg_u32 %s, 0" % s(S_T4))
    a.e("s_cbranch_scc1 %s" % lab)
    a.e("s_mov_b32 %s, %s" % (s(SRD_Q), s(ptr('dbg')))); a.e("s_mov_b32 %s, %s" % (s(SRD_Q + 1), s(ptr('dbg') + 1)))
    a.e("s_mov_b32 %s, 256" % s(SRD_Q + 2)); a.e("s_mov_b32 %s, 0x20000" % s(SRD_Q + 3))
    a.e("v_mov_b32 %s, %d" % (v(vt + 1), code)); a.e("v_mov_b32 %s, 0" % v(vt))
    a.e("buffer_store_dword %s, %s, %s, 0 offen" % (v(vt + 1), v(vt), s(SRD_Q, 4)))
    a.lab(done)

def set_flag(a, off_setup, vt):
    off_setup()
    a.e("s_waitcnt vmcnt(0)")
    a.e("v_mov_b32 %s, 1" % v(vt)); a.e("v_mov_b32 %s, 0" % v(vt + 1))
    a.e("s_mov_b64 exec, 1")
    a.e("buffer_store_dword %s, %s, %s, %s offen sc1" % (v(vt), v(vt + 1), s(SRD_F, 4), s(S_T3)))
    a.e("s_mov_b64 exec, -1")

def set_flag_wg(a, off_setup, vt):
    sk = a.newlab("nf")
    a.e("s_waitcnt vmcnt(0)")
    a.e("v_mov_b32 %s, 1" % v(vt)); a.e("v_mov_b32 %s, %d" % (v(vt + 1), L_CNT))
    a.e("s_mov_b64 exec, 1")
    a.e("ds_add_rtn_u32 %s, %s, %s" % (v(vt + 1), v(vt + 1), v(vt)))
    a.e("s_waitcnt lgkmcnt(0)")
    a.e("v_readfirstlane_b32 %s, %s" % (s(S_T4), v(vt + 1)))
    a.e("s_and_b32 %s, %s, 3" % (s(S_T4), s(S_T4)))
    a.e("s_cmp_eq_u32 %s, 3" % s(S_T4)); a.e("s_cbranch_scc0 %s" % sk)
    off_setup()
    a.e("v_mov_b32 %s, 0" % v(vt + 1))
    a.e("buffer_store_dword %s, %s, %s, %s offen sc1" % (v(vt), v(vt + 1), s(SRD_F, 4), s(S_T3)))
    a.lab(sk)
    a.e("s_mov_b64 exec, -1")

def flag_off(a, kind, L, row_s, slot_expr=None):
    a.e("s_lshl_b32 %s, %s, 12" % (s(S_T3), s(row_s)))
    a.e("s_add_u32 %s, %s, %d" % (s(S_T3), s(S_T3), foff(kind, L)))
    if slot_expr: slot_expr()

class LRegs: pass

def loader_setup(a, c, lr):
    vl, vt, vt2 = lr.vl, lr.vt, lr.vt2
    vx, vw, vr = lr.vx, lr.vw, lr.vr
    c.map(a)
    mk_srd(a, SRD_X, c.xbuf); mk_srd(a, SRD_W, c.wbuf); mk_srd(a, SRD_R, c.tailbuf)
    a.e("s_lshl_b32 %s, %s, 4" % (s(S_T0), s(S_WAVE)))
    a.e("s_mul_i32 %s, %s, %d" % (s(S_T0), s(S_T0), c.w_pitch))
    wcol_base(a, c, S_T1, S_HALFOFF)
    a.e("s_add_u32 %s, %s, %s" % (s(S_T0), s(S_T0), s(S_T1)))
    a.e("v_lshrrev_b32 %s, 3, %s" % (v(vt), v(vl)))
    a.e("v_mul_u32_u24 %s, %d, %s" % (v(vt), c.w_pitch, v(vt)))
    a.e("v_add_u32 %s, %s, %s" % (v(vt), s(S_T0), v(vt)))
    for jj in range(2):
        a.e("v_lshrrev_b32 %s, 3, %s" % (v(vt2), v(vl)))
        a.e("v_and_b32 %s, 2, %s" % (v(vt2), v(vt2)))
        if jj: a.e("v_add_u32 %s, 4, %s" % (v(vt2), v(vt2)))
        a.e("v_xor_b32 %s, %s, %s" % (v(vt2), v(vl), v(vt2)))
        a.e("v_and_b32 %s, 7, %s" % (v(vt2), v(vt2)))
        for si in range(c.nfull):
            r = vw + 2 * si + jj
            a.e("v_lshl_add_u32 %s, %s, 4, %s" % (v(r), v(vt2), v(vt)))
            off = c.w_seg_bytes[si] + jj * (8 * c.w_pitch - 1024)
            if off: a.e("v_add_u32 %s, 0x%x, %s" % (v(r), off, v(r)))
    if c.nhalf:
        r = vw + 2 * c.nfull
        a.e("v_lshrrev_b32 %s, 2, %s" % (v(vt), v(vl)))
        a.e("v_mul_u32_u24 %s, %d, %s" % (v(vt), c.w_pitch, v(vt)))
        a.e("v_add_u32 %s, %s, %s" % (v(vt), s(S_T0), v(vt)))
        a.e("v_lshrrev_b32 %s, 4, %s" % (v(vt2), v(vl)))
        a.e("v_and_b32 %s, 2, %s" % (v(vt2), v(vt2)))
        a.e("v_xor_b32 %s, %s, %s" % (v(vt2), v(vl), v(vt2)))
        a.e("v_and_b32 %s, 3, %s" % (v(vt2), v(vt2)))
        a.e("v_lshl_add_u32 %s, %s, 4, %s" % (v(r), v(vt2), v(vt)))
        a.e("v_add_u32 %s, %s, %s" % (v(r), s(S_HALFOFF), v(r)))
    a.e("s_lshl_b32 %s, %s, 12" % (s(S_MX), s(S_WAVE)))
    for si in range(c.nfull):
        a.e("s_lshl_b32 %s, %s, 11" % (s(S_MS + si), s(S_WAVE)))
        a.e("s_add_u32 %s, %s, %d" % (s(S_MS + si), s(S_MS + si), c.XB + 8192 * si))
    if c.nhalf:
        a.e("s_lshl_b32 %s, %s, 10" % (s(S_MS + c.nfull), s(S_WAVE)))
        a.e("s_add_u32 %s, %s, %d" % (s(S_MS + c.nfull), s(S_MS + c.nfull), c.XB + 8192 * c.nfull))
    if c.rot:
        a.e("s_add_u32 %s, %s, %s" % (s(S_T0), s(S_MT), s(S_NT)))
        a.e("s_and_b32 %s, %s, 15" % (s(S_T0), s(S_T0)))
        a.e("s_lshl_b32 %s, %s, 7" % (s(S_XOFF), s(S_T0)))
        a.e("s_mul_i32 %s, %s, %d" % (s(S_WOFF), s(S_T0), 64 * c.w_pitch))
    elif getattr(c, 'splitk', False):
        a.e("s_mul_i32 %s, %s, %d" % (s(S_XOFF), s(S_KH), c.K * 2))
        a.e("s_mul_i32 %s, %s, %d" % (s(S_WOFF), s(S_KH), c.K * c.w_pitch))
    else:
        a.e("s_mov_b32 %s, 0" % s(S_XOFF)); a.e("s_mov_b32 %s, 0" % s(S_WOFF))

def issueW(a, c, lr, slot):
    def m0(sreg):
        if slot is None: a.e("s_add_u32 m0, %s, %s" % (s(S_SLOT), s(sreg)))
        else: a.e("s_add_u32 m0, %s, %d" % (s(sreg), slot * c.STG))
        a.e("s_nop 0")
    for si in range(c.nfull):
        m0(S_MS + si)
        for jj in range(2):
            a.e("buffer_load_dwordx4 %s, %s, %s offen offset:%d%s lds" % (v(lr.vw + 2 * si + jj), s(SRD_W, 4), s(S_WOFF), 1024 * jj, c.wflags))
    if c.nhalf:
        m0(S_MS + c.nfull)
        a.e("buffer_load_dwordx4 %s, %s, %s offen%s lds" % (v(lr.vw + 2 * c.nfull), s(SRD_W, 4), s(S_WOFF), c.wflags))
    a.e("s_add_u32 %s, %s, %d" % (s(S_WOFF), s(S_WOFF), 64 * c.w_pitch))
    if c.rot:
        a.e("s_cmp_eq_u32 %s, %d" % (s(S_WOFF), c.K * c.w_pitch))
        a.e("s_cselect_b32 %s, 0, %s" % (s(S_WOFF), s(S_WOFF)))

def issueX(a, c, lr, slot):
    if slot is None: a.e("s_add_u32 m0, %s, %s" % (s(S_SLOT), s(S_MX)))
    else: a.e("s_add_u32 m0, %s, %d" % (s(S_MX), slot * c.STG))
    a.e("s_nop 0")
    for j in range(4):
        a.e("buffer_load_dwordx4 %s, %s, %s offen offset:%d%s lds" % (v(lr.vx + j), s(SRD_X, 4), s(S_XOFF), 1024 * j, c.xflags))
    a.e("s_add_u32 %s, %s, 128" % (s(S_XOFF), s(S_XOFF)))
    if c.rot:
        a.e("s_cmp_eq_u32 %s, %d" % (s(S_XOFF), c.K * 2))
        a.e("s_cselect_b32 %s, 0, %s" % (s(S_XOFF), s(S_XOFF)))

class Job:
    nops = 1
    def setup(self, a, c, lr): pass
    def emit(self, a, c, lr): pass

class JobXW(Job):
    def setup(self, a, c, lr):
        vp = lr.vpf; vt = lr.vt; vl = lr.vl
        lx = a.newlab("jx"); le = a.newlab("je")
        a.e("s_cmp_ge_u32 %s, 2" % s(S_WAVE)); a.e("s_cbranch_scc0 %s" % lx)
        for i in range(4): a.e("s_mov_b32 %s, %s" % (s(SRD_P + i), s(SRD_W + i)))
        a.e("s_bfe_u32 %s, s2, 0x20003" % s(S_T0))
        a.e("s_lshl_b32 %s, %s, 4" % (s(S_T0), s(S_T0)))
        a.e("s_sub_u32 %s, %s, 2" % (s(S_T1), s(S_WAVE)))
        a.e("s_lshl_b32 %s, %s, 8" % (s(S_T1), s(S_T1)))
        a.e("s_add_u32 %s, %s, %s" % (s(S_T0), s(S_T0), s(S_T1)))
        a.e("s_add_u32 %s, %s, %d" % (s(S_T0), s(S_T0), c.NS * 64))
        a.e("v_lshrrev_b32 %s, 4, %s" % (v(vt), v(vl)))
        a.e("v_lshlrev_b32 %s, 6, %s" % (v(vt), v(vt)))
        a.e("v_and_b32 %s, 15, %s" % (v(vp), v(vl)))
        a.e("v_add_u32 %s, %s, %s" % (v(vp), v(vp), v(vt)))
        a.e("v_add_u32 %s, %s, %s" % (v(vp), s(S_T0), v(vp)))
        a.e("v_mul_u32_u24 %s, %d, %s" % (v(vp), c.w_pitch, v(vp)))
        a.e("s_lshl_b32 %s, %s, 7" % (s(S_T0), s(S_NT)))
        a.e("v_add_u32 %s, %s, %s" % (v(vp), s(S_T0), v(vp)))
        a.e("s_mov_b32 %s, %d" % (s(S_PFINC), 8 * 64 * c.w_pitch))
        a.e("s_branch %s" % le)
        a.lab(lx)
        for i in range(4): a.e("s_mov_b32 %s, %s" % (s(SRD_P + i), s(SRD_X + i)))
        a.e("s_lshr_b32 %s, s2, 5" % s(S_T0))
        a.e("s_lshl_b32 %s, %s, 4" % (s(S_T0), s(S_T0)))
        a.e("s_lshl_b32 %s, %s, 7" % (s(S_T1), s(S_MT)))
        a.e("s_add_u32 %s, %s, %s" % (s(S_T0), s(S_T0), s(S_T1)))
        a.e("v_and_b32 %s, 15, %s" % (v(vp), v(vl)))
        a.e("v_add_u32 %s, %s, %s" % (v(vp), s(S_T0), v(vp)))
        a.e("v_mul_u32_u24 %s, %d, %s" % (v(vp), c.x_pitch, v(vp)))
        a.e("v_lshrrev_b32 %s, 4, %s" % (v(vt), v(vl)))
        a.e("s_lshl_b32 %s, %s, 2" % (s(S_T0), s(S_WAVE)))
        a.e("v_add_u32 %s, %s, %s" % (v(vt), s(S_T0), v(vt)))
        a.e("v_lshl_add_u32 %s, %s, 7, %s" % (v(vp), v(vt), v(vp)))
        a.e("s_mov_b32 %s, %d" % (s(S_PFINC), 8 * 128))
        a.lab(le)
        a.e("s_mov_b32 %s, 0" % s(S_PFOFF))
    def emit(self, a, c, lr):
        a.e("buffer_load_dword %s, %s, %s, %s offen sc1" % (v(lr.vd), v(lr.vpf), s(SRD_P, 4), s(S_PFOFF)))
        a.e("s_add_u32 %s, %s, %s" % (s(S_PFOFF), s(S_PFOFF), s(S_PFINC)))

class JobWbulk(Job):
    nops = 2
    def setup(self, a, c, lr): pass
    def emit(self, a, c, lr):
        vp = lr.vpf; vt = lr.vt; vl = lr.vl
        a.e("s_bfe_u32 %s, s2, 0x30003" % s(S_T0))
        a.e("s_lshl_b32 %s, %s, 7" % (s(S_T0), s(S_T0)))
        a.e("s_lshl_b32 %s, %s, 5" % (s(S_T1), s(S_WAVE)))
        a.e("s_add_u32 %s, %s, %s" % (s(S_T0), s(S_T0), s(S_T1)))
        a.e("v_and_b32 %s, 31, %s" % (v(vp), v(vl)))
        a.e("v_add_u32 %s, %s, %s" % (v(vp), s(S_T0), v(vp)))
        a.e("v_mul_u32_u24 %s, %d, %s" % (v(vp), c.w_pitch, v(vp)))
        wcol_base(a, c, S_T0, S_HALFOFF)
        a.e("v_add_u32 %s, %s, %s" % (v(vp), s(S_T0), v(vp)))
        step = c.w_seg_bytes[1]
        a.e("v_lshrrev_b32 %s, 5, %s" % (v(vt), v(vl)))
        a.e("v_mul_u32_u24 %s, %d, %s" % (v(vt), step, v(vt)))
        a.e("v_add_u32 %s, %s, %s" % (v(vt), v(vt), v(vp)))
        a.e("buffer_load_dword %s, %s, %s, 0 offen" % (v(lr.vd), v(vt), s(SRD_W, 4)))
        if c.nhalf:
            a.e("v_lshrrev_b32 %s, 5, %s" % (v(vt), v(vl)))
            a.e("s_sub_u32 %s, %s, %d" % (s(S_T0), s(S_HALFOFF), 2 * step))
            a.e("v_mul_lo_u32 %s, %s, %s" % (v(vt), v(vt), s(S_T0)))
            a.e("v_add_u32 %s, %s, %s" % (v(vt), v(vt), v(vp)))
            a.e("v_add_u32 %s, %d, %s" % (v(vt), 2 * step, v(vt)))
        else:
            a.e("v_add_u32 %s, %d, %s" % (v(vt), 2 * step, v(vp)))
        a.e("buffer_load_dword %s, %s, %s, 0 offen" % (v(lr.vd), v(vt), s(SRD_W, 4)))

class JobWbulkO(Job):
    def emit(self, a, c, lr):
        vp = lr.vpf
        a.e("s_bfe_u32 %s, s2, 0x20003" % s(S_T0)); a.e("s_lshl_b32 %s, %s, 8" % (s(S_T0), s(S_T0)))
        a.e("s_lshl_b32 %s, %s, 6" % (s(S_T1), s(S_WAVE))); a.e("s_add_u32 %s, %s, %s" % (s(S_T0), s(S_T0), s(S_T1)))
        a.e("v_add_u32 %s, %s, %s" % (v(vp), s(S_T0), v(lr.vl)))
        a.e("v_lshlrev_b32 %s, 11, %s" % (v(vp), v(vp)))
        a.e("s_lshl_b32 %s, %s, 7" % (s(S_T0), s(S_NT)))
        a.e("buffer_load_dword %s, %s, %s, %s offen" % (v(lr.vd), v(vp), s(SRD_W, 4), s(S_T0)))

class JobWarm(Job):
    def __init__(self, buf, per_wave, shift): self.buf = buf; self.pw = per_wave; self.shift = shift
    def emit(self, a, c, lr):
        vt = lr.vt; vl = lr.vl
        mk_srd(a, SRD_P, self.buf)
        a.e("s_lshl_b32 %s, s2, 2" % s(S_T0)); a.e("s_add_u32 %s, %s, %s" % (s(S_T0), s(S_T0), s(S_WAVE)))
        a.e("s_mul_i32 %s, %s, %d" % (s(S_T0), s(S_T0), self.pw * 128))
        a.e("v_lshrrev_b32 %s, %d, %s" % (v(vt), self.shift, v(vl)))
        a.e("v_min_u32 %s, %d, %s" % (v(vt), self.pw - 1, v(vt)))
        a.e("v_lshlrev_b32 %s, 7, %s" % (v(vt), v(vt)))
        a.e("buffer_load_dword %s, %s, %s, %s offen" % (v(lr.vd), v(vt), s(SRD_P, 4), s(S_T0)))

class JobCond(Job):
    nops = 0
    def __init__(self, jobs, g): self.jobs = jobs; self.g = g
    def __eq__(self, o): return self is o
    def __hash__(self): return id(self)
    def emit(self, a, c, lr):
        sk = a.newlab("jc")
        a.e("s_bfe_u32 %s, s2, 0x30003" % s(S_T0)); a.e("s_cmp_lg_u32 %s, %d" % (s(S_T0), self.g)); a.e("s_cbranch_scc1 %s" % sk)
        for j in self.jobs: j.emit(a, c, lr)
        a.lab(sk)

class JobIfNt(Job):
    nops = 0
    def __init__(self, job, mask, val): self.job = job; self.mask = mask; self.val = val
    def emit(self, a, c, lr):
        sk = a.newlab("jn")
        a.e("s_and_b32 %s, %s, %d" % (s(S_T0), s(S_NT), self.mask)); a.e("s_cmp_lg_u32 %s, %d" % (s(S_T0), self.val)); a.e("s_cbranch_scc1 %s" % sk)
        self.job.emit(a, c, lr)
        a.lab(sk)

def dbg_srd(a):
    a.e("s_mov_b32 %s, %s" % (s(SRD_Q), s(ptr('dbg')))); a.e("s_mov_b32 %s, %s" % (s(SRD_Q + 1), s(ptr('dbg') + 1)))
    a.e("s_mov_b32 %s, 256" % s(SRD_Q + 2)); a.e("s_mov_b32 %s, 0x20000" % s(SRD_Q + 3))

class JobCode(Job):
    NL = 5
    def emit(self, a, c, lr):
        lab = a.newlab("pc")
        a.e("s_getpc_b64 s[96:97]")
        a.lab(lab)
        a.e("s_sub_u32 s96, s96, %s-%s" % (lab, G.kname)); a.e("s_subb_u32 s97, s97, 0")
        a.e("s_lshr_b32 %s, s2, 3" % s(S_T0)); a.e("s_lshl_b32 %s, %s, 2" % (s(S_T0), s(S_T0)))
        a.e("s_add_u32 %s, %s, %s" % (s(S_T0), s(S_T0), s(S_WAVE))); a.e("s_mul_i32 %s, %s, %d" % (s(S_T0), s(S_T0), self.NL))
        a.e("v_min_u32 %s, %d, %s" % (v(lr.vt), self.NL - 1, v(lr.vl)))
        a.e("v_add_u32 %s, %s, %s" % (v(lr.vt), s(S_T0), v(lr.vt)))
        a.e("v_lshlrev_b32 %s, 7, %s" % (v(lr.vt), v(lr.vt)))
        a.e("v_min_u32 %s, %s-%s-4, %s" % (v(lr.vt), G.kend, G.kname, v(lr.vt)))
        a.e("v_mov_b32 %s, s97" % v(lr.vpa + 1))
        a.e("v_add_co_u32 %s, vcc, s96, %s" % (v(lr.vpa), v(lr.vt)))
        a.e("v_addc_co_u32 %s, vcc, 0, %s, vcc" % (v(lr.vpa + 1), v(lr.vpa + 1)))
        a.e("s_mov_b64 exec, 0x%x" % ((1 << self.NL) - 1))
        a.e("global_load_dword %s, %s, off" % (v(lr.vd), v(lr.vpa, 2)))
        a.e("s_mov_b64 exec, -1")

class JobZero(Job):
    def emit(self, a, c, lr):
        z = lr.vc16
        for i in range(4): a.e("v_mov_b32 %s, 0" % v(z + i))
        a.e("v_lshlrev_b32 %s, 4, %s" % (v(lr.vt), v(lr.vl)))
        a.e("s_lshl_b32 %s, s2, 2" % s(S_T0)); a.e("s_add_u32 %s, %s, %s" % (s(S_T0), s(S_T0), s(S_WAVE)))
        a.e("s_lshl_b32 %s, %s, 10" % (s(S_T0), s(S_T0)))
        a.e("buffer_store_dwordx4 %s, %s, %s, %s offen sc1" % (v(z, 4), v(lr.vt), s(SRD_F, 4), s(S_T0)))

class JobArrive(Job):
    def __init__(self, kind): self.kind = kind
    def emit(self, a, c, lr):
        l0 = a.newlab("ar0"); l1 = a.newlab("ar1")
        a.e("s_cmp_eq_u32 %s, 0" % s(S_WAVE)); a.e("s_cbranch_scc1 %s" % l0)
        a.e("v_mov_b32 %s, 0" % v(lr.vt))
        a.e("buffer_load_dword %s, %s, %s, 0 offen sc1" % (v(lr.vd), v(lr.vt), s(SRD_F, 4)))
        a.e("s_branch %s" % l1)
        a.lab(l0)
        a.e("v_mov_b32 %s, 1" % v(lr.vt2))
        if self.kind == 'init':
            dbg_srd(a)
            a.e("s_and_b32 %s, s2, 31" % s(S_T0)); a.e("s_lshl_b32 %s, %s, 2" % (s(S_T0), s(S_T0))); a.e("s_add_u32 %s, %s, 128" % (s(S_T0), s(S_T0)))
            a.e("v_mov_b32 %s, 0" % v(lr.vt))
            a.e("s_mov_b64 exec, 1")
            a.e("buffer_atomic_add %s, %s, %s, %s offen sc1" % (v(lr.vt2), v(lr.vt), s(SRD_Q, 4), s(S_T0)))
        else:
            a.e("s_lshl_b32 %s, %s, 8" % (s(S_T0), s(S_NT))); a.e("s_lshl_b32 %s, %s, 2" % (s(S_T1), s(S_MT)))
            a.e("s_add_u32 %s, %s, %s" % (s(S_T0), s(S_T0), s(S_T1))); a.e("s_add_u32 %s, %s, %d" % (s(S_T0), s(S_T0), foffc()))
            a.e("v_mov_b32 %s, 0" % v(lr.vt))
            a.e("s_mov_b64 exec, 1")
            a.e("buffer_store_dword %s, %s, %s, %s offen sc1" % (v(lr.vt2), v(lr.vt), s(SRD_F, 4), s(S_T0)))
        a.e("s_mov_b64 exec, -1")
        a.lab(l1)

class JobLazy(Job):
    def __init__(self, kind): self.kind = kind
    def addr(self, a, c, lr):
        if self.kind == 'init':
            dbg_srd(a)
            a.e("v_and_b32 %s, 31, %s" % (v(lr.vt), v(lr.vl))); a.e("v_lshlrev_b32 %s, 2, %s" % (v(lr.vt), v(lr.vt)))
            a.e("s_mov_b32 %s, 128" % s(S_T3))
            return SRD_Q
        a.e("v_and_b32 %s, 15, %s" % (v(lr.vt), v(lr.vl))); a.e("v_lshlrev_b32 %s, 2, %s" % (v(lr.vt), v(lr.vt)))
        a.e("s_lshl_b32 %s, %s, 8" % (s(S_T3), s(S_NT))); a.e("s_add_u32 %s, %s, %d" % (s(S_T3), s(S_T3), foffc()))
        return SRD_F
    def emit(self, a, c, lr):
        srd = self.addr(a, c, lr)
        a.e("buffer_load_dword %s, %s, %s, %s offen sc1" % (v(lr.vlz), v(lr.vt), s(srd, 4), s(S_T3)))
    def ok_cmp(self, a, lr, reg):
        if self.kind == 'init': a.e("v_cmp_le_u32 vcc, 8, %s" % v(reg))
        else: a.e("v_cmp_ne_u32 vcc, 0, %s" % v(reg))
    def check(self, a, c, lr):
        done = a.newlab("lzd"); lab = a.newlab("lzs")
        self.ok_cmp(a, lr, lr.vlz)
        a.e("s_cmp_eq_u64 vcc, -1"); a.e("s_cbranch_scc1 %s" % done)
        srd = self.addr(a, c, lr)
        a.e("s_mov_b32 %s, %d" % (s(S_T4), SPIN_MAX))
        a.lab(lab)
        a.e("buffer_load_dword %s, %s, %s, %s offen sc1" % (v(lr.vlz), v(lr.vt), s(srd, 4), s(S_T3)))
        a.e("s_waitcnt vmcnt(0)")
        self.ok_cmp(a, lr, lr.vlz)
        a.e("s_cmp_eq_u64 vcc, -1"); a.e("s_cbranch_scc1 %s" % done)
        a.e("s_sleep 1")
        a.e("s_sub_u32 %s, %s, 1" % (s(S_T4), s(S_T4))); a.e("s_cmp_lg_u32 %s, 0" % s(S_T4)); a.e("s_cbranch_scc1 %s" % lab)
        dbg_srd(a)
        a.e("v_mov_b32 %s, 0x300" % v(lr.vlz)); a.e("v_mov_b32 %s, 252" % v(lr.vt))
        a.e("buffer_store_dword %s, %s, %s, 0 offen" % (v(lr.vlz), v(lr.vt), s(SRD_Q, 4)))
        a.lab(done)

def cs_base(a, c):
    if c.nhalf == 0:
        a.e("s_lshl_b32 %s, %s, 12" % (s(S_T0), s(S_WAVE))); a.e("s_lshl_b32 %s, %s, 8" % (s(S_T1), s(S_NT)))
        a.e("s_add_u32 %s, %s, %s" % (s(S_T0), s(S_T0), s(S_T1)))
        a.e("s_min_u32 %s, %s, %d" % (s(S_T0), s(S_T0), 3008 * 4))
    else:
        wcol_base(a, c, S_T0, S_HALFOFF)
        a.e("s_lshl_b32 %s, %s, 7" % (s(S_T1), s(S_WAVE)))
        a.e("s_cmp_eq_u32 %s, 3" % s(S_WAVE)); a.e("s_cselect_b32 %s, %s, %s" % (s(S_T1), s(S_HALFOFF), s(S_T1)))
        a.e("s_add_u32 %s, %s, %s" % (s(S_T0), s(S_T0), s(S_T1))); a.e("s_lshl_b32 %s, %s, 1" % (s(S_T0), s(S_T0)))

def cs_loads(a, c, lr):
    t = lr.vt; u = lr.vt2
    mk_srd(a, SRD_P, ((CSU if c.nhalf else CSQ) if c.L == 0 else (CSUF if c.nhalf else CSQF)))
    cs_base(a, c)
    a.e("v_and_b32 %s, 15, %s" % (v(t), v(lr.vl))); a.e("v_lshlrev_b32 %s, 4, %s" % (v(t), v(t)))
    a.e("v_add_u32 %s, %s, %s" % (v(lr.vca), s(S_T0), v(t)))
    if c.L == 1:
        a.e("buffer_load_dwordx4 %s, %s, %s, 0 offen sc1" % (v(lr.vc16, 4), v(lr.vca), s(SRD_P, 4)))
        return
    stride = (3584 if c.nhalf else 3072) * 4
    a.e("v_lshrrev_b32 %s, 4, %s" % (v(u), v(lr.vl)))
    a.e("v_mul_u32_u24 %s, %d, %s" % (v(u), 4 * stride, v(u)))
    a.e("v_add_u32 %s, %s, %s" % (v(t), v(lr.vca), v(u)))
    a.e("s_mov_b32 %s, 0" % s(S_T0))
    for i in range(4):
        a.e("buffer_load_dwordx4 %s, %s, %s, %s offen sc1" % (v(lr.vc16 + 4 * i, 4), v(t), s(SRD_P, 4), s(S_T0)))
        if i < 3: a.e("s_add_u32 %s, %s, %d" % (s(S_T0), s(S_T0), stride))

def st_loads(a, c, lr):
    mk_srd(a, SRD_R, c.tailbuf)
    t = lr.vt; u = lr.vt2
    a.e("v_and_b32 %s, 0xff, v0" % v(u))
    a.e("v_lshrrev_b32 %s, 1, %s" % (v(t), v(u)))
    a.e("v_lshlrev_b32 %s, 3, %s" % (v(t), v(t)))
    a.e("v_and_b32 %s, 1, %s" % (v(u), v(u)))
    a.e("v_lshl_add_u32 %s, %s, 17, %s" % (v(t), v(u), v(t)))
    a.e("s_lshl_b32 %s, %s, 10" % (s(S_T0), s(S_MT)))
    for i in range(8):
        a.e("buffer_load_dwordx2 %s, %s, %s, %s offen sc1" % (v(lr.vs16 + 2 * i, 2), v(t), s(SRD_R, 4), s(S_T0)))
        if i < 7: a.e("s_add_u32 %s, %s, 16384" % (s(S_T0), s(S_T0)))

def st_finish(a, c, lr):
    D = lr.vs16; S = lr.vs16 + 4; t = lr.vt
    for st in (4, 2, 1):
        for i in range(st):
            a.e("v_add_f32 %s, %s, %s" % (v(D + 2 * i), v(D + 2 * i), v(D + 2 * (i + st))))
            a.e("v_add_f32 %s, %s, %s" % (v(D + 2 * i + 1), v(D + 2 * i + 1), v(D + 2 * (i + st) + 1)))
    for i in range(2):
        a.e("v_add_f32_dpp %s, %s, %s quad_perm:[1,0,3,2] row_mask:0xf bank_mask:0xf" % (v(D + i), v(D + i), v(D + i)))
    a.e("v_mul_f32 %s, 0xba800000, %s" % (v(S), v(D)))
    a.e("v_mul_f32 %s, 0x3a800000, %s" % (v(S + 1), v(D + 1)))
    a.e("v_fma_f32 %s, -%s, %s, %s" % (v(S + 1), v(S), v(S), v(S + 1)))
    a.e("v_max_f32 %s, 0, %s" % (v(S + 1), v(S + 1)))
    a.e("v_add_f32 %s, 0x%x, %s" % (v(S + 1), EPS5, v(S + 1)))
    a.e("v_rsq_f32 %s, %s" % (v(S + 2), v(S + 1)))
    a.e("v_and_b32 %s, 0xfe, v0" % v(t))
    a.e("v_lshlrev_b32 %s, 1, %s" % (v(t), v(t)))
    a.e("v_add_u32 %s, %d, %s" % (v(t), L_STAT, v(t)))
    a.e("ds_write_b32 %s, %s" % (v(t), v(S)))
    if c.kind == 'q':
        a.e("ds_write_b32 %s, %s offset:512" % (v(t), v(S + 2)))
    else:
        a.e("v_sqrt_f32 %s, %s" % (v(S + 3), v(S + 1)))
        a.e("v_mul_f32 %s, 0x%x, %s" % (v(S + 2), NLOG2E, v(S + 2)))
        a.e("ds_write_b32 %s, %s offset:512" % (v(t), v(S + 2)))
        a.e("ds_write_b32 %s, %s offset:1024" % (v(t), v(S + 3)))

def cs_finish(a, c, lr):
    D = lr.vc16
    if c.L == 0:
        for i in range(4):
            a.e("v_add_f32 %s, %s, %s" % (v(D + i), v(D + i), v(D + 4 + i))); a.e("v_add_f32 %s, %s, %s" % (v(D + 8 + i), v(D + 8 + i), v(D + 12 + i)))
        for i in range(4): a.e("v_add_f32 %s, %s, %s" % (v(D + i), v(D + i), v(D + 8 + i)))
        for sw in ("v_permlane16_swap_b32", "v_permlane32_swap_b32"):
            for i in range(4): a.e("v_mov_b32 %s, %s" % (v(D + 4 + i), v(D + i)))
            for i in range(4): a.e("%s %s, %s" % (sw, v(D + 4 + i), v(D + i)))
            for i in range(4): a.e("v_add_f32 %s, %s, %s" % (v(D + i), v(D + i), v(D + 4 + i)))
    a.e("v_and_b32 %s, 15, %s" % (v(lr.vt), v(lr.vl))); a.e("v_lshlrev_b32 %s, 4, %s" % (v(lr.vt), v(lr.vt)))
    a.e("s_lshl_b32 %s, %s, 8" % (s(S_T0), s(S_WAVE))); a.e("s_add_u32 %s, %s, %d" % (s(S_T0), s(S_T0), L_CS))
    a.e("v_add_u32 %s, %s, %s" % (v(lr.vt), s(S_T0), v(lr.vt)))
    a.e("ds_write_b128 %s, %s" % (v(lr.vt), v(D, 4)))
    if c.L == 0:
        sk = a.newlab("csf")
        a.e("s_cmp_lg_u32 %s, 0" % s(S_MT)); a.e("s_cbranch_scc1 %s" % sk)
        mk_srd(a, SRD_P, CSUF if c.nhalf else CSQF)
        a.e("s_mov_b32 %s, 0xffff" % s(S_T0)); a.e("s_mov_b32 %s, 0x%x" % (s(S_T1), 0xff if c.nhalf else 0))
        a.e("s_cmp_eq_u32 %s, 3" % s(S_WAVE)); a.e("s_cselect_b32 %s, %s, %s" % (s(S_T0), s(S_T1), s(S_T0)))
        a.e("s_cmp_eq_u32 %s, 0" % s(S_T0)); a.e("s_cbranch_scc1 %s" % sk)
        a.e("s_mov_b32 exec_lo, %s" % s(S_T0)); a.e("s_mov_b32 exec_hi, 0")
        a.e("buffer_store_dwordx4 %s, %s, %s, 0 offen sc1" % (v(D, 4), v(lr.vca), s(SRD_P, 4)))
        a.e("s_mov_b64 exec, -1")
        a.lab(sk)

S_PFOFF = 100; S_PFINC = 101
S_NRDY = 87; S_PPOS = 100

def loader_pre(a, c, lr):
    loader_setup(a, c, lr)
    if not c.nopre:
        for st in range(c.NS): issueW(a, c, lr, st)
    for jb in c.jobs_pre: jb.emit(a, c, lr)
    x_voffsets(a, c, lr.vl, lr.vt, lr.vt2, lr.vx, c.x_pitch)
    if getattr(c, 'splitk', False):
        def rb(a):
            a.e("s_lshl_b32 %s, %s, 7" % (s(S_T0), s(S_MT)))
            a.e("s_and_b32 %s, %s, 1" % (s(S_T1), s(S_WAVE))); a.e("s_lshl_b32 %s, %s, 6" % (s(S_T1), s(S_T1)))
            a.e("s_add_u32 %s, %s, %s" % (s(S_T0), s(S_T0), s(S_T1)))
            a.e("s_lshl_b32 %s, %s, 5" % (s(S_T1), s(S_KH))); a.e("s_add_u32 %s, %s, %s" % (s(S_T0), s(S_T0), s(S_T1)))
        x_voffsets(a, c, lr.vl, lr.vt, lr.vt2, lr.vr, c.tail_pitch, rowbase=rb)
    elif c.tail_pitch:
        x_voffsets(a, c, lr.vl, lr.vt, lr.vt2, lr.vr, c.tail_pitch)
    elif not c.cs:
        a.e("s_lshl_b32 %s, %s, 16" % (s(S_T0), s(S_WAVE)))
        a.e("v_lshlrev_b32 %s, 4, %s" % (v(lr.vt), v(lr.vl)))
        a.e("v_add_u32 %s, %s, %s" % (v(lr.vt), s(S_T0), v(lr.vt)))
        for j in range(4):
            a.e("v_add_u32 %s, %d, %s" % (v(lr.vr + j), j * (16384 - 1024), v(lr.vt)))
    if c.win: c.win.setup(a, c, lr)

def dyn_start(a, c, lr):
    kind, L = c.inflag
    t = lr.vp; f = lr.vp + 1
    flag_off(a, kind, L, S_MT)
    a.e("v_and_b32 %s, 15, %s" % (v(t), v(lr.vl))); a.e("v_lshlrev_b32 %s, 7, %s" % (v(t), v(t)))
    a.e("s_mov_b32 %s, %d" % (s(S_T4), SPIN_MAX))
    lab = a.newlab("dp"); done = a.newlab("dpd")
    a.lab(lab)
    a.e("buffer_load_dword %s, %s, %s, %s offen sc1" % (v(f), v(t), s(SRD_F, 4), s(S_T3)))
    a.e("s_waitcnt vmcnt(0)")
    a.e("v_cmp_ne_u32 vcc, 0, %s" % v(f))
    a.e("s_and_b32 %s, vcc_lo, 0xffff" % s(S_T0))
    if c.dyn == 'pair':
        a.e("s_lshr_b32 %s, %s, 1" % (s(S_T1), s(S_T0))); a.e("s_and_b32 %s, %s, %s" % (s(S_T0), s(S_T0), s(S_T1)))
        a.e("s_and_b32 %s, %s, 0x5555" % (s(S_T0), s(S_T0))); a.e("s_lshl_b32 %s, %s, 1" % (s(S_T1), s(S_T0))); a.e("s_or_b32 %s, %s, %s" % (s(S_T0), s(S_T0), s(S_T1)))
    a.e("s_bcnt1_i32_b32 %s, %s" % (s(S_T1), s(S_T0)))
    a.e("s_cmp_ge_u32 %s, %d" % (s(S_T1), c.dynT)); a.e("s_cbranch_scc1 %s" % done)
    a.e("s_sleep 1")
    a.e("s_sub_u32 %s, %s, 1" % (s(S_T4), s(S_T4))); a.e("s_cmp_lg_u32 %s, 0" % s(S_T4)); a.e("s_cbranch_scc1 %s" % lab)
    dbg_srd(a)
    a.e("v_mov_b32 %s, 0x500" % v(f)); a.e("v_mov_b32 %s, 0" % v(t))
    a.e("buffer_store_dword %s, %s, %s, 0 offen" % (v(f), v(t), s(SRD_Q, 4)))
    a.lab(done)
    x = lr.vt; y = lr.vt2
    a.e("v_and_b32 %s, 15, %s" % (v(t), v(lr.vl)))
    a.e("v_lshlrev_b32 %s, %s, 1" % (v(x), v(t)) if False else "v_mov_b32 %s, 1" % v(x))
    a.e("v_lshlrev_b32 %s, %s, %s" % (v(x), v(t), v(x)))
    a.e("v_add_u32 %s, -1, %s" % (v(x), v(x)))
    a.e("v_and_b32 %s, %s, %s" % (v(y), s(S_T0), v(x)))
    a.e("v_bcnt_u32_b32 %s, %s, 0" % (v(y), v(y)))
    a.e("s_not_b32 %s, %s" % (s(S_T2), s(S_T0)))
    a.e("v_and_b32 %s, %s, %s" % (v(x), s(S_T2), v(x)))
    a.e("v_bcnt_u32_b32 %s, %s, %s" % (v(x), v(x), s(S_T1)))
    a.e("v_lshrrev_b32 %s, %s, %s" % (v(f), v(t), s(S_T0)) if False else "v_mov_b32 %s, %s" % (v(f), s(S_T0)))
    a.e("v_lshrrev_b32 %s, %s, %s" % (v(f), v(t), v(f)))
    a.e("v_and_b32 %s, 1, %s" % (v(f), v(f)))
    a.e("v_cmp_ne_u32 vcc, 0, %s" % v(f))
    a.e("v_cndmask_b32 %s, %s, %s, vcc" % (v(x), v(x), v(y)))
    a.e("v_lshlrev_b32 %s, 2, %s" % (v(x), v(x))); a.e("v_add_u32 %s, %d, %s" % (v(x), L_ORD, v(x)))
    a.e("ds_write_b32 %s, %s" % (v(x), v(t)))
    a.e("s_min_u32 %s, %s, 11" % (s(S_T2), s(S_T1)))
    a.e("s_cmp_eq_u32 %s, 16" % s(S_T1)); a.e("s_cselect_b32 %s, 16, %s" % (s(S_T1), s(S_T2)))
    a.e("v_mov_b32 %s, %s" % (v(f), s(S_T1))); a.e("v_mov_b32 %s, %d" % (v(x), L_ORD + 64))
    a.e("ds_write_b32 %s, %s" % (v(x), v(f)))
    a.e("s_waitcnt lgkmcnt(0)")

def dyn_fetch(a, c, lr):
    a.e("v_and_b32 %s, 15, %s" % (v(lr.vt), v(lr.vl))); a.e("v_lshlrev_b32 %s, 2, %s" % (v(lr.vt), v(lr.vt)))
    a.e("v_add_u32 %s, %d, %s" % (v(lr.vt), L_ORD, v(lr.vt)))
    a.e("ds_read_b32 %s, %s" % (v(lr.vord), v(lr.vt)))
    a.e("v_mov_b32 %s, %d" % (v(lr.vt2), L_ORD + 64))
    a.e("ds_read_b32 %s, %s" % (v(lr.vt2), v(lr.vt2)))
    a.e("s_mov_b32 %s, 0" % s(S_PPOS))
    a.e("s_waitcnt lgkmcnt(0)")
    a.e("v_readfirstlane_b32 %s, %s" % (s(S_NRDY), v(lr.vt2)))

def dyn_next(a, c, lr):
    sk = a.newlab("dw")
    a.e("s_cmp_lg_u32 %s, %s" % (s(S_PPOS), s(S_NRDY))); a.e("s_cbranch_scc1 %s" % sk)
    kind, L = c.inflag
    poll(a, lambda: flag_off(a, kind, L, S_MT), 16, lr.vl, lr.vp, 0x600 + kind + 16 * L)
    a.lab(sk)
    a.e("s_mov_b32 m0, %s" % s(S_PPOS))
    a.e("s_add_u32 %s, %s, 1" % (s(S_PPOS), s(S_PPOS)))
    a.e("v_readlane_b32 %s, %s, m0" % (s(S_T0), v(lr.vord)))
    a.e("s_lshl_b32 %s, %s, 7" % (s(S_XOFF), s(S_T0)))
    a.e("s_mul_i32 %s, %s, %d" % (s(S_WOFF), s(S_T0), 64 * c.w_pitch))

def loader_main(a, c, lr, names):
    NS = c.NS; nst = c.nst; nW = c.ndma - 4
    if c.inflag is not None:
        kind, L = c.inflag
        skip = a.newlab("np")
        a.e("s_cmp_lg_u32 %s, 0" % s(S_WAVE)); a.e("s_cbranch_scc1 %s" % skip)
        if c.dyn: dyn_start(a, c, lr)
        elif getattr(c, 'splitk', False) and G.d8:
            def off8():
                flag_off(a, kind, L, S_MT)
                a.e("s_lshl_b32 %s, %s, 10" % (s(S_T4), s(S_KH))); a.e("s_add_u32 %s, %s, %s" % (s(S_T3), s(S_T3), s(S_T4)))
            poll(a, off8, 8, lr.vl, lr.vp, 0x100 + kind + 16 * L)
        else: poll(a, lambda: flag_off(a, kind, L, S_MT), 16, lr.vl, lr.vp, 0x100 + kind + 16 * L)
        a.lab(skip)
    tstamp(a, c.name + ".polled", names)
    a.e("s_barrier")
    if c.dyn: dyn_fetch(a, c, lr)
    ops = []
    if not c.nopre:
        for st in range(NS): ops += [('W', st)] * nW
    for jb in c.jobs_pre: ops += [('P', 0)] * jb.nops
    if c.win:
        ops += [('P', 0)]; c.win.emit(a, c, lr)
    issued = 0; plan = []; tail_done = False; cs_done = False
    for j in range(nst):
        allowed = min(nst - 1, NS - 1 if j == 0 else max(NS - 1, (j - 1) - 1 + NS))
        k = max(0, min(c.ramp, allowed + 1 - issued))
        units = []
        for q in range(k):
            if issued < NS and c.nopre: ops += [('X', issued)] * 4 + [('W', issued)] * nW; units.append(('S', issued))
            elif issued < NS: ops += [('X', issued)] * 4; units.append(('X', issued))
            else: ops += [('X', issued)] * 4 + [('W', issued)] * nW; units.append(('F', None))
            if c.win and (issued + c.win_lead) % 8 == 0 and issued + c.win_lead < nst:
                ops += [('P', 0)]; units.append(('P', c.win))
            issued += 1
        for jb in c.jobs_at.get(j, []):
            ops += [('P', 0)] * jb.nops; units.append(('P', jb))
        t = 0
        if c.cs:
            st_late = (c.lazy and c.kind == 'q')
            cs_late = (c.L == 0)
            t = []
            def tw(tag):
                lastT = max(i for i, o in enumerate(ops) if o[0] == tag)
                return len(ops) - 1 - lastT
            if j == (nst - 3 if c.lazy else -1): t.append('chk')
            if j == (nst - 3 if st_late else 0): ops += [('Ts', 0)] * 8; t.append('st')
            if j == (nst - 3 if cs_late else 0): ops += [('Tc', 0)] * (4 if c.L == 0 else 1); t.append('cs')
            if j == (nst - 1 if st_late else 3): t.append(('stfin', tw('Ts')))
            if j == (nst - 1 if cs_late else 4): t.append(('csfin', tw('Tc')))
            t = tuple(t) if t else 0
        elif issued == nst and not tail_done:
            ops += [('T', 0)] * 4; t = 1; tail_done = True
        last = max(i for i, o in enumerate(ops) if o[0] in ('X', 'W') and o[1] == j)
        w = len(ops) - 1 - last
        assert w <= 63
        plan.append((tuple(units), w, t))
    a.e("s_mov_b32 %s, 0" % s(S_SLOT))
    def emit_units(units):
        for kind, st in units:
            if c.dyn and kind in 'SF': dyn_next(a, c, lr)
            if kind == 'X': issueX(a, c, lr, st)
            elif kind == 'S': issueX(a, c, lr, st); issueW(a, c, lr, st)
            elif kind == 'P': st.emit(a, c, lr)
            else:
                issueX(a, c, lr, None); issueW(a, c, lr, None)
                a.e("s_add_u32 %s, %s, %d" % (s(S_SLOT), s(S_SLOT), c.STG))
                a.e("s_cmp_eq_u32 %s, %d" % (s(S_SLOT), c.NS * c.STG))
                a.e("s_cselect_b32 %s, 0, %s" % (s(S_SLOT), s(S_SLOT)))
    def tail():
        c.tail_soff(a)
        a.e("s_lshl_b32 %s, %s, 12" % (s(S_T1), s(S_WAVE)))
        a.e("s_add_u32 m0, %s, %d" % (s(S_T1), L_RES))
        a.e("s_nop 0")
        for j in range(4):
            a.e("buffer_load_dwordx4 %s, %s, %s offen offset:%d sc1 lds" % (v(lr.vr + j), s(SRD_R, 4), s(S_T0), 1024 * j))
    def one(e):
        units, w, t = e
        emit_units(units)
        if t == 1: tail()
        if isinstance(t, tuple):
            for x in t:
                if x == 'chk': c.lazy.check(a, c, lr)
                elif x == 'st': st_loads(a, c, lr)
                elif x == 'cs': cs_loads(a, c, lr)
                else:
                    a.e("s_waitcnt vmcnt(%d)" % x[1])
                    if G.stprio: a.e("s_setprio %d" % G.stprio)
                    (st_finish if x[0] == 'stfin' else cs_finish)(a, c, lr)
                    if G.stprio: a.e("s_setprio 0")
                    a.e("s_waitcnt lgkmcnt(0)")
        a.e("s_waitcnt vmcnt(%d)" % w)
        a.e("s_barrier")
    j = 0
    while j < nst:
        done = False
        for p in (1, 8):
            n = 1
            while j + (n + 1) * p <= nst and plan[j + n * p:j + (n + 1) * p] == plan[j:j + p] and not any(e[2] for e in plan[j:j + p]): n += 1
            if (p == 1 and n >= 3 and not (c.win and j + n < nst - 12 and n < 8)) or (p == 8 and n >= 2):
                if p == 1 and c.win and n < 8 and j + 16 <= nst: continue
                a.e("s_mov_b32 %s, %d" % (s(S_CNT), n))
                lab = a.newlab("ld"); a.lab(lab)
                for e in plan[j:j + p]: one(e)
                a.e("s_sub_u32 %s, %s, 1" % (s(S_CNT), s(S_CNT)))
                a.e("s_cmp_lg_u32 %s, 0" % s(S_CNT))
                a.e("s_cbranch_scc1 %s" % lab)
                j += n * p; done = True; break
        if not done:
            one(plan[j]); j += 1
    a.e("s_waitcnt vmcnt(0) lgkmcnt(0)")
    a.e("s_barrier")

def cs_stage(a, c, r):
    mk_srd(a, SRD_R, ('ws', WS_CS, CS_B))
    t = r.free0 + 8
    a.e("v_and_b32 %s, 0xff, v0" % v(t))
    if c.nhalf == 0:
        a.e("v_lshrrev_b32 %s, 6, %s" % (v(t + 1), v(t)))
        a.e("v_lshlrev_b32 %s, 10, %s" % (v(t + 1), v(t + 1)))
        a.e("v_and_b32 %s, 63, %s" % (v(t + 2), v(t)))
        a.e("v_add_u32 %s, %s, %s" % (v(t + 1), v(t + 1), v(t + 2)))
        a.e("s_lshl_b32 %s, %s, 6" % (s(S_T0), s(S_NT)))
        a.e("v_add_u32 %s, %s, %s" % (v(t + 1), s(S_T0), v(t + 1)))
        a.e("v_lshlrev_b32 %s, 2, %s" % (v(t + 1), v(t + 1)))
    else:
        wcol_base(a, c, S_T0, S_HALFOFF)
        a.e("s_add_u32 %s, %s, %s" % (s(S_T1), s(S_T0), s(S_HALFOFF)))
        a.e("s_sub_u32 %s, %s, 384" % (s(S_T1), s(S_T1)))
        a.e("v_mov_b32 %s, %s" % (v(t + 1), s(S_T0)))
        a.e("v_mov_b32 %s, %s" % (v(t + 2), s(S_T1)))
        a.e("v_cmp_le_u32 vcc, 192, %s" % v(t))
        a.e("v_cndmask_b32 %s, %s, %s, vcc" % (v(t + 1), v(t + 1), v(t + 2)))
        a.e("v_lshl_add_u32 %s, %s, 1, %s" % (v(t + 1), v(t), v(t + 1)))
        a.e("v_lshlrev_b32 %s, 1, %s" % (v(t + 1), v(t + 1)))
        a.e("v_add_u32 %s, %d, %s" % (v(t + 1), 3072 * 4, v(t + 1)))
    a.e("buffer_load_dword %s, %s, %s, 0 offen" % (v(t + 3), v(t + 1), s(SRD_R, 4)))
    a.e("s_mov_b32 %s, %d" % (s(S_T0), 6656 * 4))
    a.e("buffer_load_dword %s, %s, %s, %s offen" % (v(t + 4), v(t + 1), s(SRD_R, 4), s(S_T0)))
    r.cs_t = t

def cs_stage3(a, c, r):
    t = r.cs_t
    a.e("s_waitcnt vmcnt(0)")
    a.e("v_add_f32 %s, %s, %s" % (v(t + 3), v(t + 3), v(t + 4)))
    a.e("v_lshlrev_b32 %s, 2, %s" % (v(t + 1), v(t)))
    a.e("v_add_u32 %s, %d, %s" % (v(t + 1), L_CS, v(t + 1)))
    a.e("ds_write_b32 %s, %s" % (v(t + 1), v(t + 3)))

class EX: pass
def extra_setup(a, c, r):
    ex = EX(); R = r.R
    ex.ones = R.get(4, 4); ex.cs = R.get(4 * c.TN, 4)
    ex.st = (c.kind == 'q')
    if ex.st: ex.s1 = R.get(8, 4); ex.s2 = R.get(8, 4)
    for i in range(4): a.e("v_mov_b32 %s, 0x3f803f80" % v(ex.ones + i))
    return ex

def extra_emit(a, c, r, ex, st):
    sk = a.newlab("xc")
    a.e("s_cmp_lg_u32 %s, 0" % s(S_WM)); a.e("s_cbranch_scc1 %s" % sk)
    for j in range(c.TN):
        d = v(ex.cs + 4 * j, 4)
        a.e("v_mfma_f32_16x16x32_bf16 %s, %s, %s, %s" % (d, v(ex.ones, 4), v(r.wf[st] + 4 * j, 4), "0" if st == 0 else d))
    a.lab(sk)
    if ex.st:
        l1 = a.newlab("xs1"); l2 = a.newlab("xs2")
        a.e("s_cmp_lg_u32 %s, 0" % s(S_WN)); a.e("s_cbranch_scc1 %s" % l1)
        for wn in range(2):
            if wn == 1: a.lab(l1)
            for i in range(2):
                x = v(r.xf[st] + 4 * (2 * wn + i), 4)
                d = v(ex.s1 + 4 * i, 4); a.e("v_mfma_f32_16x16x32_bf16 %s, %s, %s, %s" % (d, x, v(ex.ones, 4), "0" if st == 0 else d))
                d = v(ex.s2 + 4 * i, 4); a.e("v_mfma_f32_16x16x32_bf16 %s, %s, %s, %s" % (d, x, x, "0" if st == 0 else d))
            if wn == 0: a.e("s_branch %s" % l2)
        a.lab(l2)

def extra_publish(a, c, r, ex):
    vl, vt, vt2 = r.vl, r.vt, r.vt2
    a.e("s_add_u32 %s, %s, %s" % (s(S_T5), s(S_MT), s(S_NT))); a.e("s_and_b32 %s, %s, 15" % (s(S_T5), s(S_T5)))
    l_nocs = a.newlab("nocs")
    a.e("s_cmp_lg_u32 %s, 0" % s(S_WM)); a.e("s_cbranch_scc1 %s" % l_nocs)
    mk_srd(a, SRD_O, CSU if c.nhalf else CSQ)
    ncol = 3584 if c.nhalf else 3072
    a.e("s_mul_i32 %s, %s, %d" % (s(S_T0), s(S_T5), ncol * 4))
    if c.nhalf:
        wcol_base(a, c, S_T2, S_HALFOFF)
        a.e("s_lshl_b32 %s, %s, 1" % (s(S_T1), s(S_T2)))
    else:
        a.e("s_lshl_b32 %s, %s, 8" % (s(S_T1), s(S_NT)))
    a.e("s_add_u32 %s, %s, %s" % (s(S_T0), s(S_T0), s(S_T1)))
    a.e("s_lshl_b32 %s, %s, 7" % (s(S_T1), s(S_WN)))
    a.e("s_add_u32 %s, %s, %s" % (s(S_T4), s(S_T0), s(S_T1)))
    a.e("v_lshlrev_b32 %s, 2, %s" % (v(vt), v(vl)))
    a.e("v_cmp_le_u32 vcc, 16, %s" % v(vl))
    nseg = c.nfull
    for si in range(nseg):
        a.e("v_cndmask_b32 %s, %s, %s, vcc" % (v(ex.cs + 8 * si), v(ex.cs + 8 * si), v(ex.cs + 8 * si + 4)))
    a.e("s_mov_b32 exec_hi, 0")
    for si in range(nseg):
        segb = c.w_seg_bytes[si] * 2
        a.e("s_add_u32 %s, %s, %d" % (s(S_T1), s(S_T4), segb))
        a.e("buffer_store_dword %s, %s, %s, %s offen sc1" % (v(ex.cs + 8 * si), v(vt), s(SRD_O, 4), s(S_T1)))
    if c.nhalf:
        a.e("s_lshl_b32 %s, %s, 1" % (s(S_T1), s(S_HALFOFF)))
        a.e("s_add_u32 %s, %s, %s" % (s(S_T1), s(S_T1), s(S_T0)))
        a.e("s_lshl_b32 %s, %s, 6" % (s(S_T3), s(S_WN)))
        a.e("s_add_u32 %s, %s, %s" % (s(S_T1), s(S_T1), s(S_T3)))
        a.e("s_mov_b32 exec_lo, 0xffff")
        a.e("buffer_store_dword %s, %s, %s, %s offen sc1" % (v(ex.cs + 24), v(vt), s(SRD_O, 4), s(S_T1)))
    a.e("s_mov_b64 exec, -1")
    a.lab(l_nocs)
    if ex.st:
        mk_srd(a, SRD_S, c.tailbuf)
        for bit, (x, y) in ((1, (0, 1)), (1, (2, 3)), (2, (0, 2))):
            a.e("v_and_b32 %s, %d, %s" % (v(vt), bit, v(vl)))
            a.e("v_cmp_ne_u32 vcc, 0, %s" % v(vt))
            for i in range(2):
                for base in (ex.s1, ex.s2):
                    a.e("v_cndmask_b32 %s, %s, %s, vcc" % (v(base + 4 * i + x), v(base + 4 * i + x), v(base + 4 * i + y)))
        for i in range(2):
            a.e("v_mov_b32 %s, %s" % (v(ex.s1 + 4 * i + 1), v(ex.s2 + 4 * i)))
        a.e("v_and_b32 %s, 15, %s" % (v(vt), v(vl))); a.e("v_lshlrev_b32 %s, 3, %s" % (v(vt), v(vt)))
        a.e("s_lshl_b32 %s, %s, 14" % (s(S_T0), s(S_T5)))
        a.e("s_lshl_b32 %s, %s, 10" % (s(S_T1), s(S_MT))); a.e("s_add_u32 %s, %s, %s" % (s(S_T0), s(S_T0), s(S_T1)))
        a.e("s_lshl_b32 %s, %s, 9" % (s(S_T1), s(S_WM))); a.e("s_add_u32 %s, %s, %s" % (s(S_T0), s(S_T0), s(S_T1)))
        a.e("s_lshl_b32 %s, %s, 8" % (s(S_T1), s(S_WN))); a.e("s_add_u32 %s, %s, %s" % (s(S_T0), s(S_T0), s(S_T1)))
        a.e("s_mov_b32 exec_lo, 0x00f0000f"); a.e("s_mov_b32 exec_hi, 0xf0000f00")
        for i in range(2):
            a.e("buffer_store_dwordx2 %s, %s, %s, %s offen offset:%d sc1" % (v(ex.s1 + 4 * i, 2), v(vt), s(SRD_S, 4), s(S_T0), 128 * i))
        a.e("s_mov_b64 exec, -1")

def compute_main(a, c, names):
    c.map(a)
    r = compute_setup(a, c)
    tstamp(a, c.name + ".setup", names)
    a.e("s_waitcnt lgkmcnt(0)")
    a.e("s_barrier")
    tstamp(a, c.name + ".Bpre", names)
    def addr_update():
        u = ["s_add_u32 %s, %s, %d" % (s(S_SLOT), s(S_SLOT), c.STG),
             "s_cmp_eq_u32 %s, %d" % (s(S_SLOT), c.NS * c.STG),
             "s_cselect_b32 %s, %s, %s" % (s(S_INC), s(S_NEG), s(S_POS)),
             "s_cselect_b32 %s, 0, %s" % (s(S_SLOT), s(S_SLOT))]
        for i in range(r.nxa): u.append("v_add_u32 %s, %s, %s" % (v(r.xa + i), s(S_INC), v(r.xa + i)))
        for i in range(c.nwa): u.append("v_add_u32 %s, %s, %s" % (v(r.wa + i), s(S_INC), v(r.wa + i)))
        return u
    a.e("s_mov_b32 %s, 0" % s(S_SLOT))
    a.e("s_mov_b32 %s, %d" % (s(S_NEG), -(c.NS - 1) * c.STG))
    a.e("s_mov_b32 %s, %d" % (s(S_POS), c.STG))
    if c.prio: a.e("s_setprio %d" % c.prio)
    a.e("s_barrier")
    tstamp(a, c.name + ".B0", names)
    lab = a.newlab("cl")
    if c.SUBS == 1:
        for i in reads(c, r, 0, 0): a.e(i)
        cnt = c.nst - 1
        if c.extra:
            ex = extra_setup(a, c, r)
            a.e("s_waitcnt lgkmcnt(0)")
            for i in interleave(mfmas(c, r, 0), reads(c, r, 1, 1) + addr_update()): a.e(i)
            extra_emit(a, c, r, ex, 0)
            a.e("s_waitcnt lgkmcnt(0)")
            a.e("s_barrier")
            m1 = mfmas(c, r, 1)
            extra_emit(a, c, r, ex, 1)
            for i in interleave(m1, reads(c, r, 0, 0)): a.e(i)
            extra_publish(a, c, r, ex)
            cnt -= 1
        a.e("s_mov_b32 %s, %d" % (s(S_CNT), cnt))
        a.e("s_waitcnt lgkmcnt(0)")
        a.raw(".p2align 6")
        a.lab(lab)
        if c.extra:
            sk = a.newlab("vm")
            a.e("s_cmp_lg_u32 %s, %d" % (s(S_CNT), cnt - 1)); a.e("s_cbranch_scc1 %s" % sk)
            a.e("s_waitcnt vmcnt(0)")
            a.lab(sk)
        for i in interleave(mfmas(c, r, 0), reads(c, r, 1, 1) + addr_update()): a.e(i)
        for _ in range(G.pad): a.e("s_nop 7")
        a.e("s_waitcnt lgkmcnt(0)")
        a.e("s_barrier")
        if M.stamps and M.itphase == c.name:
            a.e("s_memrealtime s[96:97]"); a.e("s_waitcnt lgkmcnt(0)")
            a.e("s_add_u32 m0, %s, 40" % s(S_CNT)); a.e("s_nop 3")
            a.e("v_writelane_b32 v255, s96, m0")
        for i in interleave(mfmas(c, r, 1), reads(c, r, 0, 0)): a.e(i)
        a.e("s_sub_u32 %s, %s, 1" % (s(S_CNT), s(S_CNT)))
        a.e("s_cmp_lg_u32 %s, 0" % s(S_CNT))
        a.e("s_waitcnt lgkmcnt(0)")
        a.e("s_cbranch_scc1 %s" % lab)
        for i in interleave(mfmas(c, r, 0), reads(c, r, 1, 1)): a.e(i)
        a.e("s_waitcnt lgkmcnt(0)")
        a.e("s_barrier")
        for i in mfmas(c, r, 1): a.e(i)
    else:
        def rd(st): return reads(c, r, st, 0, 0) + reads(c, r, st, 1, 1)
        def mm(st): return mfmas(c, r, st, 0) + mfmas(c, r, st, 1)
        def step(st):
            m = mm(st); fill = rd(1 - st) + addr_update()
            for i in interleave(m, fill, per=c.rper): a.e(i)
        for i in rd(0) + addr_update(): a.e(i)
        a.e("s_waitcnt lgkmcnt(0)")
        a.e("s_barrier")
        a.e("s_mov_b32 %s, %d" % (s(S_CNT), c.nst // 2 - 1))
        a.raw(".p2align 6")
        a.lab(lab)
        step(0)
        a.e("s_waitcnt lgkmcnt(0)")
        a.e("s_barrier")
        step(1)
        a.e("s_sub_u32 %s, %s, 1" % (s(S_CNT), s(S_CNT)))
        a.e("s_cmp_lg_u32 %s, 0" % s(S_CNT))
        a.e("s_waitcnt lgkmcnt(0)")
        a.e("s_barrier")
        a.e("s_cbranch_scc1 %s" % lab)
        m = mm(0)
        for i in interleave(m, rd(1), per=c.rper): a.e(i)
        a.e("s_waitcnt lgkmcnt(0)")
        a.e("s_barrier")
        for i in mm(1): a.e(i)
    a.e("s_setprio 0")
    tstamp(a, c.name + ".loopend", names)
    return r

def row_stats(a, c, r, R, want):
    vl = r.vl
    b = R.get(); t = R.get(2); D = R.get(32, 4); S = R.get(4, 2)
    a.e("s_lshl_b32 %s, %s, 9" % (s(S_T0), s(S_WM)))
    a.e("s_add_u32 %s, %s, %d" % (s(S_T0), s(S_T0), L_RES))
    a.e("v_lshlrev_b32 %s, 3, %s" % (v(b), v(vl)))
    a.e("v_add_u32 %s, %s, %s" % (v(b), s(S_T0), v(b)))
    for i in range(16):
        a.e("ds_read_b64 %s, %s offset:%d" % (v(D + 2 * i, 2), v(b), 1024 * i))
        if i == 11: a.e("s_waitcnt lgkmcnt(6)")
    a.e("s_waitcnt lgkmcnt(0)")
    for st in (8, 4, 2, 1):
        for i in range(st):
            a.e("v_add_f32 %s, %s, %s" % (v(D + 2 * i), v(D + 2 * i), v(D + 2 * (i + st))))
            a.e("v_add_f32 %s, %s, %s" % (v(D + 2 * i + 1), v(D + 2 * i + 1), v(D + 2 * (i + st) + 1)))
    a.e("v_mul_f32 %s, 0xba800000, %s" % (v(S), v(D)))
    a.e("v_mul_f32 %s, 0x3a800000, %s" % (v(S + 1), v(D + 1)))
    a.e("v_fma_f32 %s, -%s, %s, %s" % (v(S + 1), v(S), v(S), v(S + 1)))
    a.e("v_max_f32 %s, 0, %s" % (v(S + 1), v(S + 1)))
    a.e("v_add_f32 %s, 0x%x, %s" % (v(S + 1), EPS5, v(S + 1)))
    a.e("v_rsq_f32 %s, %s" % (v(S + 2), v(S + 1)))
    a.e("s_mul_i32 %s, %s, 768" % (s(S_T0), s(S_WAVE)))
    a.e("s_add_u32 %s, %s, %d" % (s(S_T0), s(S_T0), L_STAT))
    a.e("v_lshlrev_b32 %s, 2, %s" % (v(t), v(vl)))
    a.e("v_add_u32 %s, %s, %s" % (v(t), s(S_T0), v(t)))
    a.e("ds_write_b32 %s, %s" % (v(t), v(S)))
    if want == 'qkv':
        a.e("ds_write_b32 %s, %s offset:256" % (v(t), v(S + 2)))
    else:
        a.e("v_sqrt_f32 %s, %s" % (v(S + 3), v(S + 1)))
        a.e("v_mul_f32 %s, 0x%x, %s" % (v(S + 2), NLOG2E, v(S + 2)))
        a.e("ds_write_b32 %s, %s offset:256" % (v(t), v(S + 2)))
        a.e("ds_write_b32 %s, %s offset:512" % (v(t), v(S + 3)))
    a.e("s_waitcnt lgkmcnt(0)")
    a.e("s_mov_b32 %s, %s" % (s(S_T5), s(S_T0)))

class Blk:
    def __init__(self, a, k=None): self.a = a; self.k = k if k is not None else G.schedk
    def __enter__(self): self.n = len(self.a.L)
    def __exit__(self, *x):
        blk = self.a.L[self.n:]; del self.a.L[self.n:]
        if self.k:
            import hazard
            txt = [l.strip() for l in blk]
            self.a.L += ["    " + l for l in hazard.sched(txt, self.k)]
        else: self.a.L += blk

def phi4(a, x, nm, cs, rs, tmp, C_L, C_E):
    for i in range(4): a.e("v_fmac_f32 %s, %s, %s" % (v(x + i), nm(i), cs(i)))
    for i in range(4): a.e("v_fmaak_f32 %s, %s, %s, 0x%x" % (v(x + i), v(x + i), rs(i), EPS6))
    for i in range(4): a.e("v_mul_f32 %s, %s, %s" % (v(tmp + i), s(C_L), v(x + i)))
    for i in range(4): a.e("v_exp_f32 %s, %s clamp" % (v(tmp + i), v(tmp + i)))
    for i in range(4): a.e("v_max_f32 %s, %s, %s" % (v(x + i), s(C_E), v(x + i)))
    for i in range(4): a.e("v_add_f32 %s, %s, %s" % (v(x + i), v(x + i), v(tmp + i)))

def qkv_epi(a, c, r, L, names):
    vl, vt, vt2 = r.vl, r.vt, r.vt2
    C_L = S_C0; C_E = S_C0 + 2
    a.e("s_mov_b32 %s, 0x%x" % (s(C_L), LOG2E)); a.e("s_mov_b32 %s, 0x%x" % (s(C_E), EPS6))
    def acc(j, tt): return r.acc + (j * c.TM + tt) * 4
    a.e("s_lshl_b32 %s, %s, 8" % (s(S_T5), s(S_WM))); a.e("s_add_u32 %s, %s, %d" % (s(S_T5), s(S_T5), L_STAT))
    R = Regs(r.free0, 255)
    mN = R.get(16, 4); rN = R.get(16, 4); csN = R.get(4, 2)
    va = R.get(); vb = R.get()
    a.e("v_lshrrev_b32 %s, 4, %s" % (v(va), v(vl)))
    a.e("v_lshlrev_b32 %s, 4, %s" % (v(va), v(va)))
    a.e("v_add_u32 %s, %s, %s" % (v(va), s(S_T5), v(va)))
    for tt in range(4):
        a.e("ds_read_b128 %s, %s offset:%d" % (v(mN + 4 * tt, 4), v(va), 64 * tt))
        a.e("ds_read_b128 %s, %s offset:%d" % (v(rN + 4 * tt, 4), v(va), 512 + 64 * tt))
    a.e("v_and_b32 %s, 15, %s" % (v(vb), v(vl)))
    a.e("v_lshlrev_b32 %s, 2, %s" % (v(vb), v(vb)))
    a.e("s_lshl_b32 %s, %s, 7" % (s(S_T0), s(S_WN)))
    a.e("s_add_u32 %s, %s, %d" % (s(S_T0), s(S_T0), L_CS))
    a.e("v_add_u32 %s, %s, %s" % (v(vb), s(S_T0), v(vb)))
    for j in range(2, 6):
        a.e("ds_read_b32 %s, %s offset:%d" % (v(csN + j - 2), v(vb), (j >> 1) * 256 + (j & 1) * 64))
    tmp = R.get(4, 4)
    kf = R.get(16, 4); vf = R.get(16, 4)
    a.e("s_waitcnt lgkmcnt(0)")
    tmpb = R.get(4, 4)
    with Blk(a):
        for tt in range(4):
            for jj in range(2):
                j = 2 + jj
                x = acc(j, tt)
                phi4(a, x, lambda i: v(mN + 4 * tt + i), lambda i: v(csN + jj), lambda i: v(rN + 4 * tt + i), tmp if jj else tmpb, C_L, C_E)
                d = kf + 8 * jj + 4 * (tt >> 1) + 2 * (tt & 1)
                for p in range(2):
                    a.e("v_cvt_pk_bf16_f32 %s, %s, %s" % (v(d + p), v(x + 2 * p), v(x + 2 * p + 1)))
                j = 4 + jj
                x = acc(j, tt)
                for i in range(4): a.e("v_fmac_f32 %s, %s, %s" % (v(x + i), v(mN + 4 * tt + i), v(csN + 2 + jj)))
                for i in range(4): a.e("v_mul_f32 %s, %s, %s" % (v(x + i), v(x + i), v(rN + 4 * tt + i)))
                d = vf + 8 * jj + 4 * (tt >> 1) + 2 * (tt & 1)
                for p in range(2):
                    a.e("v_cvt_pk_bf16_f32 %s, %s, %s" % (v(d + p), v(x + 2 * p), v(x + 2 * p + 1)))
    ones = R.get(4, 4)
    for i in range(4): a.e("v_mov_b32 %s, 0x3f803f80" % v(ones + i))
    KV = acc(2, 0)
    def kvt(dt, et): return KV + (dt * 3 + et) * 4
    for p in range(2):
        for dt in range(2):
            for et in range(3):
                b = v(vf + 8 * et + 4 * p, 4) if et < 2 else v(ones, 4)
                cin = "0" if p == 0 else v(kvt(dt, et), 4)
                a.e("v_mfma_f32_16x16x32_bf16 %s, %s, %s, %s" % (v(kvt(dt, et), 4), v(kf + 8 * dt + 4 * p, 4), b, cin))
    l_w1 = a.newlab("wm1"); l_q = a.newlab("q")
    vx = R.get()
    a.e("v_lshlrev_b32 %s, 4, %s" % (v(vx), v(vl)))
    a.e("s_mul_i32 %s, %s, 6144" % (s(S_T0), s(S_WN)))
    a.e("s_add_u32 %s, %s, %d" % (s(S_T0), s(S_T0), L_KVX))
    a.e("v_add_u32 %s, %s, %s" % (v(vx), s(S_T0), v(vx)))
    a.e("s_cmp_eq_u32 %s, 0" % s(S_WM))
    a.e("s_cbranch_scc1 %s" % l_w1)
    for i in range(6): a.e("ds_write_b128 %s, %s offset:%d" % (v(vx), v(KV + 4 * i, 4), 1024 * i))
    a.e("s_waitcnt lgkmcnt(0)")
    a.lab(l_w1)
    a.e("s_barrier")
    a.e("s_cmp_eq_u32 %s, 0" % s(S_WM))
    a.e("s_cbranch_scc0 %s" % l_q)
    ex = R.get(24, 4)
    for i in range(6): a.e("ds_read_b128 %s, %s offset:%d" % (v(ex + 4 * i, 4), v(vx), 1024 * i))
    mk_srd(a, SRD_O, ('ws', WS_KVP[L], 4 * MB))
    a.e("s_lshl_b32 %s, %s, 5" % (s(S_T0), s(S_MT)))
    a.e("s_lshl_b32 %s, %s, 1" % (s(S_T1), s(S_NT)))
    a.e("s_add_u32 %s, %s, %s" % (s(S_T1), s(S_T1), s(S_WN)))
    a.e("s_add_u32 %s, %s, %s" % (s(S_T0), s(S_T0), s(S_T1)))
    a.e("s_lshl_b32 %s, %s, 11" % (s(S_T0), s(S_T0)))
    a.e("s_lshl_b32 %s, %s, 4" % (s(S_T1), s(S_T1))); a.e("s_add_u32 %s, %s, %s" % (s(S_T1), s(S_T1), s(S_MT)))
    a.e("s_lshl_b32 %s, %s, 7" % (s(S_T1), s(S_T1))); a.e("s_add_u32 %s, %s, %d" % (s(S_T2), s(S_T1), 2 * MB))
    vz = R.get(); pb = R.get(8, 4)
    lane_col_off(a, vz, vl, vt)
    a.e("v_and_b32 %s, 15, %s" % (v(vt), v(vl)))
    a.e("v_lshl_add_u32 %s, %s, 6, %s" % (v(vt), v(vt), v(vz)))
    a.e("v_lshrrev_b32 %s, 4, %s" % (v(vt2), v(vl)))
    a.e("v_lshlrev_b32 %s, 4, %s" % (v(vt2), v(vt2)))
    a.e("s_waitcnt lgkmcnt(0)")
    for i in range(24):
        a.e("v_add_f32 %s, %s, %s" % (v(KV + i), v(KV + i), v(ex + i)))
    for et in range(2):
        for dt in range(2):
            for p in range(2):
                a.e("v_cvt_pk_bf16_f32 %s, %s, %s" % (v(pb + 4 * et + 2 * dt + p), v(kvt(dt, et) + 2 * p), v(kvt(dt, et) + 2 * p + 1)))
        for p in range(2):
            a.e("v_permlane16_swap_b32 %s, %s" % (v(pb + 4 * et + p), v(pb + 4 * et + 2 + p)))
        a.e("buffer_store_dwordx4 %s, %s, %s, %s offen offset:%d sc1" % (v(pb + 4 * et, 4), v(vt), s(SRD_O, 4), s(S_T0), et * 1024))
    a.e("s_mov_b32 exec_lo, 0x00010001"); a.e("s_mov_b32 exec_hi, 0x00010001")
    for dt in range(2):
        a.e("buffer_store_dwordx4 %s, %s, %s, %s offen offset:%d sc1" % (v(kvt(dt, 2), 4), v(vt2), s(SRD_O, 4), s(S_T2), dt * 64))
    a.e("s_mov_b64 exec, -1")
    def slot():
        a.e("s_lshl_b32 %s, %s, 1" % (s(S_T4), s(S_MT)))
        a.e("s_add_u32 %s, %s, %s" % (s(S_T4), s(S_T4), s(S_WN)))
        a.e("s_lshl_b32 %s, %s, 7" % (s(S_T4), s(S_T4)))
        a.e("s_add_u32 %s, %s, %s" % (s(S_T3), s(S_T3), s(S_T4)))
    set_flag(a, lambda: flag_off(a, F_K, L, S_NT, slot), vt)
    a.lab(l_q)
    tstamp(a, c.name + ".kvpub", names)
    R2 = Regs(r.free0, 255)
    mT = R2.get(4); rT = R2.get(4); csT = R2.get(8, 4); tmp = R2.get(4, 4); pq = R2.get(16, 4); va = R2.get(); vb = R2.get()
    a.e("v_and_b32 %s, 15, %s" % (v(va), v(vl)))
    a.e("v_lshlrev_b32 %s, 2, %s" % (v(va), v(va)))
    a.e("v_add_u32 %s, %s, %s" % (v(va), s(S_T5), v(va)))
    for tt in range(4):
        a.e("ds_read_b32 %s, %s offset:%d" % (v(mT + tt), v(va), 64 * tt))
        a.e("ds_read_b32 %s, %s offset:%d" % (v(rT + tt), v(va), 512 + 64 * tt))
    a.e("v_lshrrev_b32 %s, 4, %s" % (v(vb), v(vl)))
    a.e("v_lshlrev_b32 %s, 4, %s" % (v(vb), v(vb)))
    a.e("s_lshl_b32 %s, %s, 7" % (s(S_T0), s(S_WN)))
    a.e("s_add_u32 %s, %s, %d" % (s(S_T0), s(S_T0), L_CS))
    a.e("v_add_u32 %s, %s, %s" % (v(vb), s(S_T0), v(vb)))
    for j in range(2):
        a.e("ds_read_b128 %s, %s offset:%d" % (v(csT + 4 * j, 4), v(vb), 64 * j))
    a.e("s_waitcnt lgkmcnt(0)")
    tmpq = R2.get(4, 4)
    with Blk(a):
        for tt in range(4):
            for j in range(2):
                x = acc(j, tt)
                phi4(a, x, lambda i: v(mT + tt), lambda i: v(csT + 4 * j + i), lambda i: v(rT + tt), tmp if j else tmpq, C_L, C_E)
                for p in range(2):
                    a.e("v_cvt_pk_bf16_f32 %s, %s, %s" % (v(pq + 4 * tt + 2 * j + p), v(x + 2 * p), v(x + 2 * p + 1)))
    tstamp(a, c.name + ".qdone", names)
    a.e("s_barrier")
    tstamp(a, c.name + ".kvready", names)
    mk_srd(a, SRD_S, ('ws', WS_KVP[L], 4 * MB))
    P = r.acc
    a.e("v_lshlrev_b32 %s, 4, %s" % (v(vt), v(vl)))
    a.e("s_lshl_b32 %s, %s, 1" % (s(S_T1), s(S_NT))); a.e("s_add_u32 %s, %s, %s" % (s(S_T1), s(S_T1), s(S_WN)))
    a.e("s_lshl_b32 %s, %s, 8" % (s(S_T0), s(S_WM))); a.e("s_add_u32 %s, %s, %s" % (s(S_T0), s(S_T0), s(S_T1)))
    a.e("s_lshl_b32 %s, %s, 11" % (s(S_T0), s(S_T0)))
    a.e("s_lshl_b32 %s, %s, 4" % (s(S_T1), s(S_T1))); a.e("s_lshl_b32 %s, %s, 3" % (s(S_T2), s(S_WM))); a.e("s_add_u32 %s, %s, %s" % (s(S_T1), s(S_T1), s(S_T2)))
    a.e("s_lshl_b32 %s, %s, 7" % (s(S_T1), s(S_T1))); a.e("s_add_u32 %s, %s, %d" % (s(S_T1), s(S_T1), 2 * MB))
    ZP = P + 64
    a.e("buffer_load_dwordx4 %s, %s, %s, %s offen sc1" % (v(ZP, 4), v(vt), s(SRD_S, 4), s(S_T1)))
    for m in range(8):
        for et in range(2):
            a.e("buffer_load_dwordx4 %s, %s, %s, %s offen offset:%d sc1" % (v(P + 8 * m + 4 * et, 4), v(vt), s(SRD_S, 4), s(S_T0), 1024 * et))
        if m < 7: a.e("s_add_u32 %s, %s, %d" % (s(S_T0), s(S_T0), 32 * 2048))
    ACC = R2.get(16, 4); ua = R2.get(4, 2); msk = R2.get()
    a.e("v_mov_b32 %s, 0xffff0000" % v(msk))
    a.e("s_waitcnt vmcnt(16)")
    for i in range(4):
        a.e("v_add_f32_dpp %s, %s, %s row_ror:8 row_mask:0xf bank_mask:0xf" % (v(ZP + i), v(ZP + i), v(ZP + i)))
    for sw in ("v_permlane16_swap_b32", "v_permlane32_swap_b32"):
        for i in range(4): a.e("v_mov_b32 %s, %s" % (v(ua + i), v(ZP + i)))
        for i in range(4): a.e("%s %s, %s" % (sw, v(ua + i), v(ZP + i)))
        for i in range(4): a.e("v_add_f32 %s, %s, %s" % (v(ZP + i), v(ZP + i), v(ua + i)))
    for m in range(8):
        a.e("s_waitcnt vmcnt(%d)" % (2 * (7 - m)))
        for et in range(2):
            for i in range(4):
                src = P + 8 * m + 4 * et + i; d = ACC + 8 * et + 2 * i
                if m == 0:
                    a.e("v_lshlrev_b32 %s, 16, %s" % (v(d), v(src))); a.e("v_and_b32 %s, %s, %s" % (v(d + 1), v(msk), v(src)))
                else:
                    t0 = ua + 2 * (i & 1)
                    a.e("v_lshlrev_b32 %s, 16, %s" % (v(t0), v(src))); a.e("v_and_b32 %s, %s, %s" % (v(t0 + 1), v(msk), v(src)))
                    a.e("v_add_f32 %s, %s, %s" % (v(d), v(d), v(t0))); a.e("v_add_f32 %s, %s, %s" % (v(d + 1), v(d + 1), v(t0 + 1)))
    a.e("v_lshrrev_b32 %s, 2, %s" % (v(vt), v(vl))); a.e("v_lshlrev_b32 %s, 7, %s" % (v(vt), v(vt)))
    a.e("v_and_b32 %s, 3, %s" % (v(vt2), v(vl))); a.e("v_lshl_add_u32 %s, %s, 5, %s" % (v(vt), v(vt2), v(vt)))
    a.e("s_mul_i32 %s, %s, 5120" % (s(S_T0), s(S_WAVE)))
    a.e("s_add_u32 %s, %s, %d" % (s(S_T0), s(S_T0), L_AEX))
    a.e("v_add_u32 %s, %s, %s" % (v(vt), s(S_T0), v(vt)))
    for et in range(2):
        for hh in range(2):
            a.e("ds_write_b128 %s, %s offset:%d" % (v(vt), v(ACC + 8 * et + 4 * hh, 4), 2048 * et + 16 * hh))
    a.e("v_and_b32 %s, 7, %s" % (v(vt2), v(vl))); a.e("v_lshlrev_b32 %s, 4, %s" % (v(vt2), v(vt2)))
    a.e("v_add_u32 %s, %s, %s" % (v(vt2), s(S_T0), v(vt2)))
    a.e("ds_write_b128 %s, %s offset:4096" % (v(vt2), v(ZP, 4)))
    a.e("s_waitcnt lgkmcnt(0)")
    a.e("s_barrier")
    a.e("v_and_b32 %s, 15, %s" % (v(vt), v(vl)))
    a.e("v_lshlrev_b32 %s, 7, %s" % (v(vt), v(vt)))
    a.e("v_lshrrev_b32 %s, 4, %s" % (v(vt2), v(vl)))
    a.e("v_lshl_add_u32 %s, %s, 4, %s" % (v(vt), v(vt2), v(vt)))
    a.e("v_lshlrev_b32 %s, 4, %s" % (v(vt2), v(vt2)))
    a.e("s_mul_i32 %s, %s, 5120" % (s(S_T0), s(S_WN)))
    a.e("s_add_u32 %s, %s, %d" % (s(S_T0), s(S_T0), L_AEX))
    a.e("v_add_u32 %s, %s, %s" % (v(vt), s(S_T0), v(vt)))
    a.e("v_add_u32 %s, %s, %s" % (v(vt2), s(S_T0), v(vt2)))
    Z = P
    for w in range(2):
        for et in range(2):
            for hh in range(2):
                a.e("ds_read_b128 %s, %s offset:%d" % (v(Z + 24 * w + 8 * et + 4 * hh, 4), v(vt), w * 10240 + et * 2048 + hh * 64))
        for hh in range(2):
            a.e("ds_read_b128 %s, %s offset:%d" % (v(Z + 24 * w + 16 + 4 * hh, 4), v(vt2), w * 10240 + 4096 + hh * 64))
    a.e("s_waitcnt lgkmcnt(0)")
    for i in range(24): a.e("v_add_f32 %s, %s, %s" % (v(Z + i), v(Z + i), v(Z + 24 + i)))
    F = Z + 48
    for t in range(3):
        for i in range(4):
            a.e("v_cvt_pk_bf16_f32 %s, %s, %s" % (v(F + 4 * t + i), v(Z + 8 * t + 2 * i), v(Z + 8 * t + 2 * i + 1)))
    N = Z
    for tt in range(4):
        for t in range(3):
            a.e("v_mfma_f32_16x16x32_bf16 %s, %s, %s, 0" % (v(N + 12 * tt + 4 * t, 4), v(F + 4 * t, 4), v(pq + 4 * tt, 4)))
    mk_srd(a, SRD_O, ('ws', WS_O[L], 2048 * G.XP))
    vo = R2.get(); O = R2.get(16, 4)
    lane_col_off(a, vo, vl, vt)
    a.e("v_and_b32 %s, 15, %s" % (v(vt), v(vl)))
    a.e("v_mad_u32_u24 %s, %s, %s, %s" % (v(vo), v(vt), s(xp_reg(a, G.XP)), v(vo)))
    a.e("s_lshl_b32 %s, %s, 7" % (s(S_T0), s(S_MT)))
    a.e("s_lshl_b32 %s, %s, 6" % (s(S_T1), s(S_WM)))
    a.e("s_add_u32 %s, %s, %s" % (s(S_T0), s(S_T0), s(S_T1)))
    a.e("s_mul_i32 %s, %s, %d" % (s(S_T0), s(S_T0), G.XP))
    a.e("s_lshl_b32 %s, %s, 7" % (s(S_T1), s(S_NT)))
    a.e("s_add_u32 %s, %s, %s" % (s(S_T0), s(S_T0), s(S_T1)))
    a.e("s_lshl_b32 %s, %s, 6" % (s(S_T1), s(S_WN)))
    a.e("s_add_u32 %s, %s, %s" % (s(S_T0), s(S_T0), s(S_T1)))
    for tt in range(4):
        n = N + 12 * tt
        a.e("v_add_f32 %s, 0x%x, %s" % (v(n + 8), EPS6, v(n + 8)))
        a.e("v_rcp_f32 %s, %s" % (v(n + 8), v(n + 8)))
        for p in range(8): a.e("v_mul_f32 %s, %s, %s" % (v(n + p), v(n + p), v(n + 8)))
        for p in range(4):
            a.e("v_cvt_pk_bf16_f32 %s, %s, %s" % (v(O + 4 * tt + p), v(n + 2 * p), v(n + 2 * p + 1)))
        for p in range(2):
            a.e("v_permlane16_swap_b32 %s, %s" % (v(O + 4 * tt + p), v(O + 4 * tt + 2 + p)))
        a.e("s_add_u32 %s, %s, %d" % (s(S_T1), s(S_T0), tt * 16 * G.XP))
        a.e("buffer_store_dwordx4 %s, %s, %s, %s offen sc1" % (v(O + 4 * tt, 4), v(vo), s(SRD_O, 4), s(S_T1)))
    out_flag(a, F_O, L, vt)
    tstamp(a, c.name + ".opub", names)

def xp_reg(a, val):
    a.e("s_mov_b32 %s, %d" % (s(S_T4), val))
    return S_T4

def out_flag(a, kind, L, vt):
    def slot():
        a.e("s_lshl_b32 %s, %s, 7" % (s(S_T4), s(S_NT)))
        a.e("s_add_u32 %s, %s, %s" % (s(S_T3), s(S_T3), s(S_T4)))
    set_flag_wg(a, lambda: flag_off(a, kind, L, S_MT, slot), vt)

def resid_epi(a, c, r, names):
    R = Regs(r.free0, 255)
    vl, vt, vt2 = r.vl, r.vt, r.vt2
    def acc(j, tt): return r.acc + (j * c.TM + tt) * 4
    rs = R.get(16, 4); va = R.get(4); vo = R.get(); vs = R.get(); S = R.get(4, 2); t2 = R.get(4, 2); u = R.get(4, 4); pkd = R.get(16, 4); msk = R.get()
    a.e("v_and_b32 %s, 15, %s" % (v(vt), v(vl)))
    a.e("v_lshrrev_b32 %s, 1, %s" % (v(vt2), v(vt)))
    a.e("v_lshlrev_b32 %s, 7, %s" % (v(vt), v(vt)))
    a.e("s_lshl_b32 %s, %s, 12" % (s(S_T0), s(S_WM)))
    a.e("s_add_u32 %s, %s, %d" % (s(S_T0), s(S_T0), L_RES))
    a.e("v_add_u32 %s, %s, %s" % (v(vt), s(S_T0), v(vt)))
    a.e("v_bfe_u32 %s, %s, 4, 1" % (v(vo), v(vl)))
    a.e("v_lshl_add_u32 %s, %s, 3, %s" % (v(vt), v(vo), v(vt)))
    a.e("v_bfe_u32 %s, %s, 5, 1" % (v(vo), v(vl)))
    for t in range(4):
        a.e("v_add_u32 %s, %d, %s" % (v(vs), 2 * t, v(vo)))
        a.e("v_xor_b32 %s, %s, %s" % (v(vs), v(vs), v(vt2)))
        a.e("v_lshl_add_u32 %s, %s, 4, %s" % (v(va + t), v(vs), v(vt)))
    for tt in range(2):
        for t in range(4):
            a.e("ds_read_b64 %s, %s offset:%d" % (v(rs + 8 * tt + 2 * t, 2), v(va + t), 2048 * tt))
    mk_srd(a, SRD_O, c.obuf)
    if c.ostat: mk_srd(a, SRD_S, c.ostat)
    lane_col_off(a, vo, vl, vt)
    a.e("v_and_b32 %s, 15, %s" % (v(vt), v(vl)))
    a.e("v_mad_u32_u24 %s, %s, %s, %s" % (v(vo), v(vt), s(xp_reg(a, c.o_pitch)), v(vo)))
    a.e("s_lshl_b32 %s, %s, 7" % (s(S_T0), s(S_MT)))
    a.e("s_lshl_b32 %s, %s, 5" % (s(S_T1), s(S_WM)))
    a.e("s_add_u32 %s, %s, %s" % (s(S_T5), s(S_T0), s(S_T1)))
    a.e("s_mul_i32 %s, %s, %d" % (s(S_T0), s(S_T5), c.o_pitch))
    a.e("s_lshl_b32 %s, %s, 7" % (s(S_T1), s(S_NT)))
    a.e("s_add_u32 %s, %s, %s" % (s(S_T0), s(S_T0), s(S_T1)))
    a.e("v_mov_b32 %s, 0xffff0000" % v(msk))
    sc = " sc1" if c.outflag is not None else ""
    a.e("s_waitcnt lgkmcnt(0)")
    for tt in range(2):
        for t in range(4):
            x = acc(t, tt)
            for p in range(2):
                a.e("v_lshlrev_b32 %s, 16, %s" % (v(u + 2 * p), v(rs + 8 * tt + 2 * t + p)))
                a.e("v_and_b32 %s, %s, %s" % (v(u + 2 * p + 1), v(msk), v(rs + 8 * tt + 2 * t + p)))
            for i in range(4): a.e("v_add_f32 %s, %s, %s" % (v(x + i), v(x + i), v(u + i)))
            for p in range(2):
                a.e("v_cvt_pk_bf16_f32 %s, %s, %s" % (v(pkd + 8 * tt + 2 * t + p), v(x + 2 * p), v(x + 2 * p + 1)))
            if c.ostat:
                for i in range(4):
                    if t == 0 and i < 2:
                        a.e("v_mov_b32 %s, %s" % (v(t2 + i), v(x + i))); a.e("v_mul_f32 %s, %s, %s" % (v(t2 + 2 + i), v(x + i), v(x + i)))
                    else:
                        a.e("v_add_f32 %s, %s, %s" % (v(t2 + (i & 1)), v(t2 + (i & 1)), v(x + i)))
                        a.e("v_fmac_f32 %s, %s, %s" % (v(t2 + 2 + (i & 1)), v(x + i), v(x + i)))
        if c.ostat:
            a.e("v_add_f32 %s, %s, %s" % (v(S + 2 * tt), v(t2), v(t2 + 1)))
            a.e("v_add_f32 %s, %s, %s" % (v(S + 2 * tt + 1), v(t2 + 2), v(t2 + 3)))
        for h in range(2):
            b = pkd + 8 * tt + 4 * h
            for p in range(2):
                a.e("v_permlane16_swap_b32 %s, %s" % (v(b + p), v(b + 2 + p)))
            a.e("s_add_u32 %s, %s, %d" % (s(S_T1), s(S_T0), tt * 16 * c.o_pitch))
            a.e("buffer_store_dwordx4 %s, %s, %s, %s offen offset:%d%s" % (v(b, 4), v(vo), s(SRD_O, 4), s(S_T1), 64 * h, sc))
    if c.ostat:
        for sw in ("v_permlane16_swap_b32", "v_permlane32_swap_b32"):
            for i in range(4): a.e("v_mov_b32 %s, %s" % (v(u + i), v(S + i)))
            for i in range(4): a.e("%s %s, %s" % (sw, v(u + i), v(S + i)))
            for i in range(4): a.e("v_add_f32 %s, %s, %s" % (v(S + i), v(S + i), v(u + i)))
        a.e("v_cmp_le_u32 vcc, 16, %s" % v(vl))
        a.e("v_cndmask_b32 %s, %s, %s, vcc" % (v(S), v(S), v(S + 2)))
        a.e("v_cndmask_b32 %s, %s, %s, vcc" % (v(S + 1), v(S + 1), v(S + 3)))
        a.e("v_lshlrev_b32 %s, 3, %s" % (v(vt), v(vl)))
        a.e("s_lshl_b32 %s, %s, 3" % (s(S_T0), s(S_T5)))
        a.e("s_lshl_b32 %s, %s, 14" % (s(S_T1), s(S_NT)))
        a.e("s_add_u32 %s, %s, %s" % (s(S_T0), s(S_T0), s(S_T1)))
        a.e("s_mov_b32 exec_hi, 0")
        a.e("buffer_store_dwordx2 %s, %s, %s, %s offen sc1" % (v(S, 2), v(vt), s(SRD_S, 4), s(S_T0)))
        a.e("s_mov_b64 exec, -1")
    if G.bst: a.e("s_barrier")
    if c.outflag is not None:
        out_flag(a, c.outflag[0], c.outflag[1], vt)
    tstamp(a, c.name + ".pub", names)

WS_XCH = [100 * MB, 110 * MB]
def foffp(L): return 11 * 65536 + L * 131072

def dsk_epi(a, c, r, names):
    L = c.L
    R = Regs(r.free0, 255)
    vl, vt, vt2 = r.vl, r.vt, r.vt2
    def acc(j, sl): return r.acc + (j * c.TM + sl) * 4
    mk_srd(a, SRD_S, ('ws', WS_XCH[L], 8 * MB))
    vx = R.get()
    a.e("v_lshlrev_b32 %s, 4, %s" % (v(vx), v(vl)))
    a.e("s_lshl_b32 %s, s2, 2" % s(S_T0)); a.e("s_add_u32 %s, %s, %s" % (s(S_T0), s(S_T0), s(S_WAVE)))
    a.e("s_lshl_b32 %s, %s, 13" % (s(S_T0), s(S_T0)))
    for j in range(4):
        for i in range(2):
            k = 2 * j + i
            if k == 4 or k == 0:
                a.e("s_add_u32 %s, %s, %d" % (s(S_T1), s(S_T0), 4096 * (k // 4)))
            a.e("buffer_store_dwordx4 %s, %s, %s, %s offen offset:%d sc1" % (v(acc(j, 2 + i), 4), v(vx), s(SRD_S, 4), s(S_T1), 1024 * (k % 4)))
    if G.bst: a.e("s_barrier")
    def fo():
        a.e("s_lshl_b32 %s, s2, 2" % s(S_T3)); a.e("s_add_u32 %s, %s, %s" % (s(S_T3), s(S_T3), s(S_WAVE)))
        a.e("s_lshl_b32 %s, %s, 7" % (s(S_T3), s(S_T3))); a.e("s_add_u32 %s, %s, %d" % (s(S_T3), s(S_T3), foffp(L)))
    rs = R.get(16, 4); va = R.get(4); vo = R.get(); vs = R.get(); S = R.get(4, 2); t2 = R.get(4, 2); u = R.get(4, 4); pkd = R.get(16, 4); msk = R.get()
    P = R.get(32, 4)
    a.e("v_and_b32 %s, 15, %s" % (v(vt), v(vl)))
    a.e("v_lshrrev_b32 %s, 1, %s" % (v(vt2), v(vt)))
    a.e("v_lshlrev_b32 %s, 7, %s" % (v(vt), v(vt)))
    a.e("s_lshl_b32 %s, %s, 12" % (s(S_T1), s(S_WM)))
    a.e("s_add_u32 %s, %s, %d" % (s(S_T1), s(S_T1), L_RES))
    a.e("v_add_u32 %s, %s, %s" % (v(vt), s(S_T1), v(vt)))
    a.e("v_bfe_u32 %s, %s, 4, 1" % (v(vo), v(vl)))
    a.e("v_lshl_add_u32 %s, %s, 3, %s" % (v(vt), v(vo), v(vt)))
    a.e("v_bfe_u32 %s, %s, 5, 1" % (v(vo), v(vl)))
    a.e("s_lshl_b32 %s, %s, 2" % (s(S_T1), s(S_WN)))
    a.e("v_add_u32 %s, %s, %s" % (v(vo), s(S_T1), v(vo)))
    for jj in range(2):
        a.e("v_add_u32 %s, %d, %s" % (v(vs), 2 * jj, v(vo)))
        a.e("v_xor_b32 %s, %s, %s" % (v(vs), v(vs), v(vt2)))
        a.e("v_lshl_add_u32 %s, %s, 4, %s" % (v(va + jj), v(vs), v(vt)))
    for i in range(2):
        for j in range(4):
            a.e("ds_read_b64 %s, %s offset:%d" % (v(rs + 8 * i + 2 * j, 2), v(va + (j & 1)), 8192 * (j >> 1) + 2048 * i))
    set_flag(a, fo, vt)
    tstamp(a, c.name + ".sent", names)
    def po():
        a.e("s_xor_b32 %s, s2, %d" % (s(S_T3), c.pxor)); a.e("s_lshl_b32 %s, %s, 2" % (s(S_T3), s(S_T3))); a.e("s_add_u32 %s, %s, %s" % (s(S_T3), s(S_T3), s(S_WAVE)))
        a.e("s_lshl_b32 %s, %s, 7" % (s(S_T3), s(S_T3))); a.e("s_add_u32 %s, %s, %d" % (s(S_T3), s(S_T3), foffp(L)))
    poll(a, po, 1, vl, vs - 0 if False else u, 0x400 + L)
    tstamp(a, c.name + ".got", names)
    a.e("s_xor_b32 %s, s2, %d" % (s(S_T0), c.pxor)); a.e("s_lshl_b32 %s, %s, 2" % (s(S_T0), s(S_T0))); a.e("s_add_u32 %s, %s, %s" % (s(S_T0), s(S_T0), s(S_WAVE)))
    a.e("s_lshl_b32 %s, %s, 13" % (s(S_T0), s(S_T0)))
    for j in range(4):
        for i in range(2):
            k = 2 * j + i
            if k == 4 or k == 0:
                a.e("s_add_u32 %s, %s, %d" % (s(S_T1), s(S_T0), 4096 * (k // 4)))
            a.e("buffer_load_dwordx4 %s, %s, %s, %s offen offset:%d sc1" % (v(P + 4 * k, 4), v(vx), s(SRD_S, 4), s(S_T1), 1024 * (k % 4)))
    mk_srd(a, SRD_O, c.obuf)
    lane_col_off(a, vo, vl, vt)
    a.e("v_and_b32 %s, 15, %s" % (v(vt), v(vl)))
    a.e("v_mad_u32_u24 %s, %s, %s, %s" % (v(vo), v(vt), s(xp_reg(a, c.o_pitch)), v(vo)))
    a.e("s_lshl_b32 %s, %s, 7" % (s(S_T0), s(S_MT)))
    a.e("s_lshl_b32 %s, %s, 6" % (s(S_T1), s(S_WM))); a.e("s_add_u32 %s, %s, %s" % (s(S_T0), s(S_T0), s(S_T1)))
    a.e("s_lshl_b32 %s, %s, 5" % (s(S_T1), s(S_KH))); a.e("s_add_u32 %s, %s, %s" % (s(S_T5), s(S_T0), s(S_T1)))
    a.e("s_mul_i32 %s, %s, %d" % (s(S_T0), s(S_T5), c.o_pitch))
    a.e("s_lshl_b32 %s, %s, 8" % (s(S_T1), s(S_NT))); a.e("s_add_u32 %s, %s, %s" % (s(S_T0), s(S_T0), s(S_T1)))
    a.e("s_lshl_b32 %s, %s, 6" % (s(S_T1), s(S_WN))); a.e("s_add_u32 %s, %s, %s" % (s(S_T0), s(S_T0), s(S_T1)))
    a.e("v_mov_b32 %s, 0xffff0000" % v(msk))
    sc = " sc1" if c.outflag is not None else ""
    a.e("s_waitcnt lgkmcnt(0)")
    for i in range(2):
        for j in range(4):
            x = acc(j, i); k = 2 * j + i
            for p in range(2):
                a.e("v_lshlrev_b32 %s, 16, %s" % (v(u + 2 * p), v(rs + 8 * i + 2 * j + p)))
                a.e("v_and_b32 %s, %s, %s" % (v(u + 2 * p + 1), v(msk), v(rs + 8 * i + 2 * j + p)))
            for e in range(4): a.e("v_add_f32 %s, %s, %s" % (v(x + e), v(x + e), v(u + e)))
    a.e("s_waitcnt vmcnt(0)")
    for i in range(2):
        for j in range(4):
            x = acc(j, i); k = 2 * j + i
            for e in range(4): a.e("v_add_f32 %s, %s, %s" % (v(x + e), v(x + e), v(P + 4 * k + e)))
            for p in range(2):
                a.e("v_cvt_pk_bf16_f32 %s, %s, %s" % (v(pkd + 8 * i + 2 * j + p), v(x + 2 * p), v(x + 2 * p + 1)))
            if c.ostat:
                for e in range(4):
                    if j == 0 and e < 2:
                        a.e("v_mov_b32 %s, %s" % (v(t2 + e), v(x + e))); a.e("v_mul_f32 %s, %s, %s" % (v(t2 + 2 + e), v(x + e), v(x + e)))
                    else:
                        a.e("v_add_f32 %s, %s, %s" % (v(t2 + (e & 1)), v(t2 + (e & 1)), v(x + e)))
                        a.e("v_fmac_f32 %s, %s, %s" % (v(t2 + 2 + (e & 1)), v(x + e), v(x + e)))
        if c.ostat:
            a.e("v_add_f32 %s, %s, %s" % (v(S + 2 * i), v(t2), v(t2 + 1)))
            a.e("v_add_f32 %s, %s, %s" % (v(S + 2 * i + 1), v(t2 + 2), v(t2 + 3)))
        for h in range(2):
            b = pkd + 8 * i + 4 * h
            for p in range(2):
                a.e("v_permlane16_swap_b32 %s, %s" % (v(b + p), v(b + 2 + p)))
            a.e("s_add_u32 %s, %s, %d" % (s(S_T1), s(S_T0), i * 16 * c.o_pitch))
            a.e("buffer_store_dwordx4 %s, %s, %s, %s offen offset:%d%s" % (v(b, 4), v(vo), s(SRD_O, 4), s(S_T1), 128 * h, sc))
    if c.ostat:
        mk_srd(a, SRD_S, c.ostat)
        for sw in ("v_permlane16_swap_b32", "v_permlane32_swap_b32"):
            for i in range(4): a.e("v_mov_b32 %s, %s" % (v(u + i), v(S + i)))
            for i in range(4): a.e("%s %s, %s" % (sw, v(u + i), v(S + i)))
            for i in range(4): a.e("v_add_f32 %s, %s, %s" % (v(S + i), v(S + i), v(u + i)))
        a.e("v_cmp_le_u32 vcc, 16, %s" % v(vl))
        a.e("v_cndmask_b32 %s, %s, %s, vcc" % (v(S), v(S), v(S + 2)))
        a.e("v_cndmask_b32 %s, %s, %s, vcc" % (v(S + 1), v(S + 1), v(S + 3)))
        a.e("v_lshlrev_b32 %s, 3, %s" % (v(vt), v(vl)))
        a.e("s_lshl_b32 %s, %s, 3" % (s(S_T0), s(S_T5)))
        a.e("s_lshl_b32 %s, %s, 1" % (s(S_T1), s(S_NT))); a.e("s_add_u32 %s, %s, %s" % (s(S_T1), s(S_T1), s(S_WN)))
        a.e("s_lshl_b32 %s, %s, 14" % (s(S_T1), s(S_T1)))
        a.e("s_add_u32 %s, %s, %s" % (s(S_T0), s(S_T0), s(S_T1)))
        a.e("s_mov_b32 exec_hi, 0")
        a.e("buffer_store_dwordx2 %s, %s, %s, %s offen sc1" % (v(S, 2), v(vt), s(SRD_S, 4), s(S_T0)))
        a.e("s_mov_b64 exec, -1")
    if c.outflag is not None:
        def slot():
            a.e("s_lshl_b32 %s, %s, 1" % (s(S_T4), s(S_NT))); a.e("s_add_u32 %s, %s, %s" % (s(S_T4), s(S_T4), s(S_KH)))
            a.e("s_lshl_b32 %s, %s, 7" % (s(S_T4), s(S_T4))); a.e("s_add_u32 %s, %s, %s" % (s(S_T3), s(S_T3), s(S_T4)))
        set_flag_wg(a, lambda: flag_off(a, c.outflag[0], c.outflag[1], S_MT, slot), vt)
    tstamp(a, c.name + ".pub", names)

class JobWbulkD(Job):
    nops = 2
    def emit(self, a, c, lr):
        vp = lr.vpf; vl = lr.vl
        a.e("s_bfe_u32 %s, s2, 0x30003" % s(S_T0)); a.e("s_mul_i32 %s, %s, 224" % (s(S_T0), s(S_T0)))
        a.e("s_mul_i32 %s, %s, 56" % (s(S_T1), s(S_WAVE))); a.e("s_add_u32 %s, %s, %s" % (s(S_T0), s(S_T0), s(S_T1)))
        a.e("s_mul_i32 %s, %s, %d" % (s(S_T1), s(S_KH), c.K)); a.e("s_add_u32 %s, %s, %s" % (s(S_T0), s(S_T0), s(S_T1)))
        a.e("v_min_u32 %s, 55, %s" % (v(vp), v(vl)))
        a.e("v_add_u32 %s, %s, %s" % (v(vp), s(S_T0), v(vp)))
        a.e("v_mul_u32_u24 %s, %d, %s" % (v(vp), c.w_pitch, v(vp)))
        a.e("s_lshl_b32 %s, %s, 8" % (s(S_T0), s(S_NT)))
        a.e("buffer_load_dword %s, %s, %s, %s offen" % (v(lr.vd), v(vp), s(SRD_W, 4), s(S_T0)))
        a.e("buffer_load_dword %s, %s, %s, %s offen offset:128" % (v(lr.vd), v(vp), s(SRD_W, 4), s(S_T0)))

def w1_epi(a, c, r, L, names):
    vl, vt, vt2 = r.vl, r.vt, r.vt2
    def acc(j, tt): return r.acc + (j * c.TM + tt) * 4
    R = Regs(r.free0, 255)
    if M.detail: tstamp(a, c.name + ".e0", names, True)
    a.e("s_lshl_b32 %s, %s, 8" % (s(S_T5), s(S_WM))); a.e("s_add_u32 %s, %s, %d" % (s(S_T5), s(S_T5), L_STAT))
    R = Regs(r.free0, 255)
    mT = R.get(4); cT = R.get(4); iT = R.get(4); cs = R.get(28, 4); tmp = R.get(8, 4); pkd = R.get(16, 4); va = R.get(); vb = R.get(); vo = R.get(); vh = R.get()
    a.e("v_and_b32 %s, 15, %s" % (v(va), v(vl)))
    a.e("v_lshlrev_b32 %s, 2, %s" % (v(va), v(va)))
    a.e("v_add_u32 %s, %s, %s" % (v(va), s(S_T5), v(va)))
    for tt in range(4):
        a.e("ds_read_b32 %s, %s offset:%d" % (v(mT + tt), v(va), 64 * tt))
        a.e("ds_read_b32 %s, %s offset:%d" % (v(cT + tt), v(va), 512 + 64 * tt))
        a.e("ds_read_b32 %s, %s offset:%d" % (v(iT + tt), v(va), 1024 + 64 * tt))
    a.e("v_lshrrev_b32 %s, 4, %s" % (v(vb), v(vl)))
    a.e("v_lshlrev_b32 %s, 4, %s" % (v(vb), v(vb)))
    a.e("v_add_u32 %s, %d, %s" % (v(vb), L_CS, v(vb)))
    a.e("s_lshl_b32 %s, %s, 6" % (s(S_T0), s(S_WN)))
    a.e("v_add_u32 %s, %s, %s" % (v(vh), s(S_T0), v(vb)))
    a.e("s_lshl_b32 %s, %s, 7" % (s(S_T0), s(S_WN)))
    a.e("v_add_u32 %s, %s, %s" % (v(vb), s(S_T0), v(vb)))
    a.e("s_waitcnt lgkmcnt(0)")
    for j, (si, ai) in enumerate(c.ct):
        if c.segs[si] == 'full': a.e("ds_read_b128 %s, %s offset:%d" % (v(cs + 4 * j, 4), v(vb), 256 * si + 64 * ai))
        else: a.e("ds_read_b128 %s, %s offset:%d" % (v(cs + 4 * j, 4), v(vh), 768))
    mk_srd(a, SRD_O, ('ws', WS_H[L], 2048 * G.HP))
    wcol_base(a, c, S_T2, S_HALFOFF)
    lane_col_off(a, vo, vl, vt)
    a.e("v_and_b32 %s, 15, %s" % (v(vt), v(vl)))
    a.e("v_mul_u32_u24 %s, %d, %s" % (v(vt), G.HP, v(vt)))
    a.e("v_add_u32 %s, %s, %s" % (v(vo), v(vo), v(vt)))
    a.e("s_lshl_b32 %s, %s, 6" % (s(S_T0), s(S_WN)))
    a.e("v_add_u32 %s, %s, %s" % (v(vo), s(S_T0), v(vo)))
    a.e("v_lshrrev_b32 %s, 4, %s" % (v(vh), v(vl)))
    a.e("v_lshl_add_u32 %s, %s, 3, %s" % (v(vh), v(vh), v(vt)))
    a.e("s_lshl_b32 %s, %s, 5" % (s(S_T0), s(S_WN)))
    a.e("s_add_u32 %s, %s, %s" % (s(S_T0), s(S_T0), s(S_HALFOFF)))
    a.e("s_add_u32 %s, %s, %s" % (s(S_T0), s(S_T0), s(S_T2)))
    a.e("v_add_u32 %s, %s, %s" % (v(vh), s(S_T0), v(vh)))
    a.e("v_add_u32 %s, %s, %s" % (v(vo), s(S_T2), v(vo)))
    a.e("s_lshl_b32 %s, %s, 7" % (s(S_T0), s(S_MT)))
    a.e("s_lshl_b32 %s, %s, 6" % (s(S_T1), s(S_WM)))
    a.e("s_add_u32 %s, %s, %s" % (s(S_T0), s(S_T0), s(S_T1)))
    a.e("s_mul_i32 %s, %s, %d" % (s(S_T0), s(S_T0), G.HP))
    a.e("s_waitcnt lgkmcnt(0)")
    def silu_n(items, tmp=tmp):
        for n, (x, j, tt) in enumerate(items):
            for i in range(4): a.e("v_fmac_f32 %s, %s, %s" % (v(x + i), v(mT + tt), v(cs + 4 * j + i)))
        for n, (x, j, tt) in enumerate(items):
            for i in range(4): a.e("v_mul_f32 %s, %s, %s" % (v(tmp + 4 * n + i), v(x + i), v(cT + tt)))
        for n, (x, j, tt) in enumerate(items):
            for i in range(4): a.e("v_exp_f32 %s, %s" % (v(tmp + 4 * n + i), v(tmp + 4 * n + i)))
        for n, (x, j, tt) in enumerate(items):
            for i in range(4): a.e("v_fma_f32 %s, %s, %s, %s" % (v(tmp + 4 * n + i), v(tmp + 4 * n + i), v(iT + tt), v(iT + tt)))
        for n, (x, j, tt) in enumerate(items):
            for i in range(4): a.e("v_rcp_f32 %s, %s" % (v(tmp + 4 * n + i), v(tmp + 4 * n + i)))
        for n, (x, j, tt) in enumerate(items):
            for i in range(4): a.e("v_mul_f32 %s, %s, %s" % (v(x + i), v(x + i), v(tmp + 4 * n + i)))
    h7 = R.get(8, 4); g7 = R.get(4, 4); vx = R.get(); tmp7 = R.get(4, 4)
    with Blk(a):
        for tt in range(4):
            x = acc(6, tt)
            silu_n([(x, 6, tt)], [tmp, tmp + 4, tmp7, tmp][tt])
            for p in range(2):
                a.e("v_cvt_pk_bf16_f32 %s, %s, %s" % (v(h7 + 2 * tt + p), v(x + 2 * p), v(x + 2 * p + 1)))
    a.e("v_lshlrev_b32 %s, 4, %s" % (v(vx), v(vl)))
    a.e("s_lshl_b32 %s, %s, 10" % (s(S_T1), s(S_WAVE)))
    a.e("s_add_u32 %s, %s, %d" % (s(S_T1), s(S_T1), L_X7))
    a.e("v_add_u32 %s, %s, %s" % (v(vx), s(S_T1), v(vx)))
    l_a = a.newlab("g7a"); l_b = a.newlab("g7b")
    a.e("s_cmp_eq_u32 %s, 0" % s(S_WN)); a.e("s_cbranch_scc0 %s" % l_a)
    a.e("ds_write_b128 %s, %s" % (v(vx), v(h7 + 4, 4)))
    a.e("s_branch %s" % l_b)
    a.lab(l_a)
    a.e("ds_write_b128 %s, %s" % (v(vx), v(h7, 4)))
    a.lab(l_b)
    k = 0
    tmp2 = R.get(8, 4)
    with Blk(a):
        for tt in range(4):
            for si in range(3):
                b = pkd + 4 * (k & 3); k += 1
                silu_n([(acc(2 * si + ai, tt), 2 * si + ai, tt) for ai in range(2)], tmp if k & 1 else tmp2)
                for ai in range(2):
                    x = acc(2 * si + ai, tt)
                    for p in range(2):
                        a.e("v_cvt_pk_bf16_f32 %s, %s, %s" % (v(b + 2 * ai + p), v(x + 2 * p), v(x + 2 * p + 1)))
                for p in range(2):
                    a.e("v_permlane16_swap_b32 %s, %s" % (v(b + p), v(b + 2 + p)))
                if si == 0: a.e("s_add_u32 %s, %s, %d" % (s(S_T1), s(S_T0), tt * 16 * G.HP))
                a.e("buffer_store_dwordx4 %s, %s, %s, %s offen offset:%d sc1" % (v(b, 4), v(vo), s(SRD_O, 4), s(S_T1), 128 * si))
    a.e("s_waitcnt lgkmcnt(0)")
    a.e("s_barrier")
    a.e("v_xor_b32 %s, 1024, %s" % (v(vx), v(vx)))
    a.e("ds_read_b128 %s, %s" % (v(g7, 4), v(vx)))
    lane_col_off(a, vh, vl, vt)
    a.e("v_and_b32 %s, 15, %s" % (v(vt), v(vl)))
    a.e("v_mul_u32_u24 %s, %d, %s" % (v(vt), G.HP, v(vt)))
    a.e("v_add_u32 %s, %s, %s" % (v(vh), v(vh), v(vt)))
    a.e("s_add_u32 %s, %s, %s" % (s(S_T1), s(S_HALFOFF), s(S_T2)))
    a.e("v_add_u32 %s, %s, %s" % (v(vh), s(S_T1), v(vh)))
    l_c = a.newlab("g7c"); l_d = a.newlab("g7d")
    a.e("s_waitcnt lgkmcnt(0)")
    a.e("s_cmp_eq_u32 %s, 0" % s(S_WN)); a.e("s_cbranch_scc0 %s" % l_c)
    for i in range(2):
        b = pkd + 4 * i
        for p in range(2):
            a.e("v_mov_b32 %s, %s" % (v(b + p), v(h7 + 2 * i + p))); a.e("v_mov_b32 %s, %s" % (v(b + 2 + p), v(g7 + 2 * i + p)))
    a.e("s_mov_b32 %s, 0" % s(S_T4))
    a.e("s_branch %s" % l_d)
    a.lab(l_c)
    for i in range(2):
        b = pkd + 4 * i
        for p in range(2):
            a.e("v_mov_b32 %s, %s" % (v(b + p), v(g7 + 2 * i + p))); a.e("v_mov_b32 %s, %s" % (v(b + 2 + p), v(h7 + 4 + 2 * i + p)))
    a.e("s_mov_b32 %s, %d" % (s(S_T4), 2 * 16 * G.HP))
    a.lab(l_d)
    a.e("s_add_u32 %s, %s, %s" % (s(S_T4), s(S_T4), s(S_T0)))
    for i in range(2):
        b = pkd + 4 * i
        for p in range(2):
            a.e("v_permlane16_swap_b32 %s, %s" % (v(b + p), v(b + 2 + p)))
        a.e("s_add_u32 %s, %s, %d" % (s(S_T1), s(S_T4), i * 16 * G.HP))
        a.e("buffer_store_dwordx4 %s, %s, %s, %s offen sc1" % (v(b, 4), v(vh), s(SRD_O, 4), s(S_T1)))
    if M.detail:
        a.e("s_waitcnt vmcnt(0)")
        tstamp(a, c.name + ".drained", names, True)
    out_flag(a, F_H, L, vt)
    tstamp(a, c.name + ".pub", names)

def tail_stats(a): a.e("s_lshl_b32 %s, %s, 10" % (s(S_T0), s(S_MT)))
def tail_resid(a): a.e("s_lshl_b32 %s, %s, 7" % (s(S_T0), s(S_NT)))
def tail_dsk(a):
    a.e("s_lshl_b32 %s, %s, 8" % (s(S_T0), s(S_NT)))
    a.e("s_lshr_b32 %s, %s, 1" % (s(S_T1), s(S_WAVE))); a.e("s_lshl_b32 %s, %s, 7" % (s(S_T1), s(S_T1)))
    a.e("s_add_u32 %s, %s, %s" % (s(S_T0), s(S_T0), s(S_T1)))

def phases(opt):
    XP = G.XP; HP = G.HP; AB = 2048 * XP
    X0 = ('x', 0, ACT); X1 = ('ws', WS_X1, AB); X2 = ('ws', WS_X2, AB); X3 = ('ws', WS_X3, AB); OUT = ('out', 0, ACT)
    P = []
    com = dict(wflags='', xflags=' sc1')
    for L in range(2):
        xin = X0 if L == 0 else X2; xmid = X1 if L == 0 else X3; xout = X2 if L == 0 else OUT
        pin = 2048 if L == 0 else XP; pout = XP if L == 0 else 2048
        q = Cfg(name='q%d' % L, K=1024, xbuf=xin, x_pitch=pin, wbuf=('wqkv', 0, 1024 * 6144), w_pitch=6144, segs=['full'] * 3,
                w_seg_bytes=[0, 2048, 4096], w_ntile_bytes=128, NS=3, WM=2, WN=2, map=map_8x4, orient='TTNNNN',
                tailbuf=stbuf(2 * L), tail_pitch=0, tail_soff=tail_stats, inflag=None if L == 0 else (F_X, 1), kind='q', L=L, **{**com, **opt.get('q', {})})
        w = Cfg(name='o%d' % L, K=1024, xbuf=('ws', WS_O[L], AB), x_pitch=XP, wbuf=('wo', 0, 1024 * 2048), w_pitch=2048, segs=['full'],
                w_seg_bytes=[0], w_ntile_bytes=128, NS=5, WM=4, WN=1, SUBS=2, map=map_4x8, orient='TTTT',
                tailbuf=xin, tail_pitch=pin, tail_soff=tail_resid, obuf=xmid, o_pitch=XP, ostat=stbuf(2 * L + 1), inflag=(F_O, L), outflag=(F_X1, L), kind='r', L=L, **{**com, **opt.get('o', {})})
        u = Cfg(name='u%d' % L, K=1024, xbuf=xmid, x_pitch=XP, wbuf=('w1', 0, 1024 * 7168), w_pitch=7168, segs=['full'] * 3 + ['half'],
                w_seg_bytes=[0, 128, 256], w_ntile_bytes=448, NS=3, WM=2, WN=2, map=map_8x4, orient='T' * 7,
                tailbuf=stbuf(2 * L + 1), tail_pitch=0, tail_soff=tail_stats, inflag=(F_X1, L), kind='u', L=L, **{**com, **opt.get('u', {})})
        d = Cfg(name='d%d' % L, K=3584, xbuf=('ws', WS_H[L], 2048 * HP), x_pitch=HP, wbuf=('w2', 0, 3584 * 2048), w_pitch=2048, segs=['full'],
                w_seg_bytes=[0], w_ntile_bytes=128, NS=5, WM=4, WN=1, SUBS=2, map=map_4x8, orient='TTTT',
                tailbuf=xmid, tail_pitch=XP, tail_soff=tail_resid, obuf=xout, o_pitch=pout, ostat=stbuf(2) if L == 0 else None, inflag=(F_H, L),
                outflag=(F_X, 1) if L == 0 else None, kind='r', L=L, **{**com, **opt.get('d', {})})
        if opt.get('dsk', True):
            d = Cfg(name='d%d' % L, K=1792, xbuf=('ws', WS_H[L], 2048 * HP), x_pitch=HP, wbuf=('w2', 0, 3584 * 2048), w_pitch=2048, segs=['full', 'full'],
                    w_seg_bytes=[0, 128], w_ntile_bytes=256, NS=opt.get('dNS', 3), WM=2, WN=2, map=map_dsk2 if opt.get('same', False) else map_dsk, pxor=8 if opt.get('same', False) else 1, orient='TTTT', splitk=True,
                    tailbuf=xmid, tail_pitch=XP, tail_soff=tail_dsk, obuf=xout, o_pitch=pout, ostat=stbuf(2) if L == 0 else None, inflag=(F_H, L),
                    outflag=(F_X, 1) if L == 0 else None, kind='k', L=L, **{**com, **opt.get('d', {})})
        for c in (q, w, u, d):
            c.jobs_pre = []; c.jobs_at = {}; c.win = None; c.win_lead = 3
            c.rot = False; c.cs = False; c.lazy = None; c.extra = False; c.nopre = c.inflag is None; c.dyn = None; c.dynT = opt.get('dynT', 8)
        q.rot = u.rot = (L == 0 or opt.get('rot1', False)); q.cs = u.cs = True
        if L == 0:
            q.extra = u.extra = True
            q.jobs_pre = [JobZero()] + ([JobCode()] if opt.get('code', True) else [])
            q.lazy = JobLazy('init'); u.lazy = JobLazy('csu')
        dyn = opt.get('dyn', '')
        if 'o' in dyn: w.dyn = 'one'; w.nopre = True
        if L == 1 and 'u' in dyn: u.dyn = 'one'; u.nopre = True; u.rot = False; u.jobs_pre.append(JobWbulk())
        if L == 1 and 'q' in dyn: q.dyn = 'pair'; q.nopre = True; q.rot = False; q.jobs_pre.append(JobWbulk())
        pf = opt.get('pf', 'mo')
        if 'x' in pf:
            w.win = JobXW()
            if d.kind != 'k': d.win = JobXW()
        if 'b' in pf and d.kind == 'k': d.jobs_pre.append(JobWbulkD())
        if 'o' in pf: w.jobs_pre.append(JobWbulkO())
        if 's' in pf and L == 1: q.jobs_pre.append(JobIfNt(JobWbulk(), 7, 3))
        if 't' in pf and d.kind == 'k': d.jobs_pre.append(JobIfNt(JobWbulkD(), 3, 1))
        if 'w' in pf:
            q.jobs_pre.append(JobWbulk()); u.jobs_pre.append(JobWbulk())
        if 'm' in pf and L == 0:
            wa = opt.get('wa', 5); wb = opt.get('wb', 3)
            ja = [JobWarm(('wo', 0, 1024 * 2048), 16, 2), JobWarm(('w1', 0, 1024 * 7168), 56, 0)]
            jb = [JobWarm(('w2', 0, 3584 * 2048), 56, 0)]
            for g in range(8):
                q.jobs_at.setdefault(wa + g, []).append(JobCond(ja, g))
                u.jobs_at.setdefault(wb + g, []).append(JobCond(jb, g))
        if opt.get('q0nt') and L == 0:
            q.wflags = ' nt' if 'w' in opt['q0nt'] else ''
            q.xflags = ' nt' if 'x' in opt['q0nt'] else q.xflags
            if 'w' in opt['q0nt']:
                jq = [JobWarm(('wqkv', 0, 1024 * 6144), 48, 0)]
                for g in range(8): d.jobs_at.setdefault(4 + g, []).append(JobCond(jq, g))
        if 'n' in pf and L == 0:
            q.jobs_at = {6: [JobWarm(('wo', 0, 1024 * 2048), 16, 2), JobWarm(('w1', 0, 1024 * 7168), 56, 0)]}
            u.jobs_at = {5: [JobWarm(('w2', 0, 3584 * 2048), 56, 0)]}
        if L == 0:
            q.jobs_at.setdefault(4, []).append(JobArrive('init')); q.jobs_at.setdefault(10, []).append(q.lazy)
            u.jobs_at.setdefault(4, []).append(JobArrive('csu')); u.jobs_at.setdefault(10, []).append(u.lazy)
        P += [q, w, u, d]
    return P

def mega_kernel(a, name, opt, nph=8):
    P = phases(opt)[:nph]
    G.kname = name; G.kend = "L_kernel_end"
    kernel_header(a, name)
    l_end = a.newlab("end"); l_load = a.newlab("loader")
    a.e("s_cmp_ge_u32 s2, 256"); a.e("s_cbranch_scc1 %s" % l_end)
    load_kernargs(a)
    a.e("v_lshrrev_b32 v1, 6, v0")
    a.e("s_nop 0")
    a.e("v_readfirstlane_b32 %s, v1" % s(S_WAVE))
    if M.stamps: a.e("v_mov_b32 v255, 0")
    a.e("s_waitcnt lgkmcnt(0)")
    mk_srd(a, SRD_F, ('ws', WS_FLAG, FLAG_B))
    a.e("s_cmp_ge_u32 %s, 4" % s(S_WAVE))
    a.e("s_cbranch_scc1 %s" % l_load)
    cn = []; ln = []
    tstamp(a, "start", cn)
    if opt.get('early', True):
        map_8x4(a)
        a.e("s_add_u32 %s, %s, %s" % (s(S_T2), s(S_MT), s(S_NT))); a.e("s_and_b32 %s, %s, 15" % (s(S_T2), s(S_T2)))
        a.e("v_and_b32 v1, 63, v0")
        mk_srd(a, SRD_X, ('x', 0, ACT)); mk_srd(a, SRD_W, ('wqkv', 0, 1024 * 6144))
        lw = a.newlab("ew"); le = a.newlab("ee")
        a.e("s_cmp_ge_u32 %s, 2" % s(S_WAVE)); a.e("s_cbranch_scc1 %s" % lw)
        a.e("s_lshl_b32 %s, %s, 7" % (s(S_T0), s(S_MT))); a.e("s_lshl_b32 %s, %s, 6" % (s(S_T1), s(S_WAVE))); a.e("s_add_u32 %s, %s, %s" % (s(S_T0), s(S_T0), s(S_T1)))
        a.e("v_add_u32 v2, %s, v1" % s(S_T0)); a.e("v_lshlrev_b32 v2, 11, v2")
        a.e("s_lshl_b32 %s, %s, 7" % (s(S_T1), s(S_T2)))
        a.e("buffer_load_dword v253, v2, %s, %s offen sc1" % (s(SRD_X, 4), s(S_T1)))
        a.e("s_branch %s" % le)
        a.lab(lw)
        a.e("s_lshl_b32 %s, %s, 6" % (s(S_T0), s(S_T2)))
        a.e("v_add_u32 v2, %s, v1" % s(S_T0)); a.e("v_mul_u32_u24 v2, 6144, v2")
        a.e("s_sub_u32 %s, %s, 2" % (s(S_T1), s(S_WAVE))); a.e("s_lshl_b32 %s, %s, 11" % (s(S_T1), s(S_T1)))
        a.e("s_lshl_b32 %s, %s, 7" % (s(S_T0), s(S_NT))); a.e("s_add_u32 %s, %s, %s" % (s(S_T1), s(S_T1), s(S_T0)))
        a.e("buffer_load_dword v253, v2, %s, %s offen" % (s(SRD_W, 4), s(S_T1)))
        a.lab(le)
        a.e("s_lshl_b32 %s, %s, 6" % (s(S_T0), s(S_T2))); a.e("s_lshl_b32 %s, %s, 4" % (s(S_T1), s(S_WAVE))); a.e("s_add_u32 %s, %s, %s" % (s(S_T0), s(S_T0), s(S_T1)))
        a.e("v_lshrrev_b32 v2, 2, v1"); a.e("v_add_u32 v2, %s, v2" % s(S_T0)); a.e("v_mul_u32_u24 v2, 6144, v2")
        a.e("s_lshl_b32 %s, %s, 7" % (s(S_T1), s(S_NT))); a.e("s_add_u32 %s, %s, 4096" % (s(S_T1), s(S_T1)))
        a.e("buffer_load_dword v253, v2, %s, %s offen" % (s(SRD_W, 4), s(S_T1)))
    a.e("v_mov_b32 v1, %d" % L_CNT); a.e("v_mov_b32 v2, 0")
    a.e("ds_write_b32 v1, v2")
    for c in P:
        r = compute_main(a, c, cn)
        if c.kind == 'q': qkv_epi(a, c, r, c.L, cn)
        elif c.kind == 'r': resid_epi(a, c, r, cn)
        elif c.kind == 'k': dsk_epi(a, c, r, cn)
        else: w1_epi(a, c, r, c.L, cn)
    flush_stamps(a, 0)
    a.e("s_endpgm")
    a.lab(l_load)
    a.e("s_sub_u32 %s, %s, 4" % (s(S_WAVE), s(S_WAVE)))
    lr = LRegs(); R = Regs(1, 128)
    lr.vl = R.get(); lr.vt = R.get(); lr.vt2 = R.get(); lr.vx = R.get(4); lr.vw = R.get(7); lr.vr = R.get(4); lr.vp = R.get(2); lr.vpf = R.get(); lr.vd = R.get(); lr.vlz = R.get(); lr.vcs = R.get(); lr.vc16 = R.get(16, 4); lr.vs16 = R.get(16, 4); lr.vca = R.get(); lr.vpa = R.get(2, 2); lr.vord = R.get()
    a.e("v_and_b32 %s, 63, v0" % v(lr.vl))
    tstamp(a, "start", ln)
    loader_pre(a, P[0], lr)
    for i, c in enumerate(P):
        loader_main(a, c, lr, ln)
        tstamp(a, c.name + ".fin", ln)
        if G.bst and c.kind in 'rk': a.e("s_barrier")
        if i + 1 < len(P): loader_pre(a, P[i + 1], lr)
        if c.kind == 'u':
            a.e("s_barrier")
        if c.kind == 'q':
            a.e("s_barrier")
            skip = a.newlab("np")
            a.e("s_cmp_lg_u32 %s, 0" % s(S_WAVE)); a.e("s_cbranch_scc1 %s" % skip)
            def off(c=c):
                a.e("s_bfe_u32 %s, s2, 0x20001" % s(S_T5)); a.e("s_lshl_b32 %s, %s, 2" % (s(S_T5), s(S_T5)))
                a.e("s_lshr_b32 %s, s2, 6" % s(S_T3)); a.e("s_add_u32 %s, %s, %s" % (s(S_T5), s(S_T5), s(S_T3)))
                flag_off(a, F_K, c.L, S_T5)
            poll(a, off, 32, lr.vl, lr.vp, 0x200 + c.L)
            a.lab(skip)
            tstamp(a, c.name + ".kpolled", ln)
            a.e("s_barrier")
            a.e("s_barrier")
    flush_stamps(a, 1)
    a.lab(l_end)
    a.e("s_endpgm")
    a.lab("L_kernel_end")
    M.cn = cn; M.ln = ln

def p0_zero_flags(a):
    mk_srd(a, SRD_P, ('ws', WS_FLAG, FLAG_B))
    a.e("v_mov_b32 v110, 0")
    a.e("v_and_b32 v111, 63, v0"); a.e("v_lshlrev_b32 v111, 2, v111")
    a.e("s_lshl_b32 %s, s2, 8" % s(S_T0))
    a.e("buffer_store_dword v110, v111, %s, %s offen" % (s(SRD_P, 4), s(S_T0)))

def build(path, stamps=False, header="", opt=None, nph=8, filt=None, detail=False):
    opt = opt or {}
    M.stamps = stamps; M.filt = filt; M.detail = detail; M.itphase = opt.get('itphase'); M.dbgout = opt.get('dbgout', False); M.dbgwg = opt.get('dbgwg', 0)
    if M.dbgout:
        M.stamps = True
        keep = opt['dbgout']
        M.filt = lambda n: n in keep
    G.HP = opt.get('HP', 7168); G.XP = opt.get('XP', 2048); G.bst = opt.get('bst', True); G.stprio = opt.get('stprio', 1); G.schedk = opt.get('schedk', 0); G.pad = opt.get('pad', 0); G.d8 = opt.get('d8', True)
    global WS_X3
    reuse = opt.get('reuse', True)
    WS_H[1] = WS_H[0] if reuse else 82 * MB
    WS_O[1] = WS_O[0] if reuse else 20 * MB
    WS_XCH[1] = WS_XCH[0] if reuse else 110 * MB
    WS_X3 = WS_X1 if reuse else 10 * MB
    a = Asm()
    a.raw('.amdgcn_target "amdgcn-amd-amdhsa--gfx950"'); a.raw(".text")
    KN = "interleave_layers__linear_attn_block__dense_activation_silu__prompt_kernel"
    mega_kernel(a, KN, opt, nph)
    a.raw('.section .rodata,"a"')
    a.raw(kernel_desc(KN, 256, 102))
    launches = [(KN, 256, 512, LDS_TOTAL)]
    head = header + "; @launch grid=(256,1,1) block=(512,1,1) lds=%d\n" % LDS_TOTAL
    open(path, 'w').write(head + a.text())
    return launches

if __name__ == '__main__':
    ref = open('interleave_layers__linear_attn_block__dense_activation_silu__prompt.s.ref').read().split('\n')
    hdr = "\n".join(l for l in ref[:10] if l.startswith(';') and '@launch' not in l and 'Override' not in l and 'grid=ceil' not in l) + "\n"
    out = sys.argv[1] if len(sys.argv) > 1 else 'interleave_layers__linear_attn_block__dense_activation_silu__prompt.s'
    print(build(out, header=hdr))
```
